```python
import torch

def _softmax(x, axis=-1):
    return torch.softmax(x, dim=axis)
def _gelu(x):
    return torch.nn.functional.gelu(x, approximate="tanh")
def _silu(x):
    return torch.nn.functional.silu(x)
def _sigmoid(x):
    return torch.sigmoid(x)
def _layernorm(x, axis=-1, eps=1e-5):
    m = x.mean(dim=axis, keepdim=True)
    v = x.var(dim=axis, keepdim=True, unbiased=False)
    return (x - m) / torch.sqrt(v + eps)
def _scatter_add(tgt, idx, src, axis=0):
    return tgt.clone().index_add_(axis, idx, src)
def _segment_sum(src, seg, n):
    out = torch.zeros((n,) + src.shape[1:], dtype=src.dtype)
    return out.index_add_(0, seg, src)
def _pad(x, pw):
    flat = tuple(v for pair in reversed(pw) for v in pair)
    return torch.nn.functional.pad(x, flat)

kernel_name = 'recurrent_scan__sliding_block_cached__glu_gated_glu__decode'

def setup_inputs():

    _w = (lambda a: (lambda t: t.to(torch.bfloat16) if t.is_floating_point() else t)(torch.as_tensor(a)))
    def _A_setup():
        B, Sq, D = 2, 1, 512
        Hq, Hkv, Sk, Dh = 32, 8, 32768, 128
        assert Hq % Hkv == 0, (Hq, Hkv)
        return {
            "x": _w((lambda *s: torch.randn(*s, dtype=torch.bfloat16) * 0.05)(B, Sq, D)),
            "k_cache": _w((lambda *s: torch.randn(*s, dtype=torch.bfloat16) * 1.6)(B, Hkv, Sk, Dh)),
            "v_cache": _w((lambda *s: torch.randn(*s, dtype=torch.bfloat16) * 0.2)(B, Hkv, Sk, Dh)),
            "wq": _w((lambda *s: torch.randn(*s, dtype=torch.bfloat16) * 1.6)(D, Hq * Dh) * (D ** -0.5)),
            "wo": _w((lambda *s: torch.randn(*s, dtype=torch.bfloat16) * 0.2)(Hq * Dh, D) * ((Hq * Dh) ** -0.5)),
        }
    _A_in = _A_setup()

    def _B_setup():
        B, S, D, F = 2, 1, 512, 1792
        return {
            "x": _w((lambda *s: torch.randn(*s, dtype=torch.bfloat16) * 0.05)(B, S, D)),
            "w_gate": _w((lambda *s: torch.randn(*s, dtype=torch.bfloat16) * 1.6)(D, F)),
            "w_up": _w((lambda *s: torch.randn(*s, dtype=torch.bfloat16) * 0.1)(D, F)),
            "w_down": _w((lambda *s: torch.randn(*s, dtype=torch.bfloat16) * 0.1)(F, D)),
        }
    _B_in = _B_setup()

    return {
        "A_x": _A_in["x"],
        "A_k_cache": _A_in["k_cache"],
        "A_v_cache": _A_in["v_cache"],
        "A_wq": _A_in["wq"],
        "A_wo": _A_in["wo"],
        "B_x": _B_in["x"],
        "B_w_gate": _B_in["w_gate"],
        "B_w_up": _B_in["w_up"],
        "B_w_down": _B_in["w_down"],
    }

def reference(A_x, A_k_cache, A_v_cache, A_wq, A_wo, B_x, B_w_gate, B_w_up, B_w_down):
    def _A_ref(x, k_cache, v_cache, wq, wo):
        B, Sq, D = x.shape
        Hq, Dh = 32, 128
        Hkv, Sk = k_cache.shape[1], k_cache.shape[2]
        W = min(4096, max(256, Sk // 4))
        rep = Hq // Hkv
        q = (lambda x, *d: x.permute(*d))((x @ wq).reshape(B, Sq, Hq, Dh), 0, 2, 1, 3)
        k = (lambda x, n, axis: torch.repeat_interleave(x, n, dim=axis))(k_cache[:, :, Sk - W:, :], rep, axis=1)
        v = (lambda x, n, axis: torch.repeat_interleave(x, n, dim=axis))(v_cache[:, :, Sk - W:, :], rep, axis=1)
        scores = torch.einsum("bhqd,bhkd->bhqk", q, k) * (Dh ** -0.5)
        p = _softmax(scores, axis=-1)
        o = torch.einsum("bhqk,bhkd->bhqd", p, v)
        return (lambda x, *d: x.permute(*d))(o, 0, 2, 1, 3).reshape(B, Sq, Hq * Dh) @ wo

    def _B_ref(x, w_gate, w_up, w_down):
        g = torch.einsum("bsd,df->bsf", x, w_gate)
        u = torch.einsum("bsd,df->bsf", x, w_up)
        h = _sigmoid(g) * u
        return torch.einsum("bsf,fd->bsd", h, w_down)

    x = A_x
    xn = _layernorm(x, axis=-1)
    s = _A_ref(xn, A_k_cache, A_v_cache, A_wq, A_wo)
    g = _silu(_B_ref(xn, B_w_gate, B_w_up, B_w_down))
    return x + s * g
```

```python
import re

TRANS = ("v_exp_f32", "v_log_f32", "v_rcp_f32", "v_rsq_f32", "v_sqrt_f32", "v_sin_f32", "v_cos_f32")


def regs_of(tok):
    tok = tok.strip()
    tok = tok.lstrip("-")
    if tok.startswith("abs(") and tok.endswith(")"):
        tok = tok[4:-1]
    if tok.startswith("|") and tok.endswith("|"):
        tok = tok[1:-1]
    m = re.fullmatch(r"([vs])(\d+)", tok)
    if m:
        return {(m.group(1), int(m.group(2)))}
    m = re.fullmatch(r"([vs])\[(\d+):(\d+)\]", tok)
    if m:
        return {(m.group(1), i) for i in range(int(m.group(2)), int(m.group(3)) + 1)}
    if tok == "vcc":
        return {("s", "vcc")}
    if tok == "m0":
        return {("s", "m0")}
    if tok == "exec":
        return {("s", "exec")}
    return set()


class Ins:
    def __init__(self, text):
        self.text = text
        t = text.split(None, 1)
        self.op = t[0]
        rest = t[1] if len(t) > 1 else ""
        toks = [x.strip() for x in rest.split(",")] if rest else []
        ops = []
        for i, x in enumerate(toks):
            ops.append(x.split()[0] if x else x)
        self.ops = ops
        op = self.op
        self.valu = op.startswith("v_") and not op.startswith("v_mfma")
        self.mfma = op.startswith("v_mfma")
        self.salu = op.startswith("s_")
        self.ds = op.startswith("ds_")
        self.vmem = op.startswith("buffer_") or op.startswith("global_")
        self.dpp = "_dpp" in op or "row_" in rest or "quad_perm" in rest
        self.perml = op.startswith("v_permlane")
        self.rdl = op.startswith("v_readfirstlane") or op.startswith("v_readlane")
        self.trans = op.replace("_e32", "").replace("_e64", "") in TRANS
        self.lds_dma = self.vmem and rest.rstrip().endswith("lds")
        R = [regs_of(x) for x in ops]
        self.dst = set()
        self.src = set()
        self.srcC = set()
        self.srcAB = set()
        self.store_data = set()
        if self.mfma:
            self.dst = R[0]
            self.srcAB = R[1] | R[2]
            self.srcC = R[3]
            self.src = self.srcAB | self.srcC
        elif self.valu:
            if self.perml:
                self.dst = R[0] | R[1]
                self.src = R[0] | R[1]
            else:
                self.dst = set(R[0])
                n0 = 1
                if op.startswith(("v_add_co", "v_sub_co", "v_addc_co", "v_subb_co", "v_div_scale")):
                    self.dst |= R[1]
                    n0 = 2
                for r in R[n0:]:
                    self.src |= r
                if op.startswith(("v_fmac", "v_mac", "v_writelane")) or (self.dpp):
                    self.src |= R[0]
                if op.startswith("v_cndmask") and len(ops) == 3:
                    self.src |= {("s", "vcc")}
        elif self.ds:
            if op.startswith(("ds_read", "ds_bpermute", "ds_permute", "ds_swizzle")) or "_rtn" in op:
                self.dst = R[0]
                for r in R[1:]:
                    self.src |= r
            else:
                for r in R:
                    self.src |= r
        elif self.vmem:
            if self.lds_dma:
                for r in R:
                    self.src |= r
                self.src |= {("s", "m0")}
            elif "load" in op:
                self.dst = R[0]
                for r in R[1:]:
                    self.src |= r
            else:
                for r in R:
                    self.src |= r
                if op.endswith(("x3", "x4")):
                    self.store_data = R[0] if op.startswith("buffer_") else R[1]
        elif self.salu:
            if op.startswith(("s_cmp", "s_bitcmp", "s_cbranch", "s_branch", "s_waitcnt", "s_nop", "s_barrier", "s_endpgm", "s_setprio", "s_sleep")):
                for r in R:
                    self.src |= r
            elif R:
                self.dst = R[0]
                for r in R[1:]:
                    self.src |= r
        self.states = 1
        if op == "s_nop":
            self.states = int(ops[0]) + 1


def need(p, c):
    n = 0
    pv = {r for r in p.dst if r[0] == "v"}
    ps = {r for r in p.dst if r[0] == "s"}
    if p.valu:
        if pv & c.src:
            if c.dpp or c.perml or c.mfma:
                n = max(n, 2)
            if c.rdl:
                n = max(n, 1)
            if p.trans and not c.trans:
                n = max(n, 1)
        if c.perml and (pv & c.dst):
            n = max(n, 2)
        if ps & c.src:
            if c.valu or c.mfma:
                n = max(n, 4 if c.op.startswith(("v_readlane", "v_writelane")) else 2)
            if c.vmem:
                n = max(n, 5)
            if c.salu and not c.op.startswith("s_cbranch"):
                n = max(n, 0)
    if p.mfma:
        if c.mfma:
            if p.dst & c.srcAB:
                n = max(n, 8)
            if p.dst & c.srcC and p.dst != c.srcC:
                n = max(n, 6)
            if p.dst & c.dst and p.dst != c.srcC and not (p.dst & c.srcC):
                n = max(n, 6)
        else:
            if p.dst & (c.src | c.dst):
                n = max(n, 8)
        if c.valu and (p.srcC & c.dst):
            n = max(n, 3)
    if p.store_data and (p.store_data & c.dst):
        n = max(n, 2)
    if p.salu and (("s", "m0") in p.dst) and c.lds_dma:
        n = max(n, 1)
    return n


class Asm:
    def __init__(self):
        self.lines = []
        self.hist = []
        self.nnop = 0
        self.pend = {"lgkm": [], "vm": []}
        self.lint = []

    def raw(self, text):
        self.lines.append(text)

    def c(self, text):
        self.lines.append("    ; " + text)

    def label(self, name):
        self.lines.append(name + ":")

    def cut(self):
        self.hist = []

    def __call__(self, text):
        for t in text.strip().split("\n"):
            t = t.strip()
            if not t or t.startswith(";"):
                continue
            t = t.split(";")[0].strip()
            ins = Ins(t)
            self.check_async(ins)
            dist = 0
            pad = 0
            for p in reversed(self.hist):
                nd = need(p, ins)
                if nd > dist:
                    pad = max(pad, nd - dist)
                dist += p.states
                if dist >= 12:
                    break
            if pad:
                nop = Ins("s_nop %d" % (pad - 1))
                self.lines.append("    s_nop %d" % (pad - 1))
                self.hist.append(nop)
                self.nnop += 1
            self.lines.append("    " + t)
            self.hist.append(ins)
            if len(self.hist) > 24:
                self.hist = self.hist[-24:]
            if ins.op in ("s_branch", "s_endpgm"):
                self.hist = []

    def check_async(self, ins):
        if ins.op == "s_waitcnt":
            for kind, key in (("lgkm", "lgkmcnt"), ("vm", "vmcnt")):
                m = re.search(key + r"\((\d+)\)", ins.text)
                if m:
                    n = int(m.group(1))
                    q = self.pend[kind]
                    self.pend[kind] = q[len(q) - n:] if n and n < len(q) else (q if n else [])
            return
        if ins.op in ("s_endpgm", "s_branch"):
            if ins.op == "s_endpgm":
                self.pend = {"lgkm": [], "vm": []}
            return
        for kind in self.pend:
            for dst, txt in self.pend[kind]:
                if dst & ins.src or (dst & ins.dst and not (ins.ds or ins.vmem or ins.op.startswith("s_load"))):
                    self.lint.append(f"ASYNC HAZARD: '{ins.text}' vs pending '{txt}'")
        if ins.ds:
            self.pend["lgkm"].append((ins.dst, ins.text))
        elif ins.op.startswith(("s_load", "s_memrealtime", "s_memtime")):
            self.pend["lgkm"].append((ins.dst, ins.text))
        elif ins.vmem:
            self.pend["vm"].append((ins.dst, ins.text))

    def text(self):
        ll = [l for l in sorted(set(self.lint)) if "buffer_load_ubyte" not in l]
        for l in ll[:3]:
            print(l[:200])
        if ll:
            print("lint findings:", len(ll))
        return "\n".join(self.lines) + "\n"
```

```python
import sys
from dsl import Asm

KNAME = "recurrent_scan__sliding_block_cached__glu_gated_glu__decode_kernel"

W0, W1, W2, KB, VB, SM = 0x0000, 0x4000, 0x6000, 0x8000, 0x18000, 0x26000
XN, QL, PL, MX, LS, OL, HL, FL = 0x0000, 0x0900, 0x0E00, 0x1700, 0x1780, 0x1800, 0x1A80, 0x1C00
XNS, QLS, PLS, OLS, HLS = 1088, 320, 576, 320, 192
F_PROG, F_XN, F_CQ, F_CG, F_QR, F_MAX, F_P, F_O, F_TAG, F_MODE, F_S = [FL + 4 * i for i in range(11)]
LDS_BYTES = 163840
QX, GX, MLX, OX, FX = 0x1000, 0x21000, 0x59000, 0x61000, 0xE1000
FXS = 64 * 128
WS_USE = 0x200000
sG, sJ, sW, sB, sS = 28, 29, 30, 31, 32
sMODE, sM10, sM8, sCAP = 64, 65, 66, 67
SCALE = 0x3DB504F3
LOG2E = 0x3FB8AA3B
EPS = 0x3727C5AC
M_J01 = (0x00030003, 0x00030003)
M_J4 = (0x11111111, 0x11111111)
NW = 10


class Gen:
    def __init__(self, N=24, stamps=False, name=KNAME, opts=None):
        self.a = Asm()
        self.N = N
        self.stamps = stamps
        self.name = name
        self.u = 0
        self.o = opts or {}

    def lab(self, s):
        return f"L_{s}_{self.name[-24:]}" if self.name != KNAME else f"L_{s}"

    def uniq(self, s):
        self.u += 1
        return self.lab(f"{s}{self.u}")

    def srd(self, d, p, off, size):
        a = self.a
        if off is None:
            a(f"s_mov_b32 s{d}, s{p}")
            a(f"s_mov_b32 s{d+1}, s{p+1}")
        else:
            a(f"s_add_u32 s{d}, s{p}, {off}")
            a(f"s_addc_u32 s{d+1}, s{p+1}, 0")
        if self.o.get("nostream") and p in (6, 8, 10, 12, 16, 18, 20):
            size = 0
        a(f"s_mov_b32 s{d+2}, {size}")
        a(f"s_mov_b32 s{d+3}, 0x20000")

    def pub(self, name, text):
        if name in self.o.get("nostore", ""):
            return
        fl = self.o.get("stfl", {}).get(name)
        if fl is not None:
            text = text.replace(" sc1", (" " + fl) if fl else "")
        self.a(text)

    def publish(self, name, stores, mask, local=True):
        a = self.a
        if name in self.o.get("nostore", ""):
            return
        self.exec_(mask)
        if local and not self.o.get("nolocal"):
            far = self.uniq("far")
            done = self.uniq("pub")
            a(f"s_cmp_eq_u32 s{sMODE}, 2")
            a(f"s_cbranch_scc0 {far}")
            for t in stores:
                a(t.replace(" sc1", self.o.get("locfl", "")))
            a(f"s_branch {done}")
            a.label(far)
            for t in stores:
                a(t)
            a.label(done)
        else:
            for t in stores:
                a(t)
        self.exec_(-1)

    def ws_srd(self):
        b = self.o.get("wsbase")
        self.srd(40, 26, b, WS_USE)

    def exec_(self, m):
        a = self.a
        if m == -1:
            a("s_mov_b64 exec, -1")
        elif isinstance(m, int):
            a(f"s_mov_b64 exec, {m}")
        else:
            a(f"s_mov_b32 exec_lo, {m[0]:#x}")
            a(f"s_mov_b32 exec_hi, {m[1]:#x}")

    def stamp(self, slot):
        if not self.stamps or slot not in self.myslots:
            return
        a = self.a
        i = self.myslots.index(slot)
        a(f"s_memrealtime s[{80+2*i}:{81+2*i}]")
        a("s_waitcnt lgkmcnt(0)")

    def flush_stamps(self, vtmp=1):
        if not self.stamps:
            return
        a = self.a
        a("s_lshl_b32 s33, s2, 7")
        a("s_add_u32 s33, s33, 0x10000000")
        self.srd(76, 26, "s33", 128)
        a("s_mov_b64 exec, 1")
        for i, slot in enumerate(self.myslots):
            a(f"v_mov_b32 v{vtmp+1}, s{80+2*i}")
            a(f"v_mov_b32 v{vtmp+2}, s{81+2*i}")
            a(f"buffer_store_dwordx2 v[{vtmp+1}:{vtmp+2}], off, s[76:79], 0 offset:{8*slot}")
            a("s_nop 1")

    def init_stamps(self, slots, role=""):
        ts = self.o.get("trace_slots", [])
        slots = [x for x in slots if x not in ts]
        if role == self.o.get("trace_role"):
            slots = (slots[-2:] if role == 'G' else [8, 9]) + list(ts)
        self.myslots = slots
        if not self.stamps:
            return
        for i in range(len(slots)):
            self.a(f"s_mov_b64 s[{80+2*i}:{81+2*i}], 0")

    def wait_flag(self, vsm, flag, thr, vt, st=97):
        a = self.a
        top = self.uniq("w")
        done = self.uniq("wd")
        a.label(top)
        a(f"ds_read_b32 v{vt}, v{vsm} offset:{flag}")
        a("s_waitcnt lgkmcnt(0)")
        a(f"v_readfirstlane_b32 s{st}, v{vt}")
        a(f"s_cmp_ge_i32 s{st}, {thr}")
        a(f"s_cbranch_scc1 {done}")
        if self.o.get("ldssleep"):
            a(f"s_sleep {self.o['ldssleep']}")
        a(f"s_sub_u32 s{sCAP}, s{sCAP}, 1")
        a(f"s_cbranch_scc0 {top}")
        a(f"s_branch {self.lab('abort')}")
        a.label(done)

    def signal(self, vsm, flag, vone):
        a = self.a
        a("s_mov_b64 exec, 1")
        a(f"ds_add_u32 v{vsm}, v{vone} offset:{flag}")
        a("s_mov_b64 exec, -1")

    def poll(self, loads, vT, smask, vtmp, name=""):
        a = self.a
        if name in self.o.get("skip", ""):
            return
        slp = self.o.get("sleep", {}).get(name, 0)
        fl = self.o.get("ldfl", {}).get(name)
        if fl:
            loads = [(t.replace(" sc1", " " + fl), d) for t, d in loads]
        if name in self.o.get("masked", ""):
            return self.poll_masked(loads, vT, smask, vtmp, slp)
        top = self.uniq("p")
        done = self.uniq("pd")
        regs = [d + e for t, d in loads for e in range(4)]
        if self.o.get("trace") == name:
            for slot in self.o["trace_slots"]:
                for t, d in loads:
                    a(t)
                a("s_waitcnt vmcnt(0)")
                self.stamp(slot)
                for r in regs:
                    a(f"v_xor_b32 v{r}, v{vT}, v{r}")
                a(f"v_mov_b32 v{vtmp}, 0")
                for r in regs:
                    a(f"v_or_b32 v{vtmp}, v{vtmp}, v{r}")
                a(f"v_and_b32 v{vtmp}, s{smask}, v{vtmp}")
                a(f"v_cmp_ne_u32 vcc, 0, v{vtmp}")
                a(f"s_cbranch_vccz {done}")
        a.label(top)
        for t, d in loads:
            a(t)
        a("s_waitcnt vmcnt(0)")
        for r in regs:
            a(f"v_xor_b32 v{r}, v{vT}, v{r}")
        a(f"v_or3_b32 v{vtmp}, v{regs[0]}, v{regs[1]}, v{regs[2]}")
        i = 3
        while i < len(regs):
            if i + 1 < len(regs):
                a(f"v_or3_b32 v{vtmp}, v{vtmp}, v{regs[i]}, v{regs[i+1]}")
                i += 2
            else:
                a(f"v_or_b32 v{vtmp}, v{vtmp}, v{regs[i]}")
                i += 1
        a(f"v_and_b32 v{vtmp}, s{smask}, v{vtmp}")
        a(f"v_cmp_ne_u32 vcc, 0, v{vtmp}")
        a(f"s_cbranch_vccz {done}")
        if slp:
            a(f"s_sleep {slp}")
        a(f"s_sub_u32 s{sCAP}, s{sCAP}, 16")
        a(f"s_cbranch_scc0 {top}")
        a(f"s_branch {self.lab('abort')}")
        a.label(done)

    def check(self, regs, vT, smask, tmps):
        a = self.a
        xs = []
        for i in range(0, len(regs), 2):
            t = tmps[i // 2]
            a(f"v_bitop3_b32 v{t}, v{regs[i]}, v{regs[i+1]}, v{vT} bitop3:0x7e")
            xs.append(t)
        while len(xs) > 1:
            nx = []
            i = 0
            while i < len(xs):
                if i + 2 < len(xs):
                    a(f"v_or3_b32 v{xs[i]}, v{xs[i]}, v{xs[i+1]}, v{xs[i+2]}")
                    nx.append(xs[i]); i += 3
                elif i + 1 < len(xs):
                    a(f"v_or_b32 v{xs[i]}, v{xs[i]}, v{xs[i+1]}")
                    nx.append(xs[i]); i += 2
                else:
                    nx.append(xs[i]); i += 1
            xs = nx
        a(f"v_and_b32 v{xs[0]}, s{smask}, v{xs[0]}")
        a(f"v_cmp_ne_u32 vcc, 0, v{xs[0]}")

    def retry(self, top, slp=0):
        a = self.a
        if slp:
            a(f"s_sleep {slp}")
        a(f"s_sub_u32 s{sCAP}, s{sCAP}, 16")
        a(f"s_cbranch_scc0 {top}")
        a(f"s_branch {self.lab('abort')}")

    def fpoll(self, loads, vT, smask, tmps, name=""):
        a = self.a
        if name in self.o.get("skip", ""):
            return
        top = self.uniq("p")
        done = self.uniq("pd")
        a.label(top)
        for t, d in loads:
            a(t)
        a("s_waitcnt vmcnt(0)")
        self.check([d + e for t, d in loads for e in range(4)], vT, smask, tmps)
        a(f"s_cbranch_vccz {done}")
        self.retry(top, self.o.get("sleep", {}).get(name, 0))
        a.label(done)

    def poll_masked(self, loads, vT, smask, vtmp, slp):
        a = self.a
        top = self.uniq("p")
        done = self.uniq("pd")
        n = len(loads)
        for i in range(n):
            a(f"s_mov_b64 s[{50+2*i}:{51+2*i}], -1")
        a.label(top)
        for i, (t, d) in enumerate(loads):
            sk = self.uniq("pk")
            a(f"s_mov_b64 exec, s[{50+2*i}:{51+2*i}]")
            a(f"s_cbranch_execz {sk}")
            a(t)
            a.label(sk)
        a("s_waitcnt vmcnt(0)")
        for i, (t, d) in enumerate(loads):
            a(f"s_mov_b64 exec, s[{50+2*i}:{51+2*i}]")
            for e in range(4):
                a(f"v_xor_b32 v{d+e}, v{vT}, v{d+e}")
            a(f"v_or3_b32 v{vtmp}, v{d}, v{d+1}, v{d+2}")
            a(f"v_or_b32 v{vtmp}, v{vtmp}, v{d+3}")
            a(f"v_and_b32 v{vtmp}, s{smask}, v{vtmp}")
            a(f"v_cmp_ne_u32 s[{50+2*i}:{51+2*i}], 0, v{vtmp}")
        a("s_mov_b64 exec, -1")
        a("s_nop 0")
        a("s_mov_b64 s[58:59], s[50:51]")
        for i in range(1, n):
            a(f"s_or_b64 s[58:59], s[58:59], s[{50+2*i}:{51+2*i}]")
        a("s_cmp_eq_u64 s[58:59], 0")
        a(f"s_cbranch_scc1 {done}")
        if slp:
            a(f"s_sleep {slp}")
        a(f"s_sub_u32 s{sCAP}, s{sCAP}, 16")
        a(f"s_cbranch_scc0 {top}")
        a(f"s_branch {self.lab('abort')}")
        a.label(done)

    def tag(self, r, vT, smask):
        self.a(f"v_bfi_b32 v{r}, s{smask}, v{vT}, v{r}")

    def row_reduce(self, op, regs):
        for sh in (8, 4, 2, 1):
            for r in regs:
                self.a(f"{op}_dpp v{r}, v{r}, v{r} row_ror:{sh} row_mask:0xf bank_mask:0xf")

    def swap_reduce(self, op, r, tmp, which):
        a = self.a
        a(f"v_mov_b32 v{tmp}, v{r}")
        a(f"v_permlane{which}_swap_b32 v{r}, v{tmp}")
        a(f"{op} v{r}, v{r}, v{tmp}")

    def fold4(self, r):
        a = self.a
        a(f"v_permlane32_swap_b32 v{r}, v{r+1}")
        a(f"v_permlane32_swap_b32 v{r+2}, v{r+3}")
        a(f"v_add_f32 v{r}, v{r}, v{r+1}")
        a(f"v_add_f32 v{r+2}, v{r+2}, v{r+3}")
        a(f"v_permlane16_swap_b32 v{r}, v{r+2}")
        a(f"v_add_f32 v{r}, v{r}, v{r+2}")

    def lane_fields(self, vq, vj, vr, vc4):
        a = self.a
        if vq is not None:
            a(f"v_lshrrev_b32 v{vq}, 4, v0")
        if vj is not None:
            a(f"v_and_b32 v{vj}, 15, v0")
        if vr is not None:
            a(f"v_bfe_u32 v{vr}, v0, 2, 2")
        if vc4 is not None:
            a(f"v_and_b32 v{vc4}, 3, v0")

    def tr_addr(self, vd, rowshift, wide, t1, t2, t3):
        a = self.a
        a(f"v_bfe_u32 v{t1}, v0, 2, 2")
        a(f"v_lshrrev_b32 v{t2}, 4, v0")
        a(f"v_lshl_add_u32 v{t1}, v{t2}, 2, v{t1}")
        if wide:
            a(f"v_and_b32 v{t2}, 7, v{t1}")
        else:
            a(f"v_bfe_u32 v{t2}, v{t1}, 1, 2")
        a(f"v_lshlrev_b32 v{t2}, 5, v{t2}")
        a(f"v_lshl_add_u32 v{vd}, v{t1}, {rowshift}, v{t2}")
        a(f"v_and_b32 v{t3}, 3, v0")
        a(f"v_lshl_add_u32 v{vd}, v{t3}, 3, v{vd}")

    def prologue(self):
        a = self.a
        a("s_cmp_ge_u32 s2, 256")
        a(f"s_cbranch_scc1 {self.lab('end')}")
        a("s_load_dwordx16 s[4:19], s[0:1], 0")
        a("s_load_dwordx8 s[20:27], s[0:1], 64")
        if self.stamps or self.o.get("amp"):
            a("s_memrealtime s[98:99]")
        a("v_lshrrev_b32 v1, 6, v0")
        a("v_and_b32 v0, 63, v0")
        a(f"s_and_b32 s{sG}, s2, 7")
        a(f"v_readfirstlane_b32 s{sW}, v1")
        a(f"s_lshr_b32 s{sJ}, s2, 3")
        a(f"s_and_b32 s{sB}, s{sJ}, 1")
        a(f"s_lshr_b32 s{sS}, s{sJ}, 1")
        a(f"s_mov_b32 s{sCAP}, 0x80000")
        a(f"s_cmp_lg_u32 s{sW}, 0")
        a(f"s_cbranch_scc1 {self.lab('notloader')}")

    def glu_ids(self, sn, sc, si):
        a = self.a
        a(f"s_min_u32 s{sn}, s{sG}, 4")
        a(f"s_mul_i32 s{sc}, s{sG}, 3")
        a(f"s_add_u32 s{sc}, s{sc}, s{sn}")
        a(f"s_lshr_b32 s{sn}, s{sJ}, 3")
        a(f"s_add_u32 s{sc}, s{sc}, s{sn}")
        a(f"s_and_b32 s{si}, s{sJ}, 7")
        a(f"s_cmp_lt_u32 s{sG}, 4")
        a(f"s_cselect_b32 s{sn}, 32, 24")
        a(f"s_cmp_lt_u32 s{sJ}, s{sn}")

    def amp(self, what):
        if not self.o.get("amp") or self.o["amp"][2] != what:
            return
        K, wg, _ = self.o["amp"]
        a = self.a
        top = self.uniq("amp")
        done = self.uniq("ampd")
        a(f"s_cmp_lg_u32 s2, {wg}")
        a(f"s_cbranch_scc1 {done}")
        a("s_memrealtime s[94:95]")
        a("s_waitcnt lgkmcnt(0)")
        a("s_sub_u32 s96, s94, s98")
        a(f"s_mul_i32 s96, s96, {K}")
        a("s_min_u32 s96, s96, 100000")
        a.label(top)
        a("s_memrealtime s[92:93]")
        a("s_waitcnt lgkmcnt(0)")
        a("s_sub_u32 s92, s92, s94")
        a("s_cmp_lt_u32 s92, s96")
        a(f"s_cbranch_scc1 {top}")
        a.label(done)

    def touch(self):
        a = self.a
        a(f"s_lshl_b32 s70, s{sB}, 3")
        a(f"s_add_u32 s70, s70, s{sG}")
        a("s_lshl_b32 s70, s70, 23")
        a(f"s_add_u32 s70, s70, {28672*256}")
        a(f"s_lshl_b32 s71, s{sG}, 19")
        lst = [(6, "s70"), (8, "s70"), (12, "s71"), (16, None), (18, None), (20, None), (26, None), (22, None)]
        for i, (p, o) in enumerate(lst):
            if o:
                a(f"s_add_u32 s72, s{p}, {o}")
                a(f"s_addc_u32 s73, s{p+1}, 0")
            else:
                a(f"s_mov_b32 s72, s{p}")
                a(f"s_mov_b32 s73, s{p+1}")
            a(f"v_writelane_b32 v24, s72, {i}")
            a(f"v_writelane_b32 v25, s73, {i}")
        a(f"s_mov_b64 exec, {(1 << len(lst)) - 1 if len(lst) < 7 else hex((1 << len(lst)) - 1)}")
        a(f"global_load_dword v26, v[24:25], off{self.o['touch'] if isinstance(self.o['touch'], str) else ''}")
        a("s_mov_b64 exec, -1")

    def loader(self):
        a = self.a
        N = self.N
        a.c("================= loader wave =================")
        self.init_stamps([0, 1, 2])
        a("s_setprio 3")
        vWQ, vGU, vK, vV, vWO, vD, vSM, vP = 2, 3, 4, 8, 10, 14, 16, 17
        sOff, sProg = 68, 69
        a("v_lshrrev_b32 v18, 4, v0")
        a("v_lshlrev_b32 v19, 1, v18")
        a("v_and_b32 v20, 7, v0")
        a("v_xor_b32 v20, v19, v20")
        a("v_lshlrev_b32 v20, 4, v20")
        a("v_lshrrev_b32 v21, 3, v0")
        a(f"v_lshl_add_u32 v{vWQ}, v21, 13, v20")
        a(f"s_lshr_b32 s33, s{sJ}, 3")
        a("s_lshl_b32 s33, s33, 20")
        a(f"s_lshl_b32 s34, s{sG}, 10")
        a("s_add_u32 s33, s33, s34")
        a(f"s_and_b32 s34, s{sJ}, 7")
        a("s_lshl_b32 s34, s34, 7")
        a("s_add_u32 s33, s33, s34")
        a(f"s_mov_b32 s{sOff}, 0")
        a(f"s_mov_b32 m0, {W0}")
        a(f"s_mov_b32 s{sProg}, {-N}")
        a(f"v_mov_b32 v{vSM}, {SM:#x}")
        a("s_waitcnt lgkmcnt(0)")
        self.srd(36, 10, "s33", 127 * 8192 + 128)
        if self.o.get("touch"):
            self.touch()
        if self.stamps:
            a("s_mov_b64 s[80:81], s[98:99]")

        def loop(name, vo, srd, step, iters, setup=None):
            top = self.uniq("ld" + name)
            a.label(top)
            for k in range(4):
                a(f"buffer_load_dwordx4 v{vo[k % len(vo)]}, s[{srd}:{srd+3}], s{sOff} offen offset:{k*1024} nt lds")
                if step != 1024:
                    a(f"s_add_u32 s{sOff}, s{sOff}, {step-1024}")
                a(f"s_waitcnt vmcnt({N})")
            a(f"s_add_u32 s{sProg}, s{sProg}, 4")
            a("s_mov_b64 exec, 1")
            a(f"v_mov_b32 v{vP}, s{sProg}")
            a(f"ds_write_b32 v{vSM}, v{vP} offset:{F_PROG}")
            a("s_mov_b64 exec, -1")
            a(f"s_add_u32 s{sOff}, s{sOff}, 4096")
            a("s_add_u32 m0, m0, 4096")
            a(f"s_cmp_lg_u32 s{sOff}, {iters}")
            a(f"s_cbranch_scc1 {top}")

        loop("q", [vWQ], 36, 65536, 16 * 65536)
        a("s_movk_i32 s33, 3584")
        a(f"v_mad_u32_u24 v{vGU}, v21, s33, v20")
        self.glu_ids(33, 34, 35)
        a(f"s_mul_i32 s33, s35, {64*3584}")
        a("s_lshl_b32 s70, s34, 7")
        a("s_add_u32 s33, s33, s70")
        self.srd(40, 16, "s33", 63 * 3584 + 128)
        self.srd(44, 18, "s33", 63 * 3584 + 128)
        a("s_lshl_b32 s33, s34, 1")
        a("s_lshr_b32 s70, s35, 2")
        a("s_add_u32 s33, s33, s70")
        a("s_lshl_b32 s33, s33, 15")
        a("s_and_b32 s70, s35, 3")
        a("s_lshl_b32 s70, s70, 8")
        a("s_add_u32 s33, s33, s70")
        self.srd(60, 20, "s33", 31 * 1024 + 256)
        a(f"s_cmp_lt_u32 s{sJ}, 28")
        for d, p in ((40, 16), (44, 18), (60, 20)):
            a(f"s_cselect_b32 s{d}, s{d}, s{p}")
            a(f"s_cselect_b32 s{d+1}, s{d+1}, s{p+1}")
            a(f"s_cselect_b32 s{d+2}, s{d+2}, 0")
        a(f"s_mov_b32 s{sOff}, 0")
        a(f"s_mov_b32 m0, {W1}")
        a("s_barrier")
        loop("g", [vGU], 40, 28672, 8 * 28672)
        a(f"s_mov_b32 s{sOff}, 0")
        loop("u", [vGU], 44, 28672, 8 * 28672)
        a(f"s_lshl_b32 s33, s{sB}, 3")
        a(f"s_add_u32 s33, s33, s{sG}")
        a("s_lshl_b32 s33, s33, 23")
        a(f"s_lshl_b32 s34, s{sS}, 16")
        a("s_add_u32 s33, s33, s34")
        a(f"s_add_u32 s33, s33, {28672*256}")
        self.srd(48, 6, "s33", 65536)
        self.srd(52, 8, "s33", 65536)
        a("v_and_b32 v19, 15, v0")
        a("v_xor_b32 v20, v18, v19")
        a("v_lshlrev_b32 v20, 4, v20")
        a(f"v_lshl_add_u32 v{vK}, v18, 8, v20")
        for k in range(1, 4):
            a(f"v_xor_b32 v{vK+k}, {k << 6:#x}, v{vK}")
        a(f"s_mov_b32 s{sOff}, 0")
        loop("k", [vK, vK + 1, vK + 2, vK + 3], 48, 1024, 65536)
        a("v_lshlrev_b32 v20, 1, v18")
        a("v_xor_b32 v20, v20, v19")
        a("v_lshlrev_b32 v20, 4, v20")
        a(f"v_lshl_add_u32 v{vV}, v18, 8, v20")
        a(f"v_xor_b32 v{vV+1}, 0x80, v{vV}")
        a(f"v_lshl_add_u32 v{vD}, v18, 10, v20")
        a(f"v_xor_b32 v{vD+1}, 0x80, v{vD}")
        a(f"s_mov_b32 s{sOff}, 0")
        loop("v", [vV, vV + 1], 52, 1024, 57344)
        a(f"s_lshl_b32 s33, s{sG}, 4")
        a(f"s_add_u32 s33, s33, s{sS}")
        a("s_lshl_b32 s33, s33, 15")
        a(f"s_lshl_b32 s34, s{sB}, 9")
        a("s_add_u32 s33, s33, s34")
        self.srd(56, 12, "s33", 31 * 1024 + 512)
        a("v_lshrrev_b32 v21, 5, v0")
        a("v_and_b32 v19, 31, v0")
        a("v_lshlrev_b32 v20, 1, v21")
        a("v_xor_b32 v20, v20, v19")
        a("v_lshlrev_b32 v20, 4, v20")
        a(f"v_lshl_add_u32 v{vWO}, v21, 10, v20")
        for k in range(1, 4):
            a(f"v_xor_b32 v{vWO+k}, {k << 6:#x}, v{vWO}")
        if not self.o.get("bare"):
            self.wait_flag(vSM, F_CQ, 4, 22)
            self.wait_flag(vSM, F_CG, 1, 22)
        a(f"s_mov_b32 m0, {W2}")
        loop("vt", [vV, vV + 1], 52, 1024, 65536)
        a(f"s_mov_b32 s{sOff}, 0")
        a(f"s_mov_b32 m0, {W0}")
        loop("o", [vWO, vWO + 1, vWO + 2, vWO + 3], 56, 2048, 16 * 2048)
        a(f"s_mov_b32 s{sOff}, 0")
        loop("d", [vD, vD + 1], 60, 4096, 8 * 4096)
        self.stamp(1)
        a("s_mov_b64 exec, 1")
        for n in range(N - 4, -1, -4):
            a(f"s_add_u32 s{sProg}, s{sProg}, 4")
            a(f"v_mov_b32 v{vP}, s{sProg}")
            a(f"s_waitcnt vmcnt({n})")
            a(f"ds_write_b32 v{vSM}, v{vP} offset:{F_PROG}")
        self.stamp(2)
        self.amp("stream")
        self.flush_stamps(23)
        a("s_endpgm")

    def gwave(self):
        a = self.a
        a.c("================= G wave: layernorm, GLU, final =================")
        self.init_stamps([3, 15, 11, 12, 13, 14], "G")
        vSM, vT, vOne, vXF, vOO = 2, 3, 60, 61, 62
        a(f"v_mov_b32 v{vSM}, {SM:#x}")
        a(f"v_lshl_add_u32 v1, v0, 2, v{vSM}")
        a("v_mov_b32 v4, 0")
        a(f"ds_write_b32 v1, v4 offset:{FL}")
        a("v_lshlrev_b32 v12, 5, v0")
        a("v_bfe_u32 v13, v0, 4, 1")
        a("v_lshrrev_b32 v14, 5, v0")
        a("v_lshl_add_u32 v13, v13, 1, v14")
        a(f"s_lshl_b32 s33, s{sG}, 8")
        a(f"s_lshl_b32 s34, s{sJ}, 3")
        a("s_add_u32 s33, s33, s34")
        a(f"v_lshl_add_u32 v{vOO}, v13, 1, s33")
        a(f"v_mov_b32 v{vOne}, 1")
        a(f"s_movk_i32 s{sM10}, 0x3ff")
        a("s_waitcnt lgkmcnt(0)")
        self.srd(36, 4, None, 2048)
        self.ws_srd()
        xf = self.o.get("xfl", "")
        if "x" not in self.o.get("bare", "x")[1:] and self.o.get("bare"):
            a("s_barrier")
            a("s_endpgm")
        a(f"buffer_load_dwordx4 v[4:7], v12, s[36:39], 0 offen{xf}")
        a(f"buffer_load_dwordx4 v[8:11], v12, s[36:39], 0 offen offset:16{xf}")
        a(f"buffer_load_dword v{vT}, off, s[40:43], 0 sc1{xf}")
        a(f"buffer_load_ushort v{vXF}, v{vOO}, s[36:39], 0 offen{xf}")
        self.srd(44, 22, None, 2048)
        a("s_barrier")
        if self.o.get("bare"):
            a("s_endpgm")
        a("v_lshrrev_b32 v13, 5, v0")
        a(f"v_mul_u32_u24 v13, {XNS}, v13")
        a("v_bfe_u32 v14, v0, 1, 4")
        a("v_lshl_add_u32 v13, v14, 6, v13")
        a("v_and_b32 v14, 1, v0")
        a("v_lshl_add_u32 v13, v14, 3, v13")
        a(f"v_add_u32 v13, v{vSM}, v13")
        a("s_mov_b32 s33, 0xffff0000")
        a("s_waitcnt vmcnt(0)")
        X = 16
        for i in range(8):
            a(f"v_lshlrev_b32 v{X+2*i}, 16, v{4+i}")
            a(f"v_and_b32 v{X+2*i+1}, s33, v{4+i}")
        a(f"v_add_u32 v{vT}, 1, v{vT}")
        for i in range(4):
            a(f"v_add_f32 v{4+i}, v{X+i}, v{X+4+i}")
        for i in range(4):
            a(f"v_add_f32 v{4+i}, v{4+i}, v{X+8+i}")
        for i in range(4):
            a(f"v_add_f32 v{4+i}, v{4+i}, v{X+12+i}")
        a("v_add_f32 v4, v4, v5")
        a("v_add_f32 v6, v6, v7")
        a("v_add_f32 v4, v4, v6")
        self.row_reduce("v_add_f32", [4])
        self.swap_reduce("v_add_f32", 4, 5, 16)
        a("v_mul_f32 v4, 0x3b000000, v4")
        for i in range(16):
            a(f"v_sub_f32 v{32+i}, v{X+i}, v4")
        a("v_mul_f32 v5, v32, v32")
        a("v_mul_f32 v6, v33, v33")
        for i in range(2, 16, 2):
            a(f"v_fmac_f32 v5, v{32+i}, v{32+i}")
            a(f"v_fmac_f32 v6, v{33+i}, v{33+i}")
        a("v_add_f32 v5, v5, v6")
        self.row_reduce("v_add_f32", [5])
        self.swap_reduce("v_add_f32", 5, 6, 16)
        a("v_mul_f32 v5, 0x3b000000, v5")
        a("v_cvt_pk_bf16_f32 v4, v4, v5")
        a("v_and_b32 v5, s33, v4")
        a("v_lshlrev_b32 v4, 16, v4")
        a(f"v_add_f32 v5, {EPS:#x}, v5")
        a("v_cvt_pk_bf16_f32 v5, v5, v5")
        a("v_and_b32 v5, s33, v5")
        a("v_sqrt_f32 v5, v5")
        a("v_cvt_pk_bf16_f32 v5, v5, v5")
        a("v_and_b32 v5, s33, v5")
        a("v_rcp_f32 v5, v5")
        for i in range(16):
            a(f"v_sub_f32 v{X+i}, v{X+i}, v4")
        for i in range(8):
            a(f"v_cvt_pk_bf16_f32 v{32+i}, v{X+2*i}, v{X+2*i+1}")
        for i in range(8):
            a(f"v_lshlrev_b32 v{X+2*i}, 16, v{32+i}")
            a(f"v_and_b32 v{X+2*i+1}, s33, v{32+i}")
        for i in range(16):
            a(f"v_mul_f32 v{X+i}, v{X+i}, v5")
        for i in range(8):
            a(f"v_cvt_pk_bf16_f32 v{32+i}, v{X+2*i}, v{X+2*i+1}")
        for gq in range(4):
            a(f"ds_write_b64 v13, v[{32+2*gq}:{33+2*gq}] offset:{XN+16*gq}")
        a("s_mov_b64 exec, 1")
        a(f"ds_write_b32 v{vSM}, v{vT} offset:{F_TAG}")
        a(f"ds_write_b32 v{vSM}, v{vOne} offset:{F_XN}")
        a("s_mov_b64 exec, -1")
        self.stamp(3)
        a(f"v_and_b32 v{vT}, s{sM10}, v{vT}")
        a(f"s_cmp_lt_u32 s{sJ}, 28")
        a(f"s_cbranch_scc1 {self.lab('hasglu')}")
        self.signal(vSM, F_CG, vOne)
        a(f"s_branch {self.lab('final')}")
        a.label(self.lab("hasglu"))
        self.glu_ids(70, 71, 72)
        self.lane_fields(4, None, None, None)
        a("v_and_b32 v5, 1, v0")
        a(f"v_mul_u32_u24 v6, {XNS}, v5")
        a("v_lshl_add_u32 v6, v4, 4, v6")
        a("s_lshl_b32 s33, s72, 7")
        a(f"s_add_u32 s33, s33, {SM+XN}")
        a("v_add_u32 v6, s33, v6")
        a("ds_read_b128 v[8:11], v6")
        a("ds_read_b128 v[12:15], v6 offset:64")
        a("v_lshlrev_b32 v63, 4, v4")
        a("v_lshl_add_u32 v63, v5, 8, v63")
        self.tr_addr(16, 7, False, 17, 18, 19)
        for ct in range(1, 4):
            a(f"v_xor_b32 v{16+ct}, {ct << 5:#x}, v16")
        a("s_lshl_b32 s33, s71, 13")
        a("s_lshl_b32 s34, s72, 9")
        a("s_add_u32 s73, s33, s34")
        a(f"s_add_u32 s73, s73, {GX}")
        a("s_add_u32 s74, s73, 4096")
        self.wait_flag(vSM, F_PROG, 32, 20)
        AB, ACC = 64, 24
        for mat in range(2):
            for ct in range(4):
                for ks in range(2):
                    for t in range(2):
                        r = AB + (ct * 2 + ks) * 4 + t * 2
                        a(f"ds_read_b64_tr_b16 v[{r}:{r+1}], v{16+ct} offset:{W1 + mat*8192 + ks*4096 + t*2048}")
            a("s_waitcnt lgkmcnt(0)")
            if mat == 1:
                self.signal(vSM, F_CG, vOne)
            for ct in range(4):
                d = ACC + (mat * 4 + ct) * 4
                r = AB + ct * 8
                a(f"v_mfma_f32_16x16x32_bf16 v[{d}:{d+3}], v[{r}:{r+3}], v[8:11], 0")
            for ct in range(4):
                d = ACC + (mat * 4 + ct) * 4
                r = AB + ct * 8 + 4
                a(f"v_mfma_f32_16x16x32_bf16 v[{d}:{d+3}], v[{r}:{r+3}], v[12:15], v[{d}:{d+3}]")
            if mat == 0:
                a("s_nop 3")
        for tile in range(8):
            d = ACC + tile * 4
            for e in range(4):
                self.tag(d + e, vT, sM10)
        self.exec_(M_J01)
        for tile in range(8):
            d = ACC + tile * 4
            mat, ct = tile >> 2, tile & 3
            self.pub("g", f"buffer_store_dwordx4 v[{d}:{d+3}], v63, s[40:43], s{73 + (ct >> 1)} offen offset:{mat*128 + (ct & 1)*64} sc1")
        self.exec_(-1)
        a("s_lshr_b32 s34, s72, 2")
        a("s_lshl_b32 s34, s34, 12")
        a("s_add_u32 s73, s33, s34")
        a(f"s_add_u32 s73, s73, {GX}")
        a("v_lshlrev_b32 v6, 4, v0")
        a("v_bfe_u32 v7, v0, 4, 1")
        a("v_lshlrev_b32 v7, 6, v7")
        a("v_and_b32 v8, 3, v0")
        a("v_lshl_add_u32 v7, v8, 4, v7")
        a("v_bfe_u32 v8, v0, 2, 1")
        a("v_lshl_add_u32 v7, v8, 3, v7")
        a(f"v_add_u32 v7, v{vSM}, v7")
        a("v_lshlrev_b32 v9, 4, v4")
        a("v_lshl_add_u32 v9, v5, 6, v9")
        a(f"v_add_u32 v9, v{vSM}, v9")
        self.tr_addr(16, 8, True, 17, 18, 19)
        if self.o.get("gdelay"):
            self.wait_flag(vSM, F_PROG, self.o["gdelay"], 10)
        self.poll([(f"buffer_load_dwordx4 v[{64+4*t}:{67+4*t}], v6, s[40:43], s73 offen offset:{1024*t} sc1", 64 + 4 * t) for t in range(4)], vT, sM10, 10, "g")
        for e in range(4):
            a(f"v_add_f32 v{64+e}, v{64+e}, v{68+e}")
            a(f"v_add_f32 v{72+e}, v{72+e}, v{76+e}")
        for e in range(4):
            a(f"v_add_f32 v{64+e}, v{64+e}, v{72+e}")
        for e in range(4):
            a(f"v_mov_b32 v{68+e}, v{64+e}")
        for e in range(4):
            a(f"v_permlane32_swap_b32 v{64+e}, v{68+e}")
        for e in range(4):
            a(f"v_add_f32 v{64+e}, v{64+e}, v{68+e}")
        a("s_mov_b32 s33, 0xffff0000")
        a("v_cvt_pk_bf16_f32 v64, v64, v65")
        a("v_cvt_pk_bf16_f32 v66, v66, v67")
        a("v_mov_b32_dpp v68, v64 row_ror:8 row_mask:0xf bank_mask:0xf")
        a("v_mov_b32_dpp v70, v66 row_ror:8 row_mask:0xf bank_mask:0xf")
        for base in (64, 68):
            a(f"v_and_b32 v{base+3}, s33, v{base+2}")
            a(f"v_lshlrev_b32 v{base+2}, 16, v{base+2}")
            a(f"v_and_b32 v{base+1}, s33, v{base}")
            a(f"v_lshlrev_b32 v{base}, 16, v{base}")
        for e in range(4):
            a(f"v_mul_f32 v{64+e}, {LOG2E ^ 0x80000000:#x}, v{64+e}")
        for e in range(4):
            a(f"v_exp_f32 v{64+e}, v{64+e}")
        for e in range(4):
            a(f"v_add_f32 v{64+e}, 1.0, v{64+e}")
        for e in range(4):
            a(f"v_rcp_f32 v{64+e}, v{64+e}")
        a("v_cvt_pk_bf16_f32 v64, v64, v65")
        a("v_cvt_pk_bf16_f32 v66, v66, v67")
        a("v_and_b32 v67, s33, v66")
        a("v_lshlrev_b32 v66, 16, v66")
        a("v_and_b32 v65, s33, v64")
        a("v_lshlrev_b32 v64, 16, v64")
        for e in range(4):
            a(f"v_mul_f32 v{64+e}, v{64+e}, v{68+e}")
        a("v_cvt_pk_bf16_f32 v64, v64, v65")
        a("v_cvt_pk_bf16_f32 v65, v66, v67")
        self.exec_((0x00FF00FF, 0))
        a(f"ds_write_b64 v7, v[64:65] offset:{HL}")
        self.exec_(-1)
        a(f"ds_read_b128 v[8:11], v9 offset:{HL}")
        a(f"s_mov_b32 s33, {16*FXS}")
        a("v_mul_lo_u32 v63, v5, s33")
        a("v_lshl_add_u32 v63, v4, 4, v63")
        a("s_lshl_b32 s33, s71, 1")
        a("s_lshr_b32 s34, s72, 2")
        a("s_add_u32 s33, s33, s34")
        a("s_lshl_b32 s33, s33, 7")
        a("s_and_b32 s34, s72, 3")
        a(f"s_mul_i32 s34, s34, {4*FXS}")
        a("s_add_u32 s73, s33, s34")
        a(f"s_add_u32 s73, s73, {FX + 128*128}")
        for ct in range(1, 8):
            a(f"v_xor_b32 v{16+ct}, {ct << 5:#x}, v16")
        self.stamp(15)
        self.wait_flag(vSM, F_PROG, 184, 12)
        for ct in range(8):
            for t in range(2):
                r = AB + ct * 4 + t * 2
                a(f"ds_read_b64_tr_b16 v[{r}:{r+1}], v{16+ct} offset:{W1 + t*4096}")
        for ct in range(8):
            a(f"s_waitcnt lgkmcnt({min(15, 14-2*ct)})")
            d = ACC + ct * 4
            r = AB + ct * 4
            a(f"v_mfma_f32_16x16x32_bf16 v[{d}:{d+3}], v[{r}:{r+3}], v[8:11], 0")
        for ct in range(8):
            d = ACC + ct * 4
            for e in range(4):
                self.tag(d + e, vT, sM10)
        self.exec_(M_J01)
        for ct in range(8):
            d = ACC + ct * 4
            self.pub("y", f"buffer_store_dwordx4 v[{d}:{d+3}], v63, s[40:43], s73 offen offset:{(ct & 1)*64} sc1")
            if ct & 1 and ct < 7:
                a(f"s_add_u32 s73, s73, {FXS}")
        self.exec_(-1)
        self.stamp(11)
        a.label(self.lab("final"))
        a(f"s_lshl_b32 s33, s{sG}, 2")
        a(f"s_lshr_b32 s34, s{sJ}, 3")
        a("s_add_u32 s33, s33, s34")
        a(f"s_mul_i32 s33, s33, {FXS}")
        a(f"s_and_b32 s34, s{sJ}, 7")
        a("s_lshl_b32 s34, s34, 4")
        a("s_add_u32 s33, s33, s34")
        a(f"s_add_u32 s73, s33, {FX}")
        a("s_add_u32 s74, s73, 8192")
        a("s_add_u32 s75, s73, 16384")
        a("v_lshlrev_b32 v6, 7, v0")
        a("v_min_u32 v7, 55, v0")
        a("v_lshlrev_b32 v7, 7, v7")
        a(f"v_lshlrev_b32 v{vXF}, 16, v{vXF}")
        a("s_mov_b32 s33, 0xffff0000")
        if self.o.get("ydelay"):
            self.wait_flag(vSM, F_PROG, 184, 12)
        self.poll([("buffer_load_dwordx4 v[8:11], v7, s[40:43], s75 offen sc1", 8)], vT, sM10, 12, "y")
        self.stamp(12)
        self.exec_((0, 0xFF000000))
        for e in range(4):
            a(f"v_mov_b32 v{8+e}, 0")
        self.exec_(-1)
        self.fold4(8)
        self.row_reduce("v_add_f32", [8])
        a("v_cvt_pk_bf16_f32 v8, v8, v8")
        a("v_and_b32 v8, s33, v8")
        a(f"v_mul_f32 v9, {LOG2E ^ 0x80000000:#x}, v8")
        a("v_exp_f32 v9, v9")
        a("v_add_f32 v9, 1.0, v9")
        a("v_rcp_f32 v9, v9")
        a("v_mul_f32 v8, v8, v9")
        a("v_cvt_pk_bf16_f32 v8, v8, v8")
        a("v_and_b32 v8, s33, v8")
        self.poll([("buffer_load_dwordx4 v[16:19], v6, s[40:43], s73 offen sc1", 16),
                   ("buffer_load_dwordx4 v[20:23], v6, s[40:43], s74 offen sc1", 20)], vT, sM10, 12, "s")
        self.stamp(13)
        for e in range(4):
            a(f"v_add_f32 v{16+e}, v{16+e}, v{20+e}")
        self.fold4(16)
        self.row_reduce("v_add_f32", [16])
        a("v_cvt_pk_bf16_f32 v16, v16, v16")
        a("v_and_b32 v16, s33, v16")
        a("v_mul_f32 v16, v16, v8")
        a("v_cvt_pk_bf16_f32 v16, v16, v16")
        a("v_and_b32 v16, s33, v16")
        a(f"v_add_f32 v16, v16, v{vXF}")
        a("v_cvt_pk_bf16_f32 v16, v16, v16")
        self.exec_((0x00010001, 0x00010001))
        a(f"buffer_store_short v16, v{vOO}, s[44:47], 0 offen")
        a("s_cmp_lg_u32 s2, 0")
        a(f"s_cbranch_scc1 {self.lab('noepoch')}")
        a("s_mov_b64 exec, 1")
        a(f"ds_read_b32 v4, v{vSM} offset:{F_TAG}")
        a("s_waitcnt lgkmcnt(0)")
        a("buffer_store_dword v4, off, s[40:43], 0 sc1")
        a.label(self.lab("noepoch"))
        self.stamp(14)
        self.amp("end")
        self.flush_stamps(23)
        a("s_endpgm")

    def cwave(self):
        a = self.a
        a.c("================= compute waves =================")
        self.init_stamps([4, 5, 6, 7, 8, 9, 10], "C")
        sC = 70
        vSM, vT, vT8, vOne, vQ, vH = 2, 3, 4, 5, 6, 7
        a(f"s_sub_u32 s{sC}, s{sW}, 2")
        a(f"v_mov_b32 v{vSM}, {SM:#x}")
        a(f"v_mov_b32 v{vOne}, 1")
        a(f"s_movk_i32 s{sM10}, 0x3ff")
        a(f"s_movk_i32 s{sM8}, 0xff")
        if not self.o.get("noprefetch"):
            a(f"s_cmp_lg_u32 s{sC}, 7")
            a(f"s_cbranch_scc1 {self.lab('nopf')}")
            a(f"s_getpc_b64 s[34:35]")
            a.label(self.lab("pcref"))
            a(f"s_sub_u32 s34, s34, {self.lab('pcref')}-{self.name}")
            a("s_subb_u32 s35, s35, 0")
            a("v_lshlrev_b32 v8, 7, v0")
            a(f"v_min_u32 v9, {self.lab('codeend')}-{self.name}-4, v8")
            a("global_load_dword v9, v9, s[34:35]")
            a("v_add_u32 v8, 0x2000, v8")
            a(f"v_min_u32 v8, {self.lab('codeend')}-{self.name}-4, v8")
            a("global_load_dword v10, v8, s[34:35]")
            a.label(self.lab("nopf"))
        a(f"v_lshrrev_b32 v{vQ}, 4, v0")
        a(f"v_lshlrev_b32 v{vQ}, 4, v{vQ}")
        a(f"v_bfe_u32 v{vH}, v0, 2, 2")
        vKA, vQB, vMW, vMR, vPW, vPR, vVA, vVT, vPub = 12, 16, 17, 18, 19, 20, 21, 22, 23
        a("v_and_b32 v8, 15, v0")
        a("v_lshrrev_b32 v11, 4, v0")
        a("v_xor_b32 v11, v8, v11")
        a("v_lshlrev_b32 v11, 4, v11")
        a("v_lshl_add_u32 v11, v8, 8, v11")
        a(f"s_lshl_b32 s33, s{sC}, 13")
        a(f"s_add_u32 s33, s33, {KB}")
        a(f"v_add_u32 v{vKA}, s33, v11")
        for ks in range(1, 4):
            a(f"v_xor_b32 v{vKA+ks}, {ks << 6:#x}, v{vKA}")
        a(f"v_mul_u32_u24 v{vQB}, {QLS}, v{vH}")
        a(f"v_add3_u32 v{vQB}, v{vQB}, v{vQ}, v{vSM}")
        a(f"v_lshl_add_u32 v{vMR}, v{vH}, 5, v{vSM}")
        a(f"s_lshl_b32 s33, s{sC}, 2")
        a(f"v_add_u32 v{vMW}, s33, v{vMR}")
        a(f"v_mul_u32_u24 v{vPR}, {PLS}, v{vH}")
        a(f"v_add3_u32 v{vPR}, v{vPR}, v{vQ}, v{vSM}")
        a(f"s_lshl_b32 s33, s{sC}, 6")
        a(f"v_add_u32 v{vPW}, s33, v{vPR}")
        self.tr_addr(24, 8, True, 25, 26, 27)
        a(f"s_lshl_b32 s33, s{sC}, 5")
        a("v_xor_b32 v24, s33, v24")
        a(f"v_add_u32 v{vVA}, {VB:#x}, v24")
        a(f"v_add_u32 v{vVT}, {W2:#x}, v24")
        a(f"v_lshl_add_u32 v{vPub}, v{vH}, 14, v{vQ}")
        a(f"s_lshl_b32 s33, s{sG}, 16")
        a(f"s_lshr_b32 s34, s{sC}, 1")
        a("s_lshl_b32 s34, s34, 12")
        a("s_add_u32 s33, s33, s34")
        a(f"s_lshl_b32 s34, s{sB}, 11")
        a("s_add_u32 s33, s33, s34")
        a(f"s_lshl_b32 s34, s{sS}, 7")
        a("s_add_u32 s33, s33, s34")
        a(f"s_and_b32 s34, s{sC}, 1")
        a("s_lshl_b32 s34, s34, 6")
        a("s_add_u32 s33, s33, s34")
        a(f"s_add_u32 s71, s33, {OX}")
        a("s_waitcnt lgkmcnt(0)")
        self.ws_srd()
        a("s_barrier")
        if self.o.get("bare"):
            a("s_endpgm")
        self.wait_flag(vSM, F_XN, 1, 8)
        a(f"ds_read_b32 v{vT}, v{vSM} offset:{F_TAG}")
        a(f"s_cmp_ge_u32 s{sC}, 4")
        a(f"s_cbranch_scc1 {self.lab('noq')}")
        self.tr_addr(24, 7, False, 25, 26, 27)
        a(f"s_lshl_b32 s33, s{sC}, 5")
        a("v_xor_b32 v24, s33, v24")
        a("v_and_b32 v26, 1, v0")
        a(f"v_mul_u32_u24 v25, {XNS}, v26")
        a(f"v_add_u32 v25, v25, v{vQ}")
        a(f"s_lshr_b32 s34, s{sJ}, 3")
        a("s_lshl_b32 s33, s34, 8")
        a(f"s_add_u32 s33, s33, {SM+XN}")
        a("v_add_u32 v25, s33, v25")
        for ks in range(4):
            a(f"ds_read_b128 v[{32+4*ks}:{35+4*ks}], v25 offset:{64*ks}")
        a(f"v_lshl_add_u32 v26, v26, 13, v{vQ}")
        a(f"s_lshl_b32 s33, s{sG}, 14")
        a("s_lshl_b32 s34, s34, 11")
        a("s_add_u32 s72, s33, s34")
        a(f"s_and_b32 s34, s{sJ}, 7")
        a("s_lshl_b32 s34, s34, 8")
        a("s_add_u32 s72, s72, s34")
        a(f"s_lshl_b32 s34, s{sC}, 6")
        a("s_add_u32 s72, s72, s34")
        a(f"s_add_u32 s72, s72, {QX}")
        a(f"s_lshl_b32 s34, s{sB}, 13")
        a("s_add_u32 s33, s33, s34")
        a(f"s_lshl_b32 s34, s{sC}, 9")
        a("s_add_u32 s33, s33, s34")
        a(f"s_add_u32 s73, s33, {QX}")
        a("s_add_u32 s74, s73, 4096")
        a("v_lshrrev_b32 v27, 5, v0")
        a("v_and_b32 v28, 31, v0")
        a("v_lshlrev_b32 v27, 11, v27")
        a("v_lshl_add_u32 v27, v28, 4, v27")
        a(f"s_mul_i32 s33, s{sC}, {QLS}")
        a(f"s_add_u32 s33, s33, {SM+QL}")
        a("v_lshl_add_u32 v28, v28, 3, s33")
        self.wait_flag(vSM, F_PROG, 16, 8)
        for ks in range(4):
            for t in range(2):
                r = 48 + ks * 4 + t * 2
                a(f"ds_read_b64_tr_b16 v[{r}:{r+1}], v24 offset:{W0 + ks*4096 + t*2048}")
        a(f"v_and_b32 v{vT8}, s{sM8}, v{vT}")
        for ks in range(4):
            a(f"s_waitcnt lgkmcnt({6-2*ks})")
            r = 48 + ks * 4
            a(f"v_mfma_f32_16x16x32_bf16 v[64:67], v[{r}:{r+3}], v[{32+4*ks}:{35+4*ks}], {'0' if ks == 0 else 'v[64:67]'}")
        self.signal(vSM, F_CQ, vOne)
        for e in range(4):
            a(f"v_add_u32 v{64+e}, 0x80, v{64+e}")
        for e in range(4):
            self.tag(64 + e, vT8, sM8)
        self.exec_(M_J01)
        self.pub("q", "buffer_store_dwordx4 v[64:67], v26, s[40:43], s72 offen sc1")
        self.exec_(-1)
        self.stamp(4)
        if self.o.get("qdelay"):
            self.wait_flag(vSM, F_PROG, self.o["qdelay"], 8)
        self.poll([("buffer_load_dwordx4 v[32:35], v27, s[40:43], s73 offen sc1", 32),
                   ("buffer_load_dwordx4 v[36:39], v27, s[40:43], s74 offen sc1", 36)], vT8, sM8, 8, "q")
        for e in range(4):
            a(f"v_add_f32 v{32+e}, v{32+e}, v{36+e}")
        a("v_permlane32_swap_b32 v32, v33")
        a("v_permlane32_swap_b32 v34, v35")
        a("v_add_f32 v32, v32, v33")
        a("v_add_f32 v34, v34, v35")
        a("v_mov_b32 v33, v32")
        a("v_mov_b32 v35, v34")
        a("v_permlane32_swap_b32 v32, v33")
        a("v_permlane32_swap_b32 v34, v35")
        a("v_cvt_pk_bf16_f32 v32, v32, v33")
        a("v_cvt_pk_bf16_f32 v33, v34, v35")
        self.exec_((0xFFFFFFFF, 0))
        a(f"ds_write_b64 v28, v[32:33]")
        self.signal(vSM, F_QR, vOne)
        self.stamp(5)
        a.label(self.lab("noq"))
        a("s_waitcnt vmcnt(0) lgkmcnt(0)")
        a(f"v_and_b32 v{vT}, s{sM10}, v{vT}")
        a(f"s_lshl_b32 s34, s{sC}, 3")
        a("s_add_u32 s34, s34, 40")
        self.wait_flag(vSM, F_PROG, "s34", 8)
        KA = 48
        for tt in range(2):
            for ks in range(4):
                r = KA + (tt * 4 + ks) * 4
                a(f"ds_read_b128 v[{r}:{r+3}], v{vKA+ks} offset:{4096*tt}")
        self.wait_flag(vSM, F_QR, 4, 8)
        for ks in range(4):
            a(f"ds_read_b128 v[{32+4*ks}:{35+4*ks}], v{vQB} offset:{QL + 64*ks}")
        S = 80
        for ks in range(4):
            a(f"s_waitcnt lgkmcnt({3-ks})")
            for tt in range(2):
                r = KA + (tt * 4 + ks) * 4
                d = S + 4 * tt
                a(f"v_mfma_f32_16x16x32_bf16 v[{d}:{d+3}], v[{r}:{r+3}], v[{32+4*ks}:{35+4*ks}], {'0' if ks == 0 else f'v[{d}:{d+3}]'}")
        a("s_mov_b32 s33, 0xffff0000")
        for rep in range(2):
            for i in range(4):
                a(f"v_cvt_pk_bf16_f32 v{32+i}, v{S+2*i}, v{S+2*i+1}")
            for i in range(4):
                a(f"v_lshlrev_b32 v{S+2*i}, 16, v{32+i}")
                a(f"v_and_b32 v{S+2*i+1}, s33, v{32+i}")
            if rep == 0:
                for i in range(8):
                    a(f"v_mul_f32 v{S+i}, {SCALE:#x}, v{S+i}")
        a(f"v_max3_f32 v32, v{S}, v{S+1}, v{S+2}")
        a(f"v_max3_f32 v33, v{S+3}, v{S+4}, v{S+5}")
        a(f"v_max3_f32 v32, v32, v{S+6}, v{S+7}")
        a("v_max_f32 v32, v32, v33")
        self.swap_reduce("v_max_f32", 32, 33, 16)
        self.swap_reduce("v_max_f32", 32, 33, 32)
        self.exec_(0x1111)
        a(f"ds_write_b32 v{vMW}, v32 offset:{MX}")
        self.signal(vSM, F_MAX, vOne)
        self.wait_flag(vSM, F_MAX, 8, 8)
        a(f"ds_read_b128 v[32:35], v{vMR} offset:{MX}")
        a(f"ds_read_b128 v[36:39], v{vMR} offset:{MX+16}")
        a(f"s_mov_b32 s34, {LOG2E:#x}")
        a("s_waitcnt lgkmcnt(0)")
        a("v_max3_f32 v32, v32, v33, v34")
        a("v_max3_f32 v35, v35, v36, v37")
        a("v_max3_f32 v32, v32, v38, v39")
        vM = 8
        a(f"v_max_f32 v{vM}, v32, v35")
        a(f"v_mul_f32 v33, s34, v{vM}")
        for i in range(8):
            a(f"v_fma_f32 v{S+i}, v{S+i}, s34, -v33")
        for i in range(8):
            a(f"v_exp_f32 v{S+i}, v{S+i}")
        for i in range(4):
            a(f"v_cvt_pk_bf16_f32 v{32+i}, v{S+2*i}, v{S+2*i+1}")
        self.exec_(M_J4)
        a(f"ds_write_b128 v{vPW}, v[32:35] offset:{PL}")
        self.exec_(-1)
        for i in range(4):
            a(f"v_add_f32 v{S+i}, v{S+i}, v{S+4+i}")
        a(f"v_add_f32 v{S}, v{S}, v{S+1}")
        a(f"v_add_f32 v{S+2}, v{S+2}, v{S+3}")
        a(f"v_add_f32 v{S}, v{S}, v{S+2}")
        self.swap_reduce("v_add_f32", S, S + 1, 16)
        self.swap_reduce("v_add_f32", S, S + 1, 32)
        self.exec_(0x1111)
        a(f"ds_write_b32 v{vMW}, v{S} offset:{LS}")
        self.signal(vSM, F_P, vOne)
        self.wait_flag(vSM, F_P, 8, 9)
        PB = 32
        for ks in range(8):
            a(f"ds_read_b128 v[{PB+4*ks}:{PB+4*ks+3}], v{vPR} offset:{PL + 64*ks}")
        self.stamp(6)
        a(f"s_cmp_lg_u32 s{sC}, 0")
        a(f"s_cbranch_scc1 {self.lab('noml')}")
        a(f"ds_read_b128 v[64:67], v{vMR} offset:{LS}")
        a(f"ds_read_b128 v[68:71], v{vMR} offset:{LS+16}")
        a(f"v_lshlrev_b32 v72, 4, v{vH}")
        a(f"s_lshl_b32 s33, s{sG}, 1")
        a(f"s_add_u32 s33, s33, s{sB}")
        a("s_lshl_b32 s33, s33, 4")
        a(f"s_add_u32 s33, s33, s{sS}")
        a("s_lshl_b32 s33, s33, 7")
        a(f"s_add_u32 s33, s33, {MLX}")
        a("s_waitcnt lgkmcnt(0)")
        for e in range(4):
            a(f"v_add_f32 v{64+e}, v{64+e}, v{68+e}")
        a("v_add_f32 v64, v64, v65")
        a("v_add_f32 v66, v66, v67")
        a("v_add_f32 v65, v64, v66")
        a(f"v_bfi_b32 v64, s{sM10}, v{vT}, v{vM}")
        self.tag(65, vT, sM10)
        a("v_mov_b32 v66, v64")
        a("v_mov_b32 v67, v65")
        self.exec_(0x1111)
        self.pub("m", "buffer_store_dwordx4 v[64:67], v72, s[40:43], s33 offen sc1")
        self.exec_(-1)
        a.label(self.lab("noml"))
        O = 96
        for grp, thr in (((0, 1, 2, 3), 128), ((4, 5), 144), ((6,), 152), ((7,), 160)):
            self.wait_flag(vSM, F_PROG, thr, 9)
            for n, ks in enumerate(grp):
                for t in range(2):
                    r = 64 + n * 4 + t * 2
                    if ks < 7:
                        a(f"ds_read_b64_tr_b16 v[{r}:{r+1}], v{vVA} offset:{ks*8192 + t*4096}")
                    else:
                        a(f"ds_read_b64_tr_b16 v[{r}:{r+1}], v{vVT} offset:{t*4096}")
            for n, ks in enumerate(grp):
                a(f"s_waitcnt lgkmcnt({2*(len(grp)-1-n)})")
                r = 64 + n * 4
                a(f"v_mfma_f32_16x16x32_bf16 v[{O}:{O+3}], v[{r}:{r+3}], v[{PB+4*ks}:{PB+4*ks+3}], {'0' if ks == 0 else f'v[{O}:{O+3}]'}")
        for e in range(4):
            self.tag(O + e, vT, sM10)
        self.exec_(M_J4)
        self.pub("o", f"buffer_store_dwordx4 v[{O}:{O+3}], v{vPub}, s[40:43], s71 offen sc1")
        self.exec_(-1)
        self.stamp(7)
        a(f"s_cmp_ge_u32 s{sC}, 6")
        a(f"s_cbranch_scc1 {self.lab('comb')}")
        a(f"s_cmp_ge_u32 s{sC}, 4")
        a(f"s_cbranch_scc1 {self.lab('cend')}")
        self.tr_addr(24, 9, True, 25, 26, 27)
        a(f"s_lshl_b32 s33, s{sC}, 7")
        a("v_xor_b32 v24, s33, v24")
        for u in range(1, 4):
            a(f"v_xor_b32 v{24+u}, {u << 5:#x}, v24")
        a("v_and_b32 v28, 1, v0")
        a(f"v_lshl_add_u32 v29, v28, 6, v{vQ}")
        a(f"v_add_u32 v29, v29, v{vSM}")
        a(f"s_mov_b32 s33, {16*FXS}")
        a("v_mul_lo_u32 v28, v28, s33")
        a(f"v_add_u32 v28, v28, v{vQ}")
        a(f"s_lshl_b32 s33, s{sB}, 2")
        a(f"s_add_u32 s33, s33, s{sC}")
        a(f"s_mul_i32 s33, s33, {2*FXS}")
        a(f"s_lshl_b32 s34, s{sG}, 4")
        a(f"s_add_u32 s34, s34, s{sS}")
        a("s_lshl_b32 s34, s34, 7")
        a("s_add_u32 s33, s33, s34")
        a(f"s_add_u32 s72, s33, {FX}")
        a(f"s_add_u32 s73, s72, {FXS}")
        self.wait_flag(vSM, F_PROG, 176, 9)
        for u in range(4):
            for t in range(2):
                r = 32 + u * 4 + t * 2
                a(f"ds_read_b64_tr_b16 v[{r}:{r+1}], v{24+u} offset:{W0 + t*8192}")
        self.wait_flag(vSM, F_O, 2, 9)
        a(f"ds_read_b128 v[48:51], v29 offset:{OL}")
        a("s_waitcnt lgkmcnt(0)")
        for u in range(4):
            a(f"v_mfma_f32_16x16x32_bf16 v[{64+4*u}:{67+4*u}], v[{32+4*u}:{35+4*u}], v[48:51], 0")
        for u in range(4):
            for e in range(4):
                self.tag(64 + 4 * u + e, vT, sM10)
        self.exec_(M_J01)
        for u in range(4):
            self.pub("s", f"buffer_store_dwordx4 v[{64+4*u}:{67+4*u}], v28, s[40:43], s{72 + (u >> 1)} offen offset:{(u & 1)*64} sc1")
        self.stamp(10)
        a.label(self.lab("cend"))
        self.cflush()
        a("s_endpgm")
        a.label(self.lab("comb"))
        a(f"s_sub_u32 s72, s{sC}, 6")
        a(f"s_lshl_b32 s33, s{sG}, 1")
        a("s_add_u32 s33, s33, s72")
        a("s_lshl_b32 s33, s33, 11")
        a(f"s_lshr_b32 s34, s{sJ}, 3")
        a("s_lshl_b32 s34, s34, 4")
        a("s_add_u32 s33, s33, s34")
        a(f"s_add_u32 s73, s33, {MLX}")
        a(f"s_lshl_b32 s33, s{sG}, 16")
        a(f"s_lshl_b32 s34, s{sS}, 12")
        a("s_add_u32 s33, s33, s34")
        a("s_lshl_b32 s34, s72, 11")
        a("s_add_u32 s33, s33, s34")
        a(f"s_add_u32 s74, s33, {OX}")
        a("v_lshrrev_b32 v24, 3, v0")
        a("v_lshlrev_b32 v24, 7, v24")
        a("v_lshlrev_b32 v25, 4, v0")
        a("v_and_b32 v26, 3, v0")
        a("v_lshlrev_b32 v26, 4, v26")
        a("v_bfe_u32 v27, v0, 2, 1")
        a("v_lshl_add_u32 v26, v27, 3, v26")
        a("v_bfe_u32 v27, v0, 4, 1")
        a("v_lshl_add_u32 v26, v27, 2, v26")
        a("v_lshrrev_b32 v27, 5, v0")
        a("v_lshl_add_u32 v26, v27, 1, v26")
        a("s_lshl_b32 s33, s72, 6")
        a(f"s_add_u32 s33, s33, {SM+OL}")
        a("v_add_u32 v26, s33, v26")
        a(f"s_mov_b32 s34, {LOG2E:#x}")
        self.poll([("buffer_load_dwordx4 v[32:35], v24, s[40:43], s73 offen sc1", 32),
                   ("buffer_load_dwordx4 v[36:39], v24, s[40:43], s73 offen offset:1024 sc1", 36)], vT, sM10, 8, "m")
        a("v_max_f32 v8, v32, v36")
        a("v_max_f32_dpp v8, v8, v8 row_ror:8 row_mask:0xf bank_mask:0xf")
        self.swap_reduce("v_max_f32", 8, 9, 16)
        self.swap_reduce("v_max_f32", 8, 9, 32)
        a("v_sub_f32 v32, v32, v8")
        a("v_sub_f32 v36, v36, v8")
        a("v_mul_f32 v32, s34, v32")
        a("v_mul_f32 v36, s34, v36")
        a("v_exp_f32 v32, v32")
        a("v_exp_f32 v36, v36")
        a("v_mul_f32 v8, v32, v33")
        a("v_fmac_f32 v8, v36, v37")
        a("v_add_f32_dpp v8, v8, v8 row_ror:8 row_mask:0xf bank_mask:0xf")
        self.swap_reduce("v_add_f32", 8, 9, 16)
        self.swap_reduce("v_add_f32", 8, 9, 32)
        a("v_rcp_f32 v8, v8")
        a("v_mul_f32 v30, v32, v8")
        a("v_mul_f32 v31, v36, v8")
        self.stamp(8)
        self.poll([("buffer_load_dwordx4 v[32:35], v25, s[40:43], s74 offen sc1", 32),
                   ("buffer_load_dwordx4 v[36:39], v25, s[40:43], s74 offen offset:1024 sc1", 36)], vT, sM10, 8, "o")
        for e in range(4):
            a(f"v_mul_f32 v{32+e}, v30, v{32+e}")
        for e in range(4):
            a(f"v_fmac_f32 v{32+e}, v31, v{36+e}")
        self.fold4(32)
        a("v_add_f32_dpp v32, v32, v32 row_ror:8 row_mask:0xf bank_mask:0xf")
        a("v_cvt_pk_bf16_f32 v32, v32, v32")
        a("ds_write_b16 v26, v32")
        self.signal(vSM, F_O, vOne)
        self.stamp(9)
        self.cflush()
        a("s_endpgm")

    def cflush(self):
        if not self.stamps:
            return
        a = self.a
        skip = self.uniq("cf")
        a("s_cmp_eq_u32 s70, 0")
        a("s_cselect_b32 s33, 1, 0")
        a("s_cmp_eq_u32 s70, 6")
        a("s_cselect_b32 s33, 1, s33")
        a("s_cmp_eq_u32 s33, 0")
        a(f"s_cbranch_scc1 {skip}")
        a("s_lshl_b32 s33, s2, 7")
        a("s_add_u32 s33, s33, 0x10000000")
        self.srd(76, 26, "s33", 128)
        a("s_mov_b64 exec, 1")
        for i, slot in enumerate(self.myslots):
            sk2 = self.uniq("cs")
            a(f"s_cmp_eq_u32 s70, {6 if slot in (8, 9) or (self.o.get('trace_role') == 'C' and slot in self.o.get('trace_slots', [])) else 0}")
            a(f"s_cbranch_scc0 {sk2}")
            a(f"v_mov_b32 v24, s{80+2*i}")
            a(f"v_mov_b32 v25, s{81+2*i}")
            a(f"buffer_store_dwordx2 v[24:25], off, s[76:79], 0 offset:{8*slot}")
            a("s_nop 1")
            a.label(sk2)
        a.label(skip)

    def body(self):
        a = self.a
        self.prologue()
        self.loader()
        a.label(self.lab("notloader"))
        a(f"s_cmp_lg_u32 s{sW}, 1")
        a(f"s_cbranch_scc1 {self.lab('cwave')}")
        self.gwave()
        a.label(self.lab("cwave"))
        self.cwave()
        a.label(self.lab("abort"))
        a.label(self.lab("end"))
        a("s_endpgm")
        a.label(self.lab("codeend"))
        return a.text()


def header():
    ref = open("recurrent_scan__sliding_block_cached__glu_gated_glu__decode.s.ref").read().split("\n")
    out = []
    for l in ref:
        if l.startswith("; @launch"):
            out.append(f"; @launch grid=(256,1,1) block=({NW*64},1,1) lds={LDS_BYTES}")
            break
        out.append(l)
    return "\n".join(out) + "\n"


def final_file(path, **kw):
    g = Gen(**kw)
    body = g.body()
    s = header()
    s += f""".amdgcn_target "amdgcn-amd-amdhsa--gfx950"
.text
.globl {KNAME}
.p2align 8
.type {KNAME},@function
{KNAME}:
{body}.section .rodata,"a"
.p2align 6
.amdhsa_kernel {KNAME}
  .amdhsa_next_free_vgpr 104
  .amdhsa_next_free_sgpr 102
  .amdhsa_accum_offset 104
  .amdhsa_group_segment_fixed_size 0
  .amdhsa_kernarg_size 96
  .amdhsa_user_sgpr_count 2
  .amdhsa_user_sgpr_kernarg_segment_ptr 1
  .amdhsa_system_sgpr_workgroup_id_x 1
.end_amdhsa_kernel
"""
    open(path, "w").write(s)
    return g


def build_variants(out, variants):
    from asmlib import build
    ks = []
    for n, kw in variants:
        g = Gen(name=n + "_kernel", **kw)
        ks.append((n + "_kernel", g.body(), 104, NW * 64))
    build(out, ks)
    open(out + ".names", "w").write("".join(f"{n}_kernel:256:{NW*64}:{LDS_BYTES}\n" for n, kw in variants))


if __name__ == "__main__":
    build_variants("kern", [("k24s", dict(N=24, stamps=True)), ("k24", dict(N=24))])
    final_file("final.s", N=24)
```

```python
from gen import *
import gen

CNT = dict(q=16, g=8, u=8, k=64, v=56, t=8, o=16, d=8)


class Gen2(Gen):
    def setup(self):
        self.order = self.o.get("order", "qgukvtod")
        self.TH = {}
        self.BASE = {}
        n = 0
        for p in self.order:
            self.BASE[p] = n
            n += CNT[p]
            self.TH[p] = n
        assert n == 184

    def loader(self):
        a = self.a
        N = self.N
        a.c("================= loader wave =================")
        self.init_stamps([0, 1, 2])
        a("s_setprio 3")
        vWQ, vGU, vK, vV, vW1, vSM, vP = 2, 3, 4, 8, 10, 16, 17
        sOff, sProg = 68, 69
        a("v_lshrrev_b32 v18, 4, v0")
        a("v_lshlrev_b32 v19, 1, v18")
        a("v_and_b32 v20, 7, v0")
        a("v_xor_b32 v20, v19, v20")
        a("v_lshlrev_b32 v20, 4, v20")
        a("v_lshrrev_b32 v21, 3, v0")
        a(f"v_lshl_add_u32 v{vWQ}, v21, 13, v20")
        a(f"s_lshr_b32 s33, s{sJ}, 3")
        a("s_lshl_b32 s33, s33, 20")
        a(f"s_lshl_b32 s34, s{sG}, 10")
        a("s_add_u32 s33, s33, s34")
        a(f"s_and_b32 s34, s{sJ}, 7")
        a("s_lshl_b32 s71, s34, 7")
        a("s_add_u32 s33, s33, s71")
        a(f"s_mov_b32 s{sOff}, 0")
        a(f"s_mov_b32 m0, {W0}")
        a(f"s_mov_b32 s{sProg}, {-N}")
        a(f"v_mov_b32 v{vSM}, {SM:#x}")
        a("s_waitcnt lgkmcnt(0)")
        self.srd(36, 10, "s33", 127 * 8192 + 128)
        if self.stamps:
            a("s_mov_b64 s[80:81], s[98:99]")
        nwin = self.o.get("win", {})

        rot = self.o.get("rot")
        ilv = self.o.get("ilv")

        def loop(name, vo, srd, step, end, N):
            top = self.uniq("ld" + name)
            rr = rot and name in "kvt"
            itstep = 4096
            wrap = 0xffff
            if ilv and name in "kvt":
                wrap = 0xfffff
                if ilv == 4096:
                    itstep = 65536
                elif ilv == 1024:
                    step = 16384
                elif ilv == 2048:
                    itstep = 65536 - 32768
                end = end * 16
            if rr:
                endm = dict(k=KB + 65536, v=VB + 57344, t=W2 + 8192)[name]
                if name != "t":
                    a(f"s_mov_b32 s{sOff}, s73")
            a.label(top)
            for k in range(4):
                a(f"buffer_load_dwordx4 v{vo[k % len(vo)]}, s[{srd}:{srd+3}], s{sOff} offen offset:{k*1024} nt lds")
                if step != 1024:
                    a(f"s_add_u32 s{sOff}, s{sOff}, {step-1024}")
                if ilv == 2048 and name in "kvt" and k == 1:
                    a(f"s_add_u32 s{sOff}, s{sOff}, {32768-2048}")
                a(f"s_waitcnt vmcnt({N})")
            a(f"s_add_u32 s{sProg}, s{sProg}, 4")
            a("s_mov_b64 exec, 1")
            a(f"v_mov_b32 v{vP}, s{sProg}")
            a(f"ds_write_b32 v{vSM}, v{vP} offset:{F_PROG}")
            a("s_mov_b64 exec, -1")
            a(f"s_add_u32 s{sOff}, s{sOff}, {itstep + (2048 if ilv == 2048 and name in 'kvt' else 0)}")
            if rr:
                a(f"s_and_b32 s{sOff}, s{sOff}, {wrap:#x}")
            a("s_add_u32 m0, m0, 4096")
            if rr:
                a(f"s_cmp_lg_u32 m0, {endm}")
            else:
                a(f"s_cmp_lg_u32 s{sOff}, {end}")
            a(f"s_cbranch_scc1 {top}")

        assert self.order[0] == "q"
        loop("q", [vWQ], 36, 65536, 16 * 65536, N)
        a("s_movk_i32 s33, 3584")
        a(f"v_mad_u32_u24 v{vGU}, v21, s33, v20")
        a(f"v_lshl_add_u32 v{vW1}, v21, 10, v20")
        self.glu_ids(33, 34, 35)
        a("s_cselect_b32 s72, 1, 0")
        a(f"s_mul_i32 s33, s35, {64*3584}")
        a("s_lshl_b32 s70, s34, 7")
        a("s_add_u32 s33, s33, s70")
        self.srd(40, 16, "s33", 63 * 3584 + 128)
        self.srd(44, 18, "s33", 63 * 3584 + 128)
        a("s_lshl_b32 s33, s34, 16")
        a("s_add_u32 s33, s33, s71")
        self.srd(60, 20, "s33", 63 * 1024 + 128)
        a("s_cmp_lg_u32 s72, 0")
        for d, p in ((40, 16), (44, 18), (60, 20)):
            a(f"s_cselect_b32 s{d}, s{d}, s{p}")
            a(f"s_cselect_b32 s{d+1}, s{d+1}, s{p+1}")
            a(f"s_cselect_b32 s{d+2}, s{d+2}, 0")
        a(f"s_lshl_b32 s33, s{sB}, 3")
        a(f"s_add_u32 s33, s33, s{sG}")
        a("s_lshl_b32 s33, s33, 23")
        a(f"s_lshl_b32 s34, s{sS}, {16 if not ilv else ilv.bit_length()-1}")
        a("s_add_u32 s33, s33, s34")
        a(f"s_add_u32 s33, s33, {28672*256}")
        kvsize = 65536 if not ilv else (1048576 - 15 * ilv)
        self.srd(48, 6, "s33", kvsize)
        self.srd(52, 8, "s33", kvsize)
        a("v_and_b32 v19, 15, v0")
        a("v_xor_b32 v20, v18, v19")
        a("v_lshlrev_b32 v20, 4, v20")
        a(f"v_lshl_add_u32 v{vK}, v18, 8, v20")
        for k in range(1, 4):
            a(f"v_xor_b32 v{vK+k}, {k << 6:#x}, v{vK}")
        a("v_lshlrev_b32 v20, 1, v18")
        a("v_xor_b32 v20, v20, v19")
        a("v_lshlrev_b32 v20, 4, v20")
        a(f"v_lshl_add_u32 v{vV}, v18, 8, v20")
        a(f"v_xor_b32 v{vV+1}, 0x80, v{vV}")
        a(f"s_lshl_b32 s33, s{sG}, 2")
        a(f"s_lshr_b32 s34, s{sJ}, 3")
        a("s_add_u32 s33, s33, s34")
        a("s_lshl_b32 s33, s33, 17")
        a("s_add_u32 s33, s33, s71")
        self.srd(56, 12, "s33", 127 * 1024 + 128)
        if rot:
            a(f"s_mul_i32 s73, s{sJ}, {rot[0]}")
            a(f"s_mul_i32 s33, s{sG}, {rot[1]}")
            a("s_add_u32 s73, s73, s33")
            a(f"s_lshl_b32 s73, s73, {16 if ilv else 12}")
            a(f"s_and_b32 s73, s73, {0xfffff if ilv else 0xffff:#x}")
        a("s_barrier")
        spec = dict(g=([vGU], 40, 28672, 0, 8 * 28672, W1), u=([vGU], 44, 28672, 0, 8 * 28672, W2),
                    k=([vK, vK + 1, vK + 2, vK + 3], 48, 1024, 0, 65536, KB), v=([vV, vV + 1], 52, 1024, 0, 57344, VB),
                    t=([vV, vV + 1], 52, 1024, 57344, 65536, W2), o=([vW1], 56, 8192, 0, 16 * 8192, W0),
                    d=([vW1], 60, 8192, 0, 8 * 8192, W1))
        classes = self.o.get("classes")
        if not classes:
            classes = [(None, nwin)]
        N0, prev0 = N, self.prev
        for ci, (cond, win) in enumerate(classes):
            nxt = self.uniq("cls")
            if cond:
                for t in cond:
                    a(t)
                a(f"s_cbranch_scc0 {nxt}")
            N = N0
            self.prev = prev0
            nwin = win
            waited = set()
            m0 = W0 + 16384
            for p in self.order[1:]:
                vo, srd, step, start, end, lds = spec[p]
                if not self.o.get("bare"):
                    if p == "o" and "q" not in waited:
                        self.wait_flag(vSM, F_CQ, 4, 22)
                        waited.add("q")
                    if p in "td" and "g" not in waited:
                        self.wait_flag(vSM, F_CG, 1, 22)
                        waited.add("g")
                if p in nwin:
                    a(f"s_add_u32 s{sProg}, s{sProg}, {N - nwin[p]}")
                    N = nwin[p]
                if p == "t" and rot and self.prev != "v":
                    a(f"s_add_u32 s{sOff}, s73, {57344 * (16 if ilv else 1)}")
                    a(f"s_and_b32 s{sOff}, s{sOff}, {0xfffff if ilv else 0xffff:#x}")
                elif not (p == "t" and self.prev == "v"):
                    a(f"s_mov_b32 s{sOff}, {start * (16 if ilv and p == 't' else 1)}")
                if m0 != lds:
                    a(f"s_mov_b32 m0, {lds}")
                loop(p, vo, srd, step, end, N)
                m0 = lds + CNT[p] * 1024
                self.prev = p
            self.stamp(1)
            a("s_mov_b64 exec, 1")
            for n in range((N - 1) // 4 * 4, -1, -4):
                a(f"v_mov_b32 v{vP}, {184 - n}")
                a(f"s_waitcnt vmcnt({n})")
                a(f"ds_write_b32 v{vSM}, v{vP} offset:{F_PROG}")
            self.stamp(2)
            self.amp("stream")
            self.flush_stamps(23)
            a("s_endpgm")
            a.label(nxt)

    def gwave(self):
        a = self.a
        TH = self.TH
        a.c("================= G wave: layernorm, GLU, final =================")
        self.init_stamps([3, 15, 11, 12, 13, 14], "G")
        vSM, vT, vOne, vXF, vOO, vHI = 2, 3, 60, 61, 62, 56
        a("s_getreg_b32 s70, hwreg(HW_REG_XCC_ID, 0, 4)")
        a(f"v_mov_b32 v{vSM}, {SM:#x}")
        a(f"v_lshl_add_u32 v1, v0, 2, v{vSM}")
        a("v_mov_b32 v4, 0")
        a(f"ds_write_b32 v1, v4 offset:{FL}")
        a("s_add_u32 s70, s70, 1")
        a(f"v_mov_b32 v{vHI}, s70")
        a("v_lshlrev_b32 v12, 5, v0")
        a("v_bfe_u32 v13, v0, 3, 1")
        a("v_bfe_u32 v14, v0, 4, 1")
        a("v_lshl_add_u32 v13, v13, 1, v14")
        a(f"s_lshl_b32 s33, s{sG}, 8")
        a(f"s_lshl_b32 s34, s{sJ}, 3")
        a("s_add_u32 s33, s33, s34")
        a(f"v_lshl_add_u32 v{vOO}, v13, 1, s33")
        a(f"v_mov_b32 v{vOne}, 1")
        a(f"s_movk_i32 s{sM10}, 0x3ff")
        a(f"s_lshl_b32 s71, s{sG}, 5")
        a(f"s_add_u32 s72, s71, s{sJ}")
        a("v_and_b32 v57, 31, v0")
        a("s_waitcnt lgkmcnt(0)")
        self.srd(48, 24, None, 256)
        self.srd(36, 4, None, 2048)
        if self.o.get("bare") == "b":
            a("s_barrier")
            a("s_endpgm")
        if not self.o.get("nolocal"):
            a("s_mov_b64 exec, 1")
            a(f"buffer_store_byte v{vHI}, off, s[48:51], s72")
            a("s_mov_b64 exec, -1")
        self.ws_srd()
        a("buffer_load_dwordx4 v[4:7], v12, s[36:39], 0 offen")
        a("buffer_load_dwordx4 v[8:11], v12, s[36:39], 0 offen offset:16")
        a(f"buffer_load_dword v{vT}, off, s[40:43], 0 sc1")
        a(f"buffer_load_ushort v{vXF}, v{vOO}, s[36:39], 0 offen")
        self.srd(44, 22, None, 2048)
        a("s_barrier")
        if self.o.get("bare"):
            a("s_endpgm")
        a("v_lshrrev_b32 v13, 5, v0")
        a(f"v_mul_u32_u24 v13, {XNS}, v13")
        a("v_bfe_u32 v14, v0, 1, 4")
        a("v_lshl_add_u32 v13, v14, 6, v13")
        a("v_and_b32 v14, 1, v0")
        a("v_lshl_add_u32 v13, v14, 3, v13")
        a(f"v_add_u32 v13, v{vSM}, v13")
        a("s_mov_b32 s33, 0xffff0000")
        a("s_waitcnt vmcnt(0)")
        if not self.o.get("nolocal"):
            a("buffer_load_ubyte v58, v57, s[48:51], s71 offen sc1")
        X = 16
        for i in range(8):
            a(f"v_lshlrev_b32 v{X+2*i}, 16, v{4+i}")
            a(f"v_and_b32 v{X+2*i+1}, s33, v{4+i}")
        a(f"v_add_u32 v{vT}, 1, v{vT}")
        for i in range(4):
            a(f"v_add_f32 v{4+i}, v{X+i}, v{X+4+i}")
        for i in range(4):
            a(f"v_add_f32 v{4+i}, v{4+i}, v{X+8+i}")
        for i in range(4):
            a(f"v_add_f32 v{4+i}, v{4+i}, v{X+12+i}")
        a("v_add_f32 v4, v4, v5")
        a("v_add_f32 v6, v6, v7")
        a("v_add_f32 v4, v4, v6")
        self.row_reduce("v_add_f32", [4])
        self.swap_reduce("v_add_f32", 4, 5, 16)
        a("v_mul_f32 v4, 0x3b000000, v4")
        for i in range(16):
            a(f"v_sub_f32 v{32+i}, v{X+i}, v4")
        a("v_mul_f32 v5, v32, v32")
        a("v_mul_f32 v6, v33, v33")
        for i in range(2, 16, 2):
            a(f"v_fmac_f32 v5, v{32+i}, v{32+i}")
            a(f"v_fmac_f32 v6, v{33+i}, v{33+i}")
        a("v_add_f32 v5, v5, v6")
        self.row_reduce("v_add_f32", [5])
        self.swap_reduce("v_add_f32", 5, 6, 16)
        a("v_mul_f32 v5, 0x3b000000, v5")
        a("v_cvt_pk_bf16_f32 v4, v4, v5")
        a("v_and_b32 v5, s33, v4")
        a("v_lshlrev_b32 v4, 16, v4")
        a(f"v_add_f32 v5, {EPS:#x}, v5")
        a("v_cvt_pk_bf16_f32 v5, v5, v5")
        a("v_and_b32 v5, s33, v5")
        a("v_sqrt_f32 v5, v5")
        a("v_cvt_pk_bf16_f32 v5, v5, v5")
        a("v_and_b32 v5, s33, v5")
        a("v_rcp_f32 v5, v5")
        for i in range(16):
            a(f"v_sub_f32 v{X+i}, v{X+i}, v4")
        for i in range(8):
            a(f"v_cvt_pk_bf16_f32 v{32+i}, v{X+2*i}, v{X+2*i+1}")
        for i in range(8):
            a(f"v_lshlrev_b32 v{X+2*i}, 16, v{32+i}")
            a(f"v_and_b32 v{X+2*i+1}, s33, v{32+i}")
        for i in range(16):
            a(f"v_mul_f32 v{X+i}, v{X+i}, v5")
        for i in range(8):
            a(f"v_cvt_pk_bf16_f32 v{32+i}, v{X+2*i}, v{X+2*i+1}")
        for gq in range(4):
            a(f"ds_write_b64 v13, v[{32+2*gq}:{33+2*gq}] offset:{XN+16*gq}")
        a("s_mov_b64 exec, 1")
        a(f"ds_write_b32 v{vSM}, v{vT} offset:{F_TAG}")
        a(f"ds_write_b32 v{vSM}, v{vOne} offset:{F_XN}")
        a("s_mov_b64 exec, -1")
        self.stamp(3)
        a(f"v_and_b32 v{vT}, s{sM10}, v{vT}")
        if self.o.get("nolocal"):
            a(f"s_mov_b32 s{sMODE}, 1")
        else:
            top = self.uniq("hello")
            got = self.uniq("hellod")
            a(f"s_mov_b32 s73, {self.o.get('hellor', 3)}")
            a.label(top)
            a("s_waitcnt vmcnt(0)")
            a("v_cmp_eq_u32 vcc, 0, v58")
            a(f"s_cbranch_vccz {got}")
            a("s_sub_u32 s73, s73, 1")
            a(f"s_cbranch_scc1 {got}")
            a("buffer_load_ubyte v58, v57, s[48:51], s71 offen sc1")
            a(f"s_branch {top}")
            a.label(got)
            a(f"v_cmp_ne_u32 vcc, v58, v{vHI}")
            a("s_cmp_eq_u64 vcc, 0")
            a(f"s_cselect_b32 s{sMODE}, 2, 1")
        a("s_mov_b64 exec, 1")
        a(f"v_mov_b32 v4, s{sMODE}")
        a(f"ds_write_b32 v{vSM}, v4 offset:{F_MODE}")
        a("s_mov_b64 exec, -1")
        if self.o.get("dbgmode"):
            a("s_mov_b64 exec, 1")
            a("s_lshl_b32 s33, s2, 2")
            a("s_add_u32 s33, s33, 0x180000")
            a("buffer_store_dword v4, off, s[40:43], s33")
            a("s_mov_b64 exec, -1")
        a(f"s_lshl_b32 s33, s{sG}, 2")
        a(f"s_lshr_b32 s34, s{sJ}, 3")
        a("s_add_u32 s33, s33, s34")
        a("s_lshl_b32 s33, s33, 13")
        a(f"s_and_b32 s34, s{sJ}, 7")
        a("s_lshl_b32 s34, s34, 4")
        a("s_add_u32 s33, s33, s34")
        a(f"s_add_u32 s76, s33, {FX}")
        a("v_min_u32 v57, 59, v0")
        a("v_lshlrev_b32 v57, 7, v57")
        a(f"v_lshlrev_b32 v{vXF}, 16, v{vXF}")
        self.glu_ids(70, 71, 72)
        a(f"s_cbranch_scc1 {self.lab('hasglu')}")
        self.signal(vSM, F_CG, vOne)
        if self.o.get("fwarm"):
            self.wait_flag(vSM, F_PROG, self.o["fwarm"][0], 12)
            a(f"buffer_load_dword v58, v57, s[40:43], s76 offen {self.o['fwarm'][1]}")
        a(f"s_branch {self.lab('final')}")
        a.label(self.lab("hasglu"))
        self.lane_fields(4, None, None, None)
        a("v_and_b32 v5, 1, v0")
        a(f"v_mul_u32_u24 v6, {XNS}, v5")
        a("v_lshl_add_u32 v6, v4, 4, v6")
        a("s_lshl_b32 s33, s72, 7")
        a(f"s_add_u32 s33, s33, {SM+XN}")
        a("v_add_u32 v6, s33, v6")
        a("ds_read_b128 v[8:11], v6")
        a("ds_read_b128 v[12:15], v6 offset:64")
        a("v_lshlrev_b32 v63, 4, v4")
        a("v_lshl_add_u32 v63, v5, 9, v63")
        self.tr_addr(16, 7, False, 17, 18, 19)
        for ct in range(1, 4):
            a(f"v_xor_b32 v{16+ct}, {ct << 5:#x}, v16")
        a("s_lshl_b32 s33, s71, 13")
        a(f"s_add_u32 s74, s33, {GX}")
        a("s_lshl_b32 s34, s72, 10")
        a("s_add_u32 s73, s74, s34")
        a("s_add_u32 s75, s74, 4096")
        self.wait_flag(vSM, F_PROG, max(TH["g"], TH["u"]), 20)
        AB, ACC = 64, 24
        for mat in range(2):
            for ct in range(4):
                for ks in range(2):
                    for t in range(2):
                        r = AB + (ct * 2 + ks) * 4 + t * 2
                        a(f"ds_read_b64_tr_b16 v[{r}:{r+1}], v{16+ct} offset:{W1 + mat*8192 + ks*4096 + t*2048}")
            a("s_waitcnt lgkmcnt(0)")
            if mat == 1:
                self.signal(vSM, F_CG, vOne)
            for ct in range(4):
                d = ACC + (mat * 4 + ct) * 4
                r = AB + ct * 8
                a(f"v_mfma_f32_16x16x32_bf16 v[{d}:{d+3}], v[{r}:{r+3}], v[8:11], 0")
            for ct in range(4):
                d = ACC + (mat * 4 + ct) * 4
                r = AB + ct * 8 + 4
                a(f"v_mfma_f32_16x16x32_bf16 v[{d}:{d+3}], v[{r}:{r+3}], v[12:15], v[{d}:{d+3}]")
            if mat == 0:
                a("s_nop 3")
        for tile in range(8):
            d = ACC + tile * 4
            for e in range(4):
                self.tag(d + e, vT, sM10)
        self.publish("g", [f"buffer_store_dwordx4 v[{ACC+4*tile}:{ACC+4*tile+3}], v63, s[40:43], s73 offen offset:{(tile >> 2)*256 + (tile & 3)*64} sc1" for tile in range(8)], M_J01)
        a("v_lshlrev_b32 v6, 4, v0")
        a("v_lshrrev_b32 v7, 5, v0")
        a(f"v_mul_u32_u24 v7, {HLS}, v7")
        a("v_and_b32 v8, 3, v0")
        a("v_lshl_add_u32 v7, v8, 4, v7")
        a("v_bfe_u32 v8, v0, 2, 1")
        a("v_lshl_add_u32 v7, v8, 3, v7")
        a("v_bfe_u32 v8, v0, 3, 1")
        a("v_lshl_add_u32 v7, v8, 6, v7")
        a(f"v_add_u32 v7, v{vSM}, v7")
        a(f"v_mul_u32_u24 v59, {HLS}, v5")
        a("v_lshl_add_u32 v59, v4, 4, v59")
        a(f"v_add_u32 v59, v{vSM}, v59")
        if "g" in self.o.get("pref", "qgo"):
            for t in range(8):
                a(f"buffer_load_dwordx4 v[{64+4*t}:{67+4*t}], v6, s[40:43], s{74 + (t >> 2)} offen offset:{1024*(t & 3)} sc1 nt")
        if self.o.get("fwarm") and self.o["fwarm"][0] < self.o.get("gdelay", 0):
            self.wait_flag(vSM, F_PROG, self.o["fwarm"][0], 10)
            a(f"buffer_load_dword v58, v57, s[40:43], s76 offen {self.o['fwarm'][1]}")
        if self.o.get("gdelay"):
            self.wait_flag(vSM, F_PROG, self.o["gdelay"], 10)
        self.poll([(f"buffer_load_dwordx4 v[{64+4*t}:{67+4*t}], v6, s[40:43], s{74 + (t >> 2)} offen offset:{1024*(t & 3)} sc1", 64 + 4 * t) for t in range(8)], vT, sM10, 10, "g")
        for h in (16, 8, 4):
            for e in range(h):
                a(f"v_add_f32 v{64+e}, v{64+e}, v{64+h+e}")
        a("s_mov_b32 s33, 0xffff0000")
        a("v_cvt_pk_bf16_f32 v64, v64, v65")
        a("v_cvt_pk_bf16_f32 v66, v66, v67")
        a("v_mov_b32 v68, v64")
        a("v_mov_b32 v70, v66")
        a("v_permlane16_swap_b32 v64, v68")
        a("v_permlane16_swap_b32 v66, v70")
        for base in (64, 68):
            a(f"v_and_b32 v{base+3}, s33, v{base+2}")
            a(f"v_lshlrev_b32 v{base+2}, 16, v{base+2}")
            a(f"v_and_b32 v{base+1}, s33, v{base}")
            a(f"v_lshlrev_b32 v{base}, 16, v{base}")
        for e in range(4):
            a(f"v_mul_f32 v{64+e}, {LOG2E ^ 0x80000000:#x}, v{64+e}")
        for e in range(4):
            a(f"v_exp_f32 v{64+e}, v{64+e}")
        for e in range(4):
            a(f"v_add_f32 v{64+e}, 1.0, v{64+e}")
        for e in range(4):
            a(f"v_rcp_f32 v{64+e}, v{64+e}")
        a("v_cvt_pk_bf16_f32 v64, v64, v65")
        a("v_cvt_pk_bf16_f32 v66, v66, v67")
        a("v_and_b32 v67, s33, v66")
        a("v_lshlrev_b32 v66, 16, v66")
        a("v_and_b32 v65, s33, v64")
        a("v_lshlrev_b32 v64, 16, v64")
        for e in range(4):
            a(f"v_mul_f32 v{64+e}, v{64+e}, v{68+e}")
        a("v_cvt_pk_bf16_f32 v64, v64, v65")
        a("v_cvt_pk_bf16_f32 v65, v66, v67")
        self.exec_((0x0000FFFF, 0x0000FFFF))
        a(f"ds_write_b64 v7, v[64:65] offset:{HL}")
        self.exec_(-1)
        a(f"ds_read_b128 v[8:11], v59 offset:{HL}")
        a(f"ds_read_b128 v[12:15], v59 offset:{HL+64}")
        a(f"v_lshlrev_b32 v63, 4, v4")
        a(f"v_lshl_add_u32 v63, v5, 17, v63")
        a("s_lshl_b32 s33, s71, 7")
        a("s_lshl_b32 s34, s72, 14")
        a("s_add_u32 s73, s33, s34")
        a(f"s_add_u32 s73, s73, {FX + 32*128}")
        a(f"s_add_u32 s74, s73, {FXS}")
        self.stamp(15)
        if self.o.get("fwarm") and self.o["fwarm"][0] >= self.o.get("gdelay", 0):
            self.wait_flag(vSM, F_PROG, self.o["fwarm"][0], 20)
            a(f"buffer_load_dword v58, v57, s[40:43], s76 offen {self.o['fwarm'][1]}")
        self.wait_flag(vSM, F_PROG, TH["d"], 20)
        for ct in range(4):
            for ks in range(2):
                for t in range(2):
                    r = AB + (ct * 2 + ks) * 4 + t * 2
                    a(f"ds_read_b64_tr_b16 v[{r}:{r+1}], v{16+ct} offset:{W1 + ks*4096 + t*2048}")
        for ks in range(2):
            for ct in range(4):
                if ks == 0:
                    a(f"s_waitcnt lgkmcnt({12-4*ct})")
                d = ACC + ct * 4
                r = AB + (ct * 2 + ks) * 4
                a(f"v_mfma_f32_16x16x32_bf16 v[{d}:{d+3}], v[{r}:{r+3}], v[{8+4*ks}:{11+4*ks}], {'0' if ks == 0 else f'v[{d}:{d+3}]'}")
        for ct in range(4):
            for e in range(4):
                self.tag(ACC + 4 * ct + e, vT, sM10)
        if self.o.get("y2"):
            a("s_mov_b32 s34, 0xcccccccc")
            a("s_mov_b32 s35, 0xcccccccc")
            a("v_bfe_u32 v20, v0, 1, 1")
            a("v_lshl_add_u32 v63, v20, 6, v63")
            for h in range(2):
                for e in range(4):
                    a(f"v_cndmask_b32 v{ACC+8*h+e}, v{ACC+8*h+e}, v{ACC+8*h+4+e}, s[34:35]")
            self.publish("y", [f"buffer_store_dwordx4 v[{ACC+8*h}:{ACC+8*h+3}], v63, s[40:43], s{73 + h} offen sc1" for h in range(2)], (0x000F000F, 0x000F000F), local=False)
        else:
            self.publish("y", [f"buffer_store_dwordx4 v[{ACC+4*ct}:{ACC+4*ct+3}], v63, s[40:43], s{73 + (ct >> 1)} offen offset:{(ct & 1)*64} sc1" for ct in range(4)], M_J01, local=False)
        self.stamp(11)
        a.label(self.lab("final"))
        a("s_mov_b32 s33, 0xffff0000")
        fd = self.o.get("fdelay", ("S", 1))
        if fd:
            self.wait_flag(vSM, F_S if fd[0] == "S" else (F_O if fd[0] == "O" else F_PROG), fd[1], 12)
        self.stamp(12)
        if self.o.get("fsleep"):
            a(f"s_sleep {self.o['fsleep']}")
        a("s_setprio 2")
        if self.o.get("pipe"):
            top, gotA, gotB, done = self.uniq("q"), self.uniq("qa"), self.uniq("qb"), self.uniq("qd")
            ld = "buffer_load_dwordx4 v[{0}:{1}], v57, s[40:43], s76 offen sc1"
            a(ld.format(8, 11))
            if self.o["pipe"] > 1:
                a(f"s_nop {self.o['pipe']}")
            a.label(top)
            a(ld.format(16, 19))
            a("s_waitcnt vmcnt(1)")
            self.check([8, 9, 10, 11], vT, sM10, [12, 13])
            a(f"s_cbranch_vccz {done}")
            a(ld.format(8, 11))
            a("s_waitcnt vmcnt(1)")
            self.check([16, 17, 18, 19], vT, sM10, [12, 13])
            a(f"s_cbranch_vccz {gotB}")
            self.retry(top)
            a.label(gotB)
            for e in range(4):
                a(f"v_mov_b32 v{20+e}, v{16+e}")
            a("s_waitcnt vmcnt(0)")
            for e in range(4):
                a(f"v_mov_b32 v{8+e}, v{20+e}")
            a.label(done)
            a("s_waitcnt vmcnt(0)") if False else None
        elif self.o.get("oldpoll"):
            self.poll([("buffer_load_dwordx4 v[8:11], v57, s[40:43], s76 offen sc1", 8)], vT, sM10, 12, "s")
        else:
            self.fpoll([("buffer_load_dwordx4 v[8:11], v57, s[40:43], s76 offen sc1", 8)], vT, sM10, [12, 13], "s")
        self.stamp(13)
        self.exec_((0, 0xF0000000))
        for e in range(4):
            a(f"v_mov_b32 v{8+e}, 0")
        self.exec_(-1)
        a("v_permlane16_swap_b32 v8, v9")
        a("v_permlane16_swap_b32 v10, v11")
        a("v_add_f32 v8, v8, v9")
        a("v_add_f32 v10, v10, v11")
        a("v_add_f32_dpp v12, v8, v8 row_ror:8 row_mask:0xf bank_mask:0x3")
        a("v_add_f32_dpp v12, v10, v10 row_ror:8 row_mask:0xf bank_mask:0xc")
        a("v_add_f32_dpp v12, v12, v12 row_half_mirror row_mask:0xf bank_mask:0xf")
        a("v_add_f32_dpp v12, v12, v12 quad_perm:[1,0,3,2] row_mask:0xf bank_mask:0xf")
        a("v_add_f32_dpp v12, v12, v12 quad_perm:[2,3,0,1] row_mask:0xf bank_mask:0xf")
        a("v_cvt_pk_bf16_f32 v12, v12, v12")
        a("v_and_b32 v12, s33, v12")
        a("v_mov_b32 v8, v12")
        a("v_permlane32_swap_b32 v12, v8")
        a(f"v_mul_f32 v9, {LOG2E ^ 0x80000000:#x}, v8")
        a("v_exp_f32 v9, v9")
        a("v_add_f32 v9, 1.0, v9")
        a("v_rcp_f32 v9, v9")
        a("v_mul_f32 v8, v8, v9")
        a("v_cvt_pk_bf16_f32 v8, v8, v8")
        a("v_and_b32 v8, s33, v8")
        a("v_mul_f32 v12, v12, v8")
        a("v_cvt_pk_bf16_f32 v12, v12, v12")
        a("v_and_b32 v12, s33, v12")
        a(f"v_add_f32 v12, v12, v{vXF}")
        a("v_cvt_pk_bf16_f32 v12, v12, v12")
        self.exec_((0x01010101, 0))
        a(f"buffer_store_short v12, v{vOO}, s[44:47], 0 offen")
        a("s_cmp_lg_u32 s2, 0")
        a(f"s_cbranch_scc1 {self.lab('noepoch')}")
        a("s_mov_b64 exec, 1")
        a(f"ds_read_b32 v4, v{vSM} offset:{F_TAG}")
        a("s_waitcnt lgkmcnt(0)")
        a("buffer_store_dword v4, off, s[40:43], 0 sc1")
        a.label(self.lab("noepoch"))
        self.stamp(14)
        self.amp("end")
        self.flush_stamps(23)
        a("s_endpgm")

    def cwave(self):
        a = self.a
        TH, BASE = self.TH, self.BASE
        a.c("================= compute waves =================")
        self.init_stamps([4, 5, 6, 7, 8, 9, 10], "C")
        sC = 70
        vSM, vT, vT8, vOne, vQ, vH = 2, 3, 4, 5, 6, 7
        a(f"s_sub_u32 s{sC}, s{sW}, 2")
        a(f"v_mov_b32 v{vSM}, {SM:#x}")
        a(f"v_mov_b32 v{vOne}, 1")
        a(f"s_movk_i32 s{sM10}, 0x3ff")
        a(f"s_movk_i32 s{sM8}, 0xff")
        if not self.o.get("noprefetch"):
            a(f"s_cmp_lg_u32 s{sC}, 7")
            a(f"s_cbranch_scc1 {self.lab('nopf')}")
            a(f"s_getpc_b64 s[34:35]")
            a.label(self.lab("pcref"))
            a(f"s_sub_u32 s34, s34, {self.lab('pcref')}-{self.name}")
            a("s_subb_u32 s35, s35, 0")
            a("v_lshlrev_b32 v8, 7, v0")
            a(f"v_min_u32 v9, {self.lab('codeend')}-{self.name}-4, v8")
            a("global_load_dword v9, v9, s[34:35]")
            a("v_add_u32 v8, 0x2000, v8")
            a(f"v_min_u32 v8, {self.lab('codeend')}-{self.name}-4, v8")
            a("global_load_dword v10, v8, s[34:35]")
            a.label(self.lab("nopf"))
        a(f"v_lshrrev_b32 v{vQ}, 4, v0")
        a(f"v_lshlrev_b32 v{vQ}, 4, v{vQ}")
        a(f"v_bfe_u32 v{vH}, v0, 2, 2")
        vKA, vQB, vMW, vMR, vPW, vPR, vVA, vVT, vPub = 12, 16, 17, 18, 19, 20, 21, 22, 23
        a("v_and_b32 v8, 15, v0")
        a("v_lshrrev_b32 v11, 4, v0")
        a("v_xor_b32 v11, v8, v11")
        a("v_lshlrev_b32 v11, 4, v11")
        a("v_lshl_add_u32 v11, v8, 8, v11")
        a(f"s_lshl_b32 s33, s{sC}, 13")
        a(f"s_add_u32 s33, s33, {KB}")
        a(f"v_add_u32 v{vKA}, s33, v11")
        for ks in range(1, 4):
            a(f"v_xor_b32 v{vKA+ks}, {ks << 6:#x}, v{vKA}")
        a(f"v_mul_u32_u24 v{vQB}, {QLS}, v{vH}")
        a(f"v_add3_u32 v{vQB}, v{vQB}, v{vQ}, v{vSM}")
        a(f"v_lshl_add_u32 v{vMR}, v{vH}, 5, v{vSM}")
        a(f"s_lshl_b32 s33, s{sC}, 2")
        a(f"v_add_u32 v{vMW}, s33, v{vMR}")
        a(f"v_mul_u32_u24 v{vPR}, {PLS}, v{vH}")
        a(f"v_add3_u32 v{vPR}, v{vPR}, v{vQ}, v{vSM}")
        a(f"s_lshl_b32 s33, s{sC}, 6")
        a(f"v_add_u32 v{vPW}, s33, v{vPR}")
        self.tr_addr(24, 8, True, 25, 26, 27)
        a(f"s_lshl_b32 s33, s{sC}, 6")
        a("s_and_b32 s33, s33, 0xc0")
        a("v_xor_b32 v24, s33, v24")
        a(f"v_add_u32 v{vVA}, {VB:#x}, v24")
        a(f"v_add_u32 v{vVT}, {W2:#x}, v24")
        a(f"v_lshl_add_u32 v{vPub}, v{vH}, 14, v{vQ}")
        a("v_and_b32 v25, 1, v0")
        a(f"v_lshl_add_u32 v{vPub}, v25, 6, v{vPub}")
        a(f"s_lshl_b32 s33, s{sG}, 16")
        a(f"s_lshl_b32 s34, s{sB}, 13")
        a("s_add_u32 s33, s33, s34")
        a(f"s_lshl_b32 s34, s{sS}, 9")
        a("s_add_u32 s33, s33, s34")
        a(f"s_add_u32 s76, s33, {OX}")
        a(f"s_lshl_b32 s34, s{sC}, 7")
        a("s_add_u32 s71, s76, s34")
        a(f"s_lshl_b32 s33, s{sG}, 1")
        a(f"s_add_u32 s33, s33, s{sB}")
        a("s_lshl_b32 s33, s33, 4")
        a(f"s_add_u32 s33, s33, s{sS}")
        a("s_lshl_b32 s33, s33, 7")
        a(f"s_add_u32 s77, s33, {MLX}")
        vWT = 10
        self.tr_addr(11, 7, False, 25, 26, 27)
        a(f"s_lshl_b32 s33, s{sC}, 5")
        a("v_xor_b32 v11, s33, v11")
        a("s_waitcnt lgkmcnt(0)")
        self.ws_srd()
        a("s_barrier")
        if self.o.get("bare"):
            a("s_endpgm")
        self.wait_flag(vSM, F_XN, 1, 8)
        a(f"ds_read_b32 v{vT}, v{vSM} offset:{F_TAG}")
        a(f"s_cmp_ge_u32 s{sC}, 4")
        a(f"s_cbranch_scc1 {self.lab('noq')}")
        a("v_and_b32 v26, 1, v0")
        a(f"v_mul_u32_u24 v25, {XNS}, v26")
        a(f"v_add_u32 v25, v25, v{vQ}")
        a(f"s_lshr_b32 s34, s{sJ}, 3")
        a("s_lshl_b32 s33, s34, 8")
        a(f"s_add_u32 s33, s33, {SM+XN}")
        a("v_add_u32 v25, s33, v25")
        for ks in range(4):
            a(f"ds_read_b128 v[{32+4*ks}:{35+4*ks}], v25 offset:{64*ks}")
        a(f"v_lshl_add_u32 v26, v26, 13, v{vQ}")
        a(f"s_lshl_b32 s33, s{sG}, 14")
        a("s_lshl_b32 s34, s34, 11")
        a("s_add_u32 s72, s33, s34")
        a(f"s_and_b32 s34, s{sJ}, 7")
        a("s_lshl_b32 s34, s34, 8")
        a("s_add_u32 s72, s72, s34")
        a(f"s_lshl_b32 s34, s{sC}, 6")
        a("s_add_u32 s72, s72, s34")
        a(f"s_add_u32 s72, s72, {QX}")
        a(f"s_lshl_b32 s34, s{sB}, 13")
        a("s_add_u32 s33, s33, s34")
        a(f"s_lshl_b32 s34, s{sC}, 9")
        a("s_add_u32 s33, s33, s34")
        a(f"s_add_u32 s73, s33, {QX}")
        a("s_add_u32 s74, s73, 4096")
        a("v_lshrrev_b32 v27, 5, v0")
        a("v_and_b32 v28, 31, v0")
        a("v_lshlrev_b32 v27, 11, v27")
        a("v_lshl_add_u32 v27, v28, 4, v27")
        a(f"s_mul_i32 s33, s{sC}, {QLS}")
        a(f"s_add_u32 s33, s33, {SM+QL}")
        a("v_lshl_add_u32 v28, v28, 3, s33")
        self.wait_flag(vSM, F_PROG, TH["q"], 8)
        for ks in range(4):
            for t in range(2):
                r = 48 + ks * 4 + t * 2
                a(f"ds_read_b64_tr_b16 v[{r}:{r+1}], v11 offset:{W0 + ks*4096 + t*2048}")
        a(f"v_and_b32 v{vT8}, s{sM8}, v{vT}")
        for ks in range(4):
            a(f"s_waitcnt lgkmcnt({6-2*ks})")
            r = 48 + ks * 4
            a(f"v_mfma_f32_16x16x32_bf16 v[64:67], v[{r}:{r+3}], v[{32+4*ks}:{35+4*ks}], {'0' if ks == 0 else 'v[64:67]'}")
        self.signal(vSM, F_CQ, vOne)
        for e in range(4):
            a(f"v_add_u32 v{64+e}, 0x80, v{64+e}")
        for e in range(4):
            self.tag(64 + e, vT8, sM8)
        self.wait_flag(vSM, F_MODE, 1, 8)
        a(f"s_mov_b32 s{sMODE}, s97")
        self.publish("q", ["buffer_store_dwordx4 v[64:67], v26, s[40:43], s72 offen sc1"], M_J01)
        self.stamp(4)
        if "q" in self.o.get("pref", "qgo"):
            a("buffer_load_dwordx4 v[32:35], v27, s[40:43], s73 offen sc1 nt")
            a("buffer_load_dwordx4 v[36:39], v27, s[40:43], s74 offen sc1 nt")
        if self.o.get("qdelay"):
            self.wait_flag(vSM, F_PROG, self.o["qdelay"], 8)
        self.poll([("buffer_load_dwordx4 v[32:35], v27, s[40:43], s73 offen sc1", 32),
                   ("buffer_load_dwordx4 v[36:39], v27, s[40:43], s74 offen sc1", 36)], vT8, sM8, 8, "q")
        for e in range(4):
            a(f"v_add_f32 v{32+e}, v{32+e}, v{36+e}")
        a("v_permlane32_swap_b32 v32, v33")
        a("v_permlane32_swap_b32 v34, v35")
        a("v_add_f32 v32, v32, v33")
        a("v_add_f32 v34, v34, v35")
        a("v_mov_b32 v33, v32")
        a("v_mov_b32 v35, v34")
        a("v_permlane32_swap_b32 v32, v33")
        a("v_permlane32_swap_b32 v34, v35")
        a("v_cvt_pk_bf16_f32 v32, v32, v33")
        a("v_cvt_pk_bf16_f32 v33, v34, v35")
        self.exec_((0xFFFFFFFF, 0))
        a(f"ds_write_b64 v28, v[32:33]")
        self.signal(vSM, F_QR, vOne)
        self.stamp(5)
        a(f"s_branch {self.lab('scores')}")
        a.label(self.lab("noq"))
        self.wait_flag(vSM, F_MODE, 1, 8)
        a(f"s_mov_b32 s{sMODE}, s97")
        a.label(self.lab("scores"))
        a("s_waitcnt vmcnt(0) lgkmcnt(0)")
        a(f"v_and_b32 v{vT}, s{sM10}, v{vT}")
        a(f"s_lshl_b32 s34, s{sC}, 3")
        a(f"s_add_u32 s34, s34, {BASE['k'] + 8}")
        self.wait_flag(vSM, F_PROG, "s34", 8)
        KA = 48
        for tt in range(2):
            for ks in range(4):
                r = KA + (tt * 4 + ks) * 4
                a(f"ds_read_b128 v[{r}:{r+3}], v{vKA+ks} offset:{4096*tt}")
        self.wait_flag(vSM, F_QR, 4, 8)
        for ks in range(4):
            a(f"ds_read_b128 v[{32+4*ks}:{35+4*ks}], v{vQB} offset:{QL + 64*ks}")
        S = 80
        for ks in range(4):
            a(f"s_waitcnt lgkmcnt({3-ks})")
            for tt in range(2):
                r = KA + (tt * 4 + ks) * 4
                d = S + 4 * tt
                a(f"v_mfma_f32_16x16x32_bf16 v[{d}:{d+3}], v[{r}:{r+3}], v[{32+4*ks}:{35+4*ks}], {'0' if ks == 0 else f'v[{d}:{d+3}]'}")
        a("s_mov_b32 s33, 0xffff0000")
        for rep in range(2):
            for i in range(4):
                a(f"v_cvt_pk_bf16_f32 v{32+i}, v{S+2*i}, v{S+2*i+1}")
            for i in range(4):
                a(f"v_lshlrev_b32 v{S+2*i}, 16, v{32+i}")
                a(f"v_and_b32 v{S+2*i+1}, s33, v{32+i}")
            if rep == 0:
                for i in range(8):
                    a(f"v_mul_f32 v{S+i}, {SCALE:#x}, v{S+i}")
        a(f"v_max3_f32 v32, v{S}, v{S+1}, v{S+2}")
        a(f"v_max3_f32 v33, v{S+3}, v{S+4}, v{S+5}")
        a(f"v_max3_f32 v32, v32, v{S+6}, v{S+7}")
        a("v_max_f32 v32, v32, v33")
        self.swap_reduce("v_max_f32", 32, 33, 16)
        self.swap_reduce("v_max_f32", 32, 33, 32)
        self.exec_(0x1111)
        a(f"ds_write_b32 v{vMW}, v32 offset:{MX}")
        self.signal(vSM, F_MAX, vOne)
        self.wait_flag(vSM, F_MAX, 8, 8)
        a(f"ds_read_b128 v[32:35], v{vMR} offset:{MX}")
        a(f"ds_read_b128 v[36:39], v{vMR} offset:{MX+16}")
        a(f"s_mov_b32 s34, {LOG2E:#x}")
        a("s_waitcnt lgkmcnt(0)")
        a("v_max3_f32 v32, v32, v33, v34")
        a("v_max3_f32 v35, v35, v36, v37")
        a("v_max3_f32 v32, v32, v38, v39")
        vM = 8
        a(f"v_max_f32 v{vM}, v32, v35")
        a(f"v_mul_f32 v33, s34, v{vM}")
        for i in range(8):
            a(f"v_fma_f32 v{S+i}, v{S+i}, s34, -v33")
        for i in range(8):
            a(f"v_exp_f32 v{S+i}, v{S+i}")
        for i in range(4):
            a(f"v_cvt_pk_bf16_f32 v{32+i}, v{S+2*i}, v{S+2*i+1}")
        self.exec_(M_J4)
        a(f"ds_write_b128 v{vPW}, v[32:35] offset:{PL}")
        self.exec_(-1)
        for i in range(4):
            a(f"v_add_f32 v{S+i}, v{S+i}, v{S+4+i}")
        a(f"v_add_f32 v{S}, v{S}, v{S+1}")
        a(f"v_add_f32 v{S+2}, v{S+2}, v{S+3}")
        a(f"v_add_f32 v{S}, v{S}, v{S+2}")
        self.swap_reduce("v_add_f32", S, S + 1, 16)
        self.swap_reduce("v_add_f32", S, S + 1, 32)
        self.exec_(0x1111)
        a(f"ds_write_b32 v{vMW}, v{S} offset:{LS}")
        self.signal(vSM, F_P, vOne)
        a(f"s_cmp_ge_u32 s{sC}, 4")
        a(f"s_cbranch_scc1 {self.lab('comb')}")
        if self.o.get("prio"):
            a("s_setprio 2")
        self.wait_flag(vSM, F_P, 8, 9)
        PB = 32
        for ks in range(8):
            a(f"ds_read_b128 v[{PB+4*ks}:{PB+4*ks+3}], v{vPR} offset:{PL + 64*ks}")
        self.stamp(6)
        a(f"s_cmp_lg_u32 s{sC}, 0")
        a(f"s_cbranch_scc1 {self.lab('noml')}")
        a(f"ds_read_b128 v[64:67], v{vMR} offset:{LS}")
        a(f"ds_read_b128 v[68:71], v{vMR} offset:{LS+16}")
        a(f"v_lshlrev_b32 v72, 4, v{vH}")
        a("s_waitcnt lgkmcnt(0)")
        for e in range(4):
            a(f"v_add_f32 v{64+e}, v{64+e}, v{68+e}")
        a("v_add_f32 v64, v64, v65")
        a("v_add_f32 v66, v66, v67")
        a("v_add_f32 v65, v64, v66")
        a(f"v_bfi_b32 v64, s{sM10}, v{vT}, v{vM}")
        self.tag(65, vT, sM10)
        a("v_mov_b32 v66, v64")
        a("v_mov_b32 v67, v65")
        self.publish("m", ["buffer_store_dwordx4 v[64:67], v72, s[40:43], s77 offen sc1"], 0x1111)
        a.label(self.lab("noml"))
        O = 96
        a(f"v_xor_b32 v24, 32, v{vVA}")
        a(f"v_xor_b32 v25, 32, v{vVT}")

        def pv(grp, thr):
            self.wait_flag(vSM, F_PROG, thr, 9)
            for n, ks in enumerate(grp):
                for u in range(2):
                    for t in range(2):
                        r = 64 + n * 8 + u * 4 + t * 2
                        if ks < 7:
                            a(f"ds_read_b64_tr_b16 v[{r}:{r+1}], v{24 if u else vVA} offset:{ks*8192 + t*4096}")
                        else:
                            a(f"ds_read_b64_tr_b16 v[{r}:{r+1}], v{25 if u else vVT} offset:{t*4096}")
            for n, ks in enumerate(grp):
                for u in range(2):
                    a(f"s_waitcnt lgkmcnt({4*(len(grp)-1-n) + 2*(1-u)})")
                    r = 64 + n * 8 + u * 4
                    d = O + 4 * u
                    a(f"v_mfma_f32_16x16x32_bf16 v[{d}:{d+3}], v[{r}:{r+3}], v[{PB+4*ks}:{PB+4*ks+3}], {'0' if ks == 0 else f'v[{d}:{d+3}]'}")

        bv = BASE["v"]
        pv((0, 1, 2), bv + 24)
        pv((3, 4), bv + 40)
        pv((5,), bv + 48)
        pv((6,), bv + 56)
        a("s_mov_b32 s34, 0x22222222")
        a("s_mov_b32 s35, 0x22222222")
        pv((7,), TH["t"])
        for e in range(4):
            a(f"v_cndmask_b32 v{O+e}, v{O+e}, v{O+4+e}, s[34:35]")
        for e in range(4):
            self.tag(O + e, vT, sM10)
        self.publish("o", [f"buffer_store_dwordx4 v[{O}:{O+3}], v{vPub}, s[40:43], s71 offen sc1"], (0x33333333, 0x33333333))
        self.stamp(7)
        a("v_and_b32 v28, 1, v0")
        a(f"v_mul_u32_u24 v29, {OLS}, v28")
        a(f"v_add3_u32 v29, v29, v{vQ}, v{vSM}")
        a(f"v_lshl_add_u32 v28, v28, 17, v{vQ}")
        a(f"s_and_b32 s33, s{sJ}, 7")
        a("s_lshl_b32 s33, s33, 14")
        a(f"s_lshr_b32 s34, s{sC}, 1")
        a("s_lshl_b32 s34, s34, 13")
        a("s_add_u32 s33, s33, s34")
        a(f"s_lshl_b32 s34, s{sG}, 2")
        a(f"s_lshr_b32 s72, s{sJ}, 3")
        a("s_add_u32 s34, s34, s72")
        a("s_lshl_b32 s34, s34, 7")
        a("s_add_u32 s33, s33, s34")
        a(f"s_and_b32 s34, s{sC}, 1")
        a("s_lshl_b32 s34, s34, 6")
        a("s_add_u32 s33, s33, s34")
        a(f"s_add_u32 s72, s33, {FX}")
        if self.o.get("o2"):
            a(f"s_cmp_ge_u32 s{sC}, 2")
            a(f"s_cbranch_scc1 {self.lab('cend')}")
            a(f"s_lshl_b32 s33, s{sC}, 5")
            a("v_xor_b32 v11, s33, v11")
            a(f"s_lshl_b32 s33, s{sC}, 6")
            a("v_xor_b32 v11, s33, v11")
            a("v_xor_b32 v10, 32, v11")
            a("v_bfe_u32 v26, v0, 1, 1")
            a("v_lshl_add_u32 v28, v26, 6, v28")
            a(f"s_and_b32 s33, s{sJ}, 7")
            a("s_lshl_b32 s33, s33, 1")
            a(f"s_add_u32 s33, s33, s{sC}")
            a("s_lshl_b32 s33, s33, 13")
            a(f"s_lshl_b32 s34, s{sG}, 2")
            a(f"s_lshr_b32 s72, s{sJ}, 3")
            a("s_add_u32 s34, s34, s72")
            a("s_lshl_b32 s34, s34, 7")
            a("s_add_u32 s33, s33, s34")
            a(f"s_add_u32 s72, s33, {FX}")
            a("s_mov_b32 s34, 0xcccccccc")
            a("s_mov_b32 s35, 0xcccccccc")
            self.wait_flag(vSM, F_PROG, TH["o"], 9)
            for u in range(2):
                for ks in range(4):
                    for t in range(2):
                        r = 48 + u * 16 + ks * 4 + t * 2
                        a(f"ds_read_b64_tr_b16 v[{r}:{r+1}], v{10 if u else 11} offset:{W0 + ks*4096 + t*2048}")
            self.wait_flag(vSM, F_O, 4, 9)
            for ks in range(4):
                a(f"ds_read_b128 v[{32+4*ks}:{35+4*ks}], v29 offset:{OL + 64*ks}")
            for ks in range(4):
                a(f"s_waitcnt lgkmcnt({3-ks})")
                for u in range(2):
                    r = 48 + u * 16 + ks * 4
                    d = 80 + 4 * u
                    a(f"v_mfma_f32_16x16x32_bf16 v[{d}:{d+3}], v[{r}:{r+3}], v[{32+4*ks}:{35+4*ks}], {'0' if ks == 0 else f'v[{d}:{d+3}]'}")
            for e in range(4):
                a(f"v_cndmask_b32 v{80+e}, v{80+e}, v{84+e}, s[34:35]")
            for e in range(4):
                self.tag(80 + e, vT, sM10)
            self.publish("s", ["buffer_store_dwordx4 v[80:83], v28, s[40:43], s72 offen sc1"], (0x000F000F, 0x000F000F), local=False)
            self.stamp(10)
            if self.o.get("ack"):
                a("s_waitcnt vmcnt(0)")
            self.signal(vSM, F_S, vOne)
            a.label(self.lab("cend"))
            self.cflush()
            a("s_endpgm")
        self.wait_flag(vSM, F_PROG, TH["o"], 9)
        for ks in range(4):
            for t in range(2):
                r = 48 + ks * 4 + t * 2
                a(f"ds_read_b64_tr_b16 v[{r}:{r+1}], v11 offset:{W0 + ks*4096 + t*2048}")
        self.wait_flag(vSM, F_O, 4, 9)
        for ks in range(4):
            a(f"ds_read_b128 v[{32+4*ks}:{35+4*ks}], v29 offset:{OL + 64*ks}")
        for ks in range(4):
            a(f"s_waitcnt lgkmcnt({3-ks})")
            r = 48 + ks * 4
            a(f"v_mfma_f32_16x16x32_bf16 v[64:67], v[{r}:{r+3}], v[{32+4*ks}:{35+4*ks}], {'0' if ks == 0 else 'v[64:67]'}")
        for e in range(4):
            self.tag(64 + e, vT, sM10)
        self.publish("s", ["buffer_store_dwordx4 v[64:67], v28, s[40:43], s72 offen sc1"], M_J01, local=False)
        self.signal(vSM, F_S, vOne)
        self.stamp(10)
        self.cflush()
        a("s_endpgm")
        a.label(self.lab("comb"))
        if self.o.get("prio"):
            a("s_setprio 1")
        if "o" in self.o.get("pref", "qgo"):
            a(f"s_cmp_ge_u32 s{sC}, 6")
            a(f"s_cbranch_scc1 {self.lab('pre6')}")
            a("v_lshrrev_b32 v27, 5, v0")
            a("v_and_b32 v28, 31, v0")
            a("v_lshlrev_b32 v27, 14, v27")
            a("v_lshl_add_u32 v27, v28, 4, v27")
            a(f"s_sub_u32 s33, s{sC}, 4")
            a("s_lshl_b32 s33, s33, 15")
            a("s_add_u32 s33, s33, s76")
            if self.o.get("opre_at"):
                self.wait_flag(vSM, F_PROG, self.o["opre_at"], 9)
            a(f"buffer_load_dwordx4 v[32:35], v27, s[40:43], s33 offen {self.o.get('oprefl', 'sc1 nt')}")
            a.label(self.lab("pre6"))
        a(f"s_and_b32 s72, s{sC}, 1")
        a(f"s_lshl_b32 s33, s{sG}, 1")
        a("s_add_u32 s33, s33, s72")
        a("s_lshl_b32 s33, s33, 11")
        a(f"s_lshr_b32 s34, s{sJ}, 3")
        a("s_lshl_b32 s34, s34, 4")
        a("s_add_u32 s33, s33, s34")
        a(f"s_add_u32 s77, s33, {MLX}")
        a("v_lshrrev_b32 v24, 3, v0")
        a("v_lshlrev_b32 v25, 9, v24")
        a("v_lshlrev_b32 v24, 7, v24")
        a("v_and_b32 v26, 7, v0")
        a("v_lshl_add_u32 v25, v26, 4, v25")
        a(f"s_lshl_b32 s33, s{sG}, 16")
        a(f"s_lshr_b32 s34, s{sJ}, 3")
        a("s_lshl_b32 s34, s34, 14")
        a("s_add_u32 s33, s33, s34")
        a("s_lshl_b32 s34, s72, 13")
        a("s_add_u32 s33, s33, s34")
        a(f"s_bfe_u32 s75, s{sC}, 0x10001")
        a("s_lshl_b32 s34, s75, 8")
        a("s_add_u32 s33, s33, s34")
        a(f"s_add_u32 s73, s33, {OX}")
        a("s_add_u32 s74, s73, 4096")
        a("v_and_b32 v26, 3, v0")
        a("v_lshlrev_b32 v26, 4, v26")
        a("v_bfe_u32 v27, v0, 2, 1")
        a("v_lshl_add_u32 v26, v27, 3, v26")
        a("v_bfe_u32 v27, v0, 4, 1")
        a("v_lshl_add_u32 v26, v27, 2, v26")
        a("v_lshrrev_b32 v27, 5, v0")
        a("v_lshl_add_u32 v26, v27, 1, v26")
        a(f"s_mul_i32 s33, s72, {OLS}")
        a("s_lshl_b32 s34, s75, 7")
        a("s_add_u32 s33, s33, s34")
        a(f"s_add_u32 s33, s33, {SM+OL}")
        a("v_add_u32 v26, s33, v26")
        a(f"s_mov_b32 s34, {LOG2E:#x}")
        if self.o.get("mdelay"):
            self.wait_flag(vSM, F_PROG, self.o["mdelay"], 9)
        mloads = [("buffer_load_dwordx4 v[80:83], v24, s[40:43], s77 offen sc1", 80),
                  ("buffer_load_dwordx4 v[84:87], v24, s[40:43], s77 offen offset:1024 sc1", 84)]
        oloads = [("buffer_load_dwordx4 v[32:35], v25, s[40:43], s73 offen sc1", 32),
                  ("buffer_load_dwordx4 v[36:39], v25, s[40:43], s74 offen sc1", 36),
                  ("buffer_load_dwordx4 v[40:43], v25, s[40:43], s73 offen offset:128 sc1", 40),
                  ("buffer_load_dwordx4 v[44:47], v25, s[40:43], s74 offen offset:128 sc1", 44)]
        tm = list(range(48, 56))
        merged = self.o.get("merge")
        if merged:
            topA, gotm = self.uniq("pa"), self.uniq("pm")
            if "m" not in self.o.get("skip", ""):
                a.label(topA)
                for t, d in mloads:
                    a(t)
                a(f"ds_read_b32 v9, v{vSM} offset:{F_PROG}")
                a("s_waitcnt lgkmcnt(0)")
                a("v_readfirstlane_b32 s97, v9")
                a(f"s_cmp_lt_i32 s97, {merged}")
                a(f"s_cbranch_scc1 {gotm}")
                for t, d in oloads:
                    a(t)
                a.label(gotm)
                a("s_waitcnt vmcnt(0)")
                self.check(list(range(80, 88)), vT, sM10, tm)
                nxt = self.uniq("pn")
                a(f"s_cbranch_vccz {nxt}")
                self.retry(topA)
                a.label(nxt)
        else:
            self.fpoll(mloads, vT, sM10, tm, "m")
        a(f"v_xor_b32 v80, v{vT}, v80")
        a(f"v_xor_b32 v84, v{vT}, v84")
        a("v_max_f32 v8, v80, v84")
        a("v_max_f32_dpp v8, v8, v8 row_ror:8 row_mask:0xf bank_mask:0xf")
        self.swap_reduce("v_max_f32", 8, 9, 16)
        self.swap_reduce("v_max_f32", 8, 9, 32)
        a("v_sub_f32 v80, v80, v8")
        a("v_sub_f32 v84, v84, v8")
        a("v_mul_f32 v80, s34, v80")
        a("v_mul_f32 v84, s34, v84")
        a("v_exp_f32 v80, v80")
        a("v_exp_f32 v84, v84")
        a("v_mul_f32 v8, v80, v81")
        a("v_fmac_f32 v8, v84, v85")
        a("v_add_f32_dpp v8, v8, v8 row_ror:8 row_mask:0xf bank_mask:0xf")
        self.swap_reduce("v_add_f32", 8, 9, 16)
        self.swap_reduce("v_add_f32", 8, 9, 32)
        a("v_rcp_f32 v8, v8")
        a("v_mul_f32 v30, v80, v8")
        a("v_mul_f32 v31, v84, v8")
        self.stamp(8)
        if merged:
            topB, chk, done = self.uniq("pb"), self.uniq("pc"), self.uniq("pe")
            if "o" not in self.o.get("skip", ""):
                a(f"s_cmp_ge_i32 s97, {merged}")
                a(f"s_cbranch_scc1 {chk}")
                self.wait_flag(vSM, F_PROG, merged, 9)
                a.label(topB)
                for t, d in oloads:
                    a(t)
                a("s_waitcnt vmcnt(0)")
                a.label(chk)
                self.check([32 + i for i in range(16)], vT, sM10, tm)
                a(f"s_cbranch_vccz {done}")
                self.retry(topB)
                a.label(done)
        else:
            if self.o.get("odelay"):
                self.wait_flag(vSM, F_PROG, self.o["odelay"], 9)
            if self.o.get("trace") == "o":
                self.poll(oloads, vT, sM10, 8, "o")
            else:
                self.fpoll(oloads, vT, sM10, tm, "o")
        for u in range(2):
            for e in range(4):
                a(f"v_mul_f32 v{32+8*u+e}, v30, v{32+8*u+e}")
        for u in range(2):
            for e in range(4):
                a(f"v_fmac_f32 v{32+8*u+e}, v31, v{36+8*u+e}")
        for r in (32, 40):
            a(f"v_permlane32_swap_b32 v{r}, v{r+1}")
            a(f"v_permlane32_swap_b32 v{r+2}, v{r+3}")
        for r in (32, 40):
            a(f"v_add_f32 v{r}, v{r}, v{r+1}")
            a(f"v_add_f32 v{r+2}, v{r+2}, v{r+3}")
        for r in (32, 40):
            a(f"v_permlane16_swap_b32 v{r}, v{r+2}")
        for r in (32, 40):
            a(f"v_add_f32 v{r}, v{r}, v{r+2}")
        for r in (32, 40):
            a(f"v_add_f32_dpp v{r}, v{r}, v{r} row_ror:8 row_mask:0xf bank_mask:0xf")
        a("v_cvt_pk_bf16_f32 v32, v32, v40")
        a("ds_write_b16 v26, v32")
        a("ds_write_b16_d16_hi v26, v32 offset:64")
        self.signal(vSM, F_O, vOne)
        self.stamp(9)
        self.cflush()
        a("s_endpgm")

    def body(self):
        self.setup()
        self.prev = "q"
        return Gen.body(self)


gen.Gen2 = Gen2


def final_file2(path, **kw):
    old = gen.Gen
    gen.Gen = Gen2
    try:
        return gen.final_file(path, **kw)
    finally:
        gen.Gen = old


def build_variants2(out, variants):
    old = gen.Gen
    gen.Gen = Gen2
    try:
        return gen.build_variants(out, variants)
    finally:
        gen.Gen = old


if __name__ == "__main__":
    b = dict(qdelay=72, gdelay=128)
    build_variants2("kern2", [("k2s", dict(N=24, stamps=True, opts=dict(b, dbgmode=1))), ("k2", dict(N=24, opts=b))])
```

```python
from gen2 import *
b=dict(gdelay=128,o2=1,y2=1,ack=1,fdelay=("S",2),qdelay=72,mdelay=140)
final_file2("cand/b_n24r.s",N=24,opts=dict(b,odelay=160,rot=(3,2)))
final_file2("cand/b_n20i.s",N=20,opts=dict(b,odelay=164,ilv=4096))
final_file2("cand/b_n24r_amp.s",N=24,opts=dict(b,odelay=160,rot=(3,2),amp=(20,7,"end")))
final_file2("cand/b_n24r_amp1.s",N=24,opts=dict(b,odelay=160,rot=(3,2),amp=(20,1,"end")))
```

```python
from dsl import Asm

KNAME = "recurrent_scan__sliding_block_cached__glu_gated_glu__decode_kernel"

W0, W1, W2, KB, VB, SM = 0x0000, 0x4000, 0x6000, 0x8000, 0x18000, 0x26000
XN, QL, PL, MX, LS, OL, HL, FL = 0x0000, 0x0900, 0x0E00, 0x1700, 0x1780, 0x1800, 0x1A80, 0x1C00
XNS, QLS, PLS, OLS, HLS = 1088, 320, 576, 320, 192
F_PROG, F_XN, F_CQ, F_CG, F_QR, F_MAX, F_P, F_TAG, F_MODE = [FL + 4 * i for i in range(9)]
LDS_BYTES = 163840
QX, GX, MLX, OX, FX = 0x1000, 0x21000, 0x59000, 0x61000, 0xE1000
FXS = 64 * 128
WS_USE = 0x200000
sG, sJ, sW, sB, sS = 28, 29, 30, 31, 32
sMODE, sM10, sM8, sCAP, sHI = 64, 65, 66, 67, 63
SCALE = 0x3DB504F3
LOG2E = 0x3FB8AA3B
EPS = 0x3727C5AC
M_J01 = (0x00030003, 0x00030003)
M_J03 = (0x000F000F, 0x000F000F)
M_J4 = (0x11111111, 0x11111111)
NW = 10
NVGPR = 104
CNT = dict(q=16, g=8, u=8, k=64, v=56, t=8, o=8, p=8, d=8)
MFMA = "v_mfma_f32_16x16x32_bf16"


class Gen3:
    def __init__(self, N=24, stamps=False, name=KNAME, opts=None):
        self.a = Asm()
        self.N = N
        self.stamps = stamps
        self.name = name
        self.u = 0
        self.o = dict(order="qgukvtdop", ilv=4096, qdelay=72, gdelay=128, mdelay=0, odelay=160, pref="qgo")
        self.o.update(opts or {})
        self.TH, self.BASE = {}, {}
        n = 0
        for p in self.o["order"]:
            self.BASE[p] = n
            n += CNT[p]
            self.TH[p] = n
        assert n == 184

    def lab(self, s):
        return f"L_{s}_{self.name[-24:]}" if self.name != KNAME else f"L_{s}"

    def uniq(self, s):
        self.u += 1
        return self.lab(f"{s}{self.u}")

    def srd(self, d, p, off, size):
        a = self.a
        if off is None:
            a(f"s_mov_b32 s{d}, s{p}")
            a(f"s_mov_b32 s{d+1}, s{p+1}")
        else:
            a(f"s_add_u32 s{d}, s{p}, {off}")
            a(f"s_addc_u32 s{d+1}, s{p+1}, 0")
        if self.o.get("nostream") and p in (6, 8, 10, 12, 16, 18, 20):
            size = 0
        a(f"s_mov_b32 s{d+2}, {size}")
        a(f"s_mov_b32 s{d+3}, 0x20000")

    def exec_(self, m):
        a = self.a
        if isinstance(m, int):
            a(f"s_mov_b64 exec, {m}")
        else:
            a(f"s_mov_b32 exec_lo, {m[0]:#x}")
            a(f"s_mov_b32 exec_hi, {m[1]:#x}")

    def init_stamps(self, slots):
        self.myslots = slots
        if self.stamps:
            for i in range(len(slots)):
                self.a(f"s_mov_b64 s[{80+2*i}:{81+2*i}], 0")

    def stamp(self, slot):
        if self.stamps and slot in self.myslots:
            i = self.myslots.index(slot)
            self.a(f"s_memrealtime s[{80+2*i}:{81+2*i}]")
            self.a("s_waitcnt lgkmcnt(0)")

    def flush_stamps(self, who=None):
        if not self.stamps:
            return
        a = self.a
        a("s_lshl_b32 s33, s2, 7")
        a("s_add_u32 s33, s33, 0x10000000")
        self.srd(76, 26, "s33", 128)
        a("s_mov_b64 exec, 1")
        for i, slot in enumerate(self.myslots):
            sk = self.uniq("cs")
            if who is not None:
                a(f"s_cmp_eq_u32 s70, {who(slot)}")
                a(f"s_cbranch_scc0 {sk}")
            a(f"v_mov_b32 v24, s{80+2*i}")
            a(f"v_mov_b32 v25, s{81+2*i}")
            a(f"buffer_store_dwordx2 v[24:25], off, s[76:79], 0 offset:{8*slot}")
            a("s_nop 1")
            a.label(sk)

    def fine(self, name, base):
        if self.stamps and self.o.get("fine", {}).get(name) is not None:
            self.a(f"s_memrealtime s[{base}:{base+1}]")
            self.a("s_waitcnt lgkmcnt(0)")

    def fine_flush(self, name, base):
        if self.stamps and self.o.get("fine", {}).get(name) is not None:
            a = self.a
            a("s_lshl_b32 s33, s2, 7")
            a("s_add_u32 s33, s33, 0x10000000")
            self.srd(76, 26, "s33", 128)
            a("s_mov_b64 exec, 1")
            a("s_and_b32 s33, s70, 3")
            a(f"s_add_u32 s33, s33, {self.o['fine'][name]}")
            a("s_lshl_b32 s33, s33, 3")
            a(f"v_mov_b32 v24, s{base}")
            a(f"v_mov_b32 v25, s{base+1}")
            a("buffer_store_dwordx2 v[24:25], off, s[76:79], s33")
            a("s_nop 1")

    def amp(self, what):
        if not self.o.get("amp") or self.o["amp"][2] != what:
            return
        K, wg, _ = self.o["amp"]
        a = self.a
        top, done = self.uniq("amp"), self.uniq("ampd")
        a(f"s_cmp_lg_u32 s2, {wg}")
        a(f"s_cbranch_scc1 {done}")
        a("s_memrealtime s[94:95]")
        a("s_waitcnt lgkmcnt(0)")
        if self.o.get("ampskew") is not None:
            a("s_mov_b64 exec, 1")
            a(f"buffer_load_dword v4, off, s[40:43], 0 offset:{256 + 4*self.o['ampskew']} sc1")
            a("s_waitcnt vmcnt(0)")
            a("v_readfirstlane_b32 s96, v4")
            a("s_nop 3")
            a("s_sub_u32 s96, s98, s96")
            a("s_add_u32 s96, s96, 200")
        else:
            a("s_sub_u32 s96, s94, s98")
        a(f"s_mul_i32 s96, s96, {K}")
        a("s_min_u32 s96, s96, 100000")
        a.label(top)
        a("s_memrealtime s[92:93]")
        a("s_waitcnt lgkmcnt(0)")
        a("s_sub_u32 s92, s92, s94")
        a("s_cmp_lt_u32 s92, s96")
        a(f"s_cbranch_scc1 {top}")
        a.label(done)

    def wait_flag(self, vsm, flag, thr, vt):
        a = self.a
        top = self.uniq("w")
        a.label(top)
        a(f"s_sub_u32 s{sCAP}, s{sCAP}, 1")
        a(f"s_cbranch_scc1 {self.lab('abort')}")
        a(f"ds_read_b32 v{vt}, v{vsm} offset:{flag}")
        a("s_waitcnt lgkmcnt(0)")
        a(f"v_cmp_le_i32 vcc, {thr}, v{vt}")
        a(f"s_cbranch_vccz {top}")

    def signal(self, vsm, flag, vone, restore=-1):
        a = self.a
        a("s_mov_b64 exec, 1")
        a(f"ds_add_u32 v{vsm}, v{vone} offset:{flag}")
        if restore is not None:
            self.exec_(restore)

    def check(self, regs, vT, smask, tmps):
        a = self.a
        xs = []
        for i in range(0, len(regs), 2):
            t = tmps[i // 2]
            a(f"v_bitop3_b32 v{t}, v{regs[i]}, v{regs[i+1]}, v{vT} bitop3:0x7e")
            xs.append(t)
        while len(xs) > 1:
            nx, i = [], 0
            while i < len(xs):
                if i + 2 < len(xs):
                    a(f"v_or3_b32 v{xs[i]}, v{xs[i]}, v{xs[i+1]}, v{xs[i+2]}")
                    nx.append(xs[i]); i += 3
                elif i + 1 < len(xs):
                    a(f"v_or_b32 v{xs[i]}, v{xs[i]}, v{xs[i+1]}")
                    nx.append(xs[i]); i += 2
                else:
                    nx.append(xs[i]); i += 1
            xs = nx
        a(f"v_and_b32 v{xs[0]}, s{smask}, v{xs[0]}")
        a(f"v_cmp_ne_u32 vcc, 0, v{xs[0]}")

    def poll_masked(self, loads, regs, vT, smask, tmps, base_exec):
        a = self.a
        n = len(loads)
        M = [52 + 2 * i for i in range(n)]
        assert n <= 4
        top, done = self.uniq("p"), self.uniq("pd")
        for t in loads:
            a(t)
        a("s_waitcnt vmcnt(0)")

        def checks(first):
            if first:
                for i in range(n):
                    r = regs[4 * i:4 * i + 4]
                    a(f"v_bitop3_b32 v{tmps[2*i]}, v{r[0]}, v{r[1]}, v{vT} bitop3:0x7e")
                    a(f"v_bitop3_b32 v{tmps[2*i+1]}, v{r[2]}, v{r[3]}, v{vT} bitop3:0x7e")
                self.check_tail([tmps[i] for i in range(2 * n)], smask, tmps[2 * n])
            for i in range(n):
                r = regs[4 * i:4 * i + 4]
                if not first:
                    a(f"s_mov_b64 exec, s[{M[i]}:{M[i]+1}]")
                    a(f"v_bitop3_b32 v{tmps[2*i]}, v{r[0]}, v{r[1]}, v{vT} bitop3:0x7e")
                    a(f"v_bitop3_b32 v{tmps[2*i+1]}, v{r[2]}, v{r[3]}, v{vT} bitop3:0x7e")
                a(f"v_or_b32 v{tmps[2*i]}, v{tmps[2*i]}, v{tmps[2*i+1]}")
                a(f"v_and_b32 v{tmps[2*i]}, s{smask}, v{tmps[2*i]}")
                a(f"v_cmp_ne_u32 s[{M[i]}:{M[i]+1}], 0, v{tmps[2*i]}")

        checks(True)
        a("s_nop 1")
        a.label(top)
        a(f"s_sub_u32 s{sCAP}, s{sCAP}, 16")
        a(f"s_cbranch_scc1 {self.lab('abort')}")
        for i, t in enumerate(loads):
            sk = self.uniq("pk")
            a(f"s_mov_b64 exec, s[{M[i]}:{M[i]+1}]")
            a(f"s_cbranch_execz {sk}")
            a(t)
            a.label(sk)
        a("s_waitcnt vmcnt(0)")
        checks(False)
        a("s_nop 1")
        a(f"s_mov_b64 s[60:61], s[{M[0]}:{M[0]+1}]")
        for i in range(1, n):
            a(f"s_or_b64 s[60:61], s[60:61], s[{M[i]}:{M[i]+1}]")
        a("s_cmp_lg_u64 s[60:61], 0")
        a(f"s_cbranch_scc1 {top}")
        a.label(self.pm_done)
        self.exec_(base_exec)

    def check_tail(self, xs, smask, t):
        a = self.a
        self.pm_done = self.uniq("pmd")
        cur = xs[0]
        i = 1
        first = True
        while i < len(xs):
            if i + 1 < len(xs):
                a(f"v_or3_b32 v{t}, v{cur}, v{xs[i]}, v{xs[i+1]}")
                i += 2
            else:
                a(f"v_or_b32 v{t}, v{cur}, v{xs[i]}")
                i += 1
            cur = t
        a(f"v_and_b32 v{t}, s{smask}, v{t}")
        a(f"v_cmp_ne_u32 vcc, 0, v{t}")
        a(f"s_cbranch_vccz {self.pm_done}")

    def poll(self, loads, regs, vT, smask, tmps, name, base_exec=-1):
        a = self.a
        if name in self.o.get("skip", ""):
            return
        if name in self.o.get("masked", ""):
            return self.poll_masked(loads, regs, vT, smask, tmps, base_exec)
        top = self.uniq("p")
        tr = self.stamps and self.o.get("count", {}).get(name)
        if tr and all(x in self.myslots for x in tr):
            self.stamp(tr[0])
            i = self.myslots.index(tr[1])
            a(f"s_mov_b64 s[{80+2*i}:{81+2*i}], s[98:99]")
            for t in loads:
                a(t)
            a("s_waitcnt vmcnt(0)")
            self.stamp(tr[2])
            a.label(top)
            a(f"s_add_u32 s{80+2*i}, s{80+2*i}, 1")
            a(f"s_sub_u32 s{sCAP}, s{sCAP}, 16")
            a(f"s_cbranch_scc1 {self.lab('abort')}")
            self.check(regs, vT, smask, tmps)
            done = self.uniq("pd")
            a(f"s_cbranch_vccz {done}")
            for t in loads:
                a(t)
            a("s_waitcnt vmcnt(0)")
            a(f"s_branch {top}")
            a.label(done)
            return
        a.label(top)
        a(f"s_sub_u32 s{sCAP}, s{sCAP}, 16")
        a(f"s_cbranch_scc1 {self.lab('abort')}")
        for t in loads:
            a(t)
        a("s_waitcnt vmcnt(0)")
        self.check(regs, vT, smask, tmps)
        a(f"s_cbranch_vccnz {top}")

    def tag(self, r, vT, smask, src=None):
        self.a(f"v_bfi_b32 v{r}, s{smask}, v{vT}, v{r if src is None else src}")

    def publish(self, name, stores, mask, local=True, restore=-1):
        a = self.a
        if name in self.o.get("nostore", ""):
            if restore is not None:
                self.exec_(restore)
            return
        self.exec_(mask)
        if local:
            far, done = self.uniq("far"), self.uniq("pub")
            a(f"s_cmp_eq_u32 s{sMODE}, 2")
            a(f"s_cbranch_scc0 {far}")
            for t in stores:
                a(t.replace(" sc1", ""))
            self.far.append((far, stores, done))
            a.label(done)
        else:
            for t in stores:
                a(t)
        if restore is not None:
            self.exec_(restore)

    def emit_far(self):
        a = self.a
        for far, stores, done in self.far:
            a.label(far)
            for t in stores:
                a(t)
            a(f"s_branch {done}")
        self.far = []

    def row_reduce(self, op, regs):
        for sh in (8, 4, 2, 1):
            for r in regs:
                self.a(f"{op}_dpp v{r}, v{r}, v{r} row_ror:{sh} row_mask:0xf bank_mask:0xf")

    def swap_reduce(self, op, r, tmp, which):
        a = self.a
        a(f"v_mov_b32 v{tmp}, v{r}")
        a(f"v_permlane{which}_swap_b32 v{r}, v{tmp}")
        a(f"{op} v{r}, v{r}, v{tmp}")

    def tr_addr(self, vd, rowshift, wide, t1, t2, t3):
        a = self.a
        a(f"v_bfe_u32 v{t1}, v0, 2, 2")
        a(f"v_lshrrev_b32 v{t2}, 4, v0")
        a(f"v_lshl_add_u32 v{t1}, v{t2}, 2, v{t1}")
        if wide:
            a(f"v_and_b32 v{t2}, 7, v{t1}")
        else:
            a(f"v_bfe_u32 v{t2}, v{t1}, 1, 2")
        a(f"v_lshlrev_b32 v{t2}, 5, v{t2}")
        a(f"v_lshl_add_u32 v{vd}, v{t1}, {rowshift}, v{t2}")
        a(f"v_and_b32 v{t3}, 3, v0")
        a(f"v_lshl_add_u32 v{vd}, v{t3}, 3, v{vd}")

    def half_fold(self, r, t):
        a = self.a
        a(f"v_permlane16_swap_b32 v{r}, v{r+1}")
        a(f"v_permlane16_swap_b32 v{r+2}, v{r+3}")
        a(f"v_add_f32 v{r}, v{r}, v{r+1}")
        a(f"v_add_f32 v{r+2}, v{r+2}, v{r+3}")
        a(f"v_add_f32_dpp v{t}, v{r}, v{r} row_ror:8 row_mask:0xf bank_mask:0x3")
        a(f"v_add_f32_dpp v{t}, v{r+2}, v{r+2} row_ror:8 row_mask:0xf bank_mask:0xc")
        a(f"v_add_f32_dpp v{t}, v{t}, v{t} row_half_mirror row_mask:0xf bank_mask:0xf")
        a(f"v_add_f32_dpp v{t}, v{t}, v{t} quad_perm:[1,0,3,2] row_mask:0xf bank_mask:0xf")
        a(f"v_add_f32_dpp v{t}, v{t}, v{t} quad_perm:[2,3,0,1] row_mask:0xf bank_mask:0xf")

    def glu_ids(self, sn, sc, si):
        a = self.a
        a(f"s_min_u32 s{sn}, s{sG}, 4")
        a(f"s_mul_i32 s{sc}, s{sG}, 3")
        a(f"s_add_u32 s{sc}, s{sc}, s{sn}")
        a(f"s_lshr_b32 s{sn}, s{sJ}, 3")
        a(f"s_add_u32 s{sc}, s{sc}, s{sn}")
        a(f"s_and_b32 s{si}, s{sJ}, 7")
        a(f"s_cmp_lt_u32 s{sG}, 4")
        a(f"s_cselect_b32 s{sn}, 32, 24")
        a(f"s_cmp_lt_u32 s{sJ}, s{sn}")

    def prologue(self):
        a = self.a
        a("s_load_dwordx16 s[4:19], s[0:1], 0")
        a("s_load_dwordx8 s[20:27], s[0:1], 64")
        a("s_cmp_ge_u32 s2, 256")
        a(f"s_cbranch_scc1 {self.lab('end')}")
        if self.stamps or self.o.get("amp"):
            a("s_memrealtime s[98:99]")
        a("v_lshrrev_b32 v1, 6, v0")
        a("v_and_b32 v0, 63, v0")
        a(f"s_and_b32 s{sG}, s2, 7")
        a(f"v_readfirstlane_b32 s{sW}, v1")
        a(f"s_lshr_b32 s{sJ}, s2, 3")
        a(f"s_and_b32 s{sB}, s{sJ}, 1")
        a(f"s_lshr_b32 s{sS}, s{sJ}, 1")
        a(f"s_mov_b32 s{sCAP}, 0x80000")
        a(f"s_cmp_lg_u32 s{sW}, 0")
        a(f"s_cbranch_scc1 {self.lab('notloader')}")

    def loader(self):
        a = self.a
        N = self.N
        rot, ilv = self.o.get("rot"), self.o.get("ilv")
        a.c("================= loader wave: streams this CU's share of the weights and of K / V into LDS =================")
        self.init_stamps([0, 1, 2])
        a("s_setprio 3")
        vWQ, vGU, vK, vV, vW1, vSM, vP = 2, 3, 4, 8, 10, 16, 17
        sOff, sProg = 68, 69
        a("v_lshrrev_b32 v18, 4, v0")
        a("v_lshlrev_b32 v19, 1, v18")
        a("v_and_b32 v20, 7, v0")
        a("v_xor_b32 v20, v19, v20")
        a("v_lshlrev_b32 v20, 4, v20")
        a("v_lshrrev_b32 v21, 3, v0")
        a(f"v_lshl_add_u32 v{vWQ}, v21, 13, v20")
        a(f"s_lshr_b32 s33, s{sJ}, 3")
        a("s_lshl_b32 s33, s33, 20")
        a(f"s_lshl_b32 s34, s{sG}, 10")
        a("s_add_u32 s33, s33, s34")
        a(f"s_and_b32 s34, s{sJ}, 7")
        a("s_lshl_b32 s71, s34, 7")
        a("s_add_u32 s33, s33, s71")
        a(f"s_mov_b32 s{sOff}, 0")
        a(f"s_mov_b32 m0, {W0}")
        a(f"s_mov_b32 s{sProg}, {-N}")
        a(f"v_mov_b32 v{vSM}, {SM:#x}")
        a("s_waitcnt lgkmcnt(0)")
        self.srd(36, 10, "s33", 127 * 8192 + 128)
        if self.stamps:
            a("s_mov_b64 s[80:81], s[98:99]")

        def loop(name, vo, srd, step, end, N):
            top = self.uniq("ld" + name)
            kv = name in "kvt"
            itstep, wrap = 4096, 0xffff
            if ilv and kv:
                assert ilv == 4096
                itstep, wrap, end = 65536, 0xfffff, end * 16
            rr = rot and kv
            if rr:
                endm = dict(k=KB + 65536, v=VB + 57344, t=W2 + 8192)[name]
            a.label(top)
            for k in range(4):
                a(f"buffer_load_dwordx4 v{vo[k % len(vo)]}, s[{srd}:{srd+3}], s{sOff} offen offset:{k*1024} nt lds")
                if step != 1024:
                    a(f"s_add_u32 s{sOff}, s{sOff}, {step-1024}")
                a(f"s_waitcnt vmcnt({N})")
            a(f"s_add_u32 s{sProg}, s{sProg}, 4")
            a("s_mov_b64 exec, 1")
            a(f"v_mov_b32 v{vP}, s{sProg}")
            a(f"ds_write_b32 v{vSM}, v{vP} offset:{F_PROG}")
            a("s_mov_b64 exec, -1")
            a(f"s_add_u32 s{sOff}, s{sOff}, {itstep}")
            if rr:
                a(f"s_and_b32 s{sOff}, s{sOff}, {wrap:#x}")
            a("s_add_u32 m0, m0, 4096")
            a(f"s_cmp_lg_u32 m0, {endm}" if rr else f"s_cmp_lg_u32 s{sOff}, {end}")
            a(f"s_cbranch_scc1 {top}")

        assert self.o["order"][0] == "q"
        loop("q", [vWQ], 36, 65536, 16 * 65536, N)
        a("s_movk_i32 s33, 3584")
        a(f"v_mad_u32_u24 v{vGU}, v21, s33, v20")
        a(f"v_lshl_add_u32 v{vW1}, v21, 10, v20")
        self.glu_ids(33, 34, 35)
        a("s_cselect_b32 s72, 1, 0")
        a(f"s_mul_i32 s33, s35, {64*3584}")
        a("s_lshl_b32 s70, s34, 7")
        a("s_add_u32 s33, s33, s70")
        self.srd(40, 16, "s33", 63 * 3584 + 128)
        self.srd(44, 18, "s33", 63 * 3584 + 128)
        a("s_lshl_b32 s33, s34, 16")
        a("s_add_u32 s33, s33, s71")
        self.srd(60, 20, "s33", 63 * 1024 + 128)
        a("s_cmp_lg_u32 s72, 0")
        for d, p in ((40, 16), (44, 18), (60, 20)):
            a(f"s_cselect_b32 s{d}, s{d}, s{p}")
            a(f"s_cselect_b32 s{d+1}, s{d+1}, s{p+1}")
            a(f"s_cselect_b32 s{d+2}, s{d+2}, 0")
        a(f"s_lshl_b32 s33, s{sB}, 3")
        a(f"s_add_u32 s33, s33, s{sG}")
        a("s_lshl_b32 s33, s33, 23")
        a(f"s_lshl_b32 s34, s{sS}, {12 if ilv else 16}")
        a("s_add_u32 s33, s33, s34")
        a(f"s_add_u32 s33, s33, {28672*256}")
        kvsize = 65536 if not ilv else (1048576 - 15 * ilv)
        self.srd(48, 6, "s33", kvsize)
        self.srd(52, 8, "s33", kvsize)
        a("v_and_b32 v19, 15, v0")
        a("v_xor_b32 v20, v18, v19")
        a("v_lshlrev_b32 v20, 4, v20")
        a(f"v_lshl_add_u32 v{vK}, v18, 8, v20")
        for k in range(1, 4):
            a(f"v_xor_b32 v{vK+k}, {k << 6:#x}, v{vK}")
        a("v_lshlrev_b32 v20, 1, v18")
        a("v_xor_b32 v20, v20, v19")
        a("v_lshlrev_b32 v20, 4, v20")
        a(f"v_lshl_add_u32 v{vV}, v18, 8, v20")
        a(f"v_xor_b32 v{vV+1}, 0x80, v{vV}")
        a(f"s_lshl_b32 s33, s{sG}, 2")
        a(f"s_lshr_b32 s34, s{sJ}, 3")
        a("s_add_u32 s33, s33, s34")
        a("s_lshl_b32 s33, s33, 17")
        a("s_add_u32 s33, s33, s71")
        self.srd(56, 12, "s33", 127 * 1024 + 128)
        if rot:
            a(f"s_mul_i32 s73, s{sJ}, {rot[0]}")
            a(f"s_mul_i32 s33, s{sG}, {rot[1]}")
            a("s_add_u32 s73, s73, s33")
            a(f"s_lshl_b32 s73, s73, {16 if ilv else 12}")
            a(f"s_and_b32 s73, s73, {0xfffff if ilv else 0xffff:#x}")
        a("s_barrier")
        spec = dict(g=([vGU], 40, 28672, 0, 8 * 28672, W1), u=([vGU], 44, 28672, 0, 8 * 28672, W2),
                    k=([vK, vK + 1, vK + 2, vK + 3], 48, 1024, 0, 65536, KB), v=([vV, vV + 1], 52, 1024, 0, 57344, VB),
                    t=([vV, vV + 1], 52, 1024, 57344, 65536, W2), o=([vW1], 56, 8192, 0, 8 * 8192, W0),
                    p=([vW1], 56, 8192, 8 * 8192, 16 * 8192, W0 + 8192),
                    d=([vW1], 60, 8192, 0, 8 * 8192, W1))
        nwin = self.o.get("win", {})
        waited, m0, prev = set(), W0 + 16384, "q"
        for p in self.o["order"][1:]:
            vo, srd, step, start, end, lds = spec[p]
            if not self.o.get("bare"):
                if p in "op" and "q" not in waited:
                    self.wait_flag(vSM, F_CQ, 4, 22)
                    waited.add("q")
                if p in "td" and "g" not in waited:
                    self.wait_flag(vSM, F_CG, 1, 22)
                    waited.add("g")
            if p in nwin:
                a(f"s_add_u32 s{sProg}, s{sProg}, {N - nwin[p]}")
                N = nwin[p]
            if (p, prev) in (("t", "v"), ("p", "o")):
                pass
            elif rot and p in "kv":
                a(f"s_mov_b32 s{sOff}, s73")
            elif rot and p == "t":
                a(f"s_add_u32 s{sOff}, s73, {57344 * (16 if ilv else 1)}")
                a(f"s_and_b32 s{sOff}, s{sOff}, {0xfffff if ilv else 0xffff:#x}")
            else:
                a(f"s_mov_b32 s{sOff}, {start * (16 if ilv and p == 't' else 1)}")
            if m0 != lds:
                a(f"s_mov_b32 m0, {lds}")
            loop(p, vo, srd, step, end, N)
            m0, prev = lds + CNT[p] * 1024, p
        self.stamp(1)
        a("s_mov_b64 exec, 1")
        for n in range((N - 1) // 4 * 4, -1, -4):
            a(f"v_mov_b32 v{vP}, {184 - n}")
            a(f"s_waitcnt vmcnt({n})")
            a(f"ds_write_b32 v{vSM}, v{vP} offset:{F_PROG}")
        self.stamp(2)
        self.amp("stream")
        self.flush_stamps()
        a("s_endpgm")

    def gwave(self):
        a = self.a
        TH = self.TH
        a.c("================= G wave: layernorm, GLU branch, final reduction =================")
        self.init_stamps(self.o.get("gslots", [3, 15, 11, 12, 13, 14]))
        vSM, vT, vOne, vXF, vOO, vHI, vF = 2, 3, 60, 61, 62, 56, 57
        a("s_getreg_b32 s70, hwreg(HW_REG_XCC_ID, 0, 4)")
        a(f"v_mov_b32 v{vSM}, {SM:#x}")
        a(f"v_lshl_add_u32 v1, v0, 2, v{vSM}")
        a("v_mov_b32 v4, 0")
        a(f"ds_write_b32 v1, v4 offset:{FL}")
        a("s_add_u32 s70, s70, 1")
        a(f"v_mov_b32 v{vHI}, s70")
        a("v_lshlrev_b32 v12, 5, v0")
        a("v_bfe_u32 v13, v0, 3, 1")
        a("v_bfe_u32 v14, v0, 4, 1")
        a("v_lshl_add_u32 v13, v13, 1, v14")
        a(f"s_lshl_b32 s33, s{sG}, 8")
        a(f"s_lshl_b32 s34, s{sJ}, 3")
        a("s_add_u32 s33, s33, s34")
        a(f"v_lshl_add_u32 v{vOO}, v13, 1, s33")
        a(f"v_mov_b32 v{vOne}, 1")
        a(f"s_movk_i32 s{sM10}, 0x3ff")
        a(f"s_mov_b32 s{sHI}, 0xffff0000")
        a(f"s_lshl_b32 s71, s{sG}, 5")
        a(f"s_add_u32 s72, s71, s{sJ}")
        a("v_and_b32 v57, 31, v0")
        a("s_waitcnt lgkmcnt(0)")
        self.srd(48, 24, None, 256)
        self.srd(36, 4, None, 2048)
        a("s_mov_b64 exec, 1")
        a(f"buffer_store_byte v{vHI}, off, s[48:51], s72")
        a("s_mov_b64 exec, -1")
        self.srd(40, 26, None, WS_USE)
        a("buffer_load_dwordx4 v[4:7], v12, s[36:39], 0 offen")
        a("buffer_load_dwordx4 v[8:11], v12, s[36:39], 0 offen offset:16")
        a(f"buffer_load_dword v{vT}, off, s[40:43], 0 sc1")
        a(f"buffer_load_ushort v{vXF}, v{vOO}, s[36:39], 0 offen")
        if self.o.get("ampskew") is not None:
            a("s_lshl_b32 s33, s2, 2")
            a("s_add_u32 s33, s33, 256")
            a("v_mov_b32 v13, s98")
            a("s_mov_b64 exec, 1")
            a("buffer_store_dword v13, off, s[40:43], s33 sc1")
            a("s_mov_b64 exec, -1")
        self.srd(44, 22, None, 2048)
        a("s_barrier")
        if self.o.get("bare"):
            a("s_endpgm")
        a("v_lshrrev_b32 v13, 5, v0")
        a(f"v_mul_u32_u24 v13, {XNS}, v13")
        a("v_bfe_u32 v14, v0, 1, 4")
        a("v_lshl_add_u32 v13, v14, 6, v13")
        a("v_and_b32 v14, 1, v0")
        a("v_lshl_add_u32 v13, v14, 3, v13")
        a(f"v_add_u32 v13, v{vSM}, v13")
        a("s_waitcnt vmcnt(0)")
        a("buffer_load_ubyte v58, v57, s[48:51], s71 offen sc1")
        X = 16
        for i in range(8):
            a(f"v_lshlrev_b32 v{X+2*i}, 16, v{4+i}")
            a(f"v_and_b32 v{X+2*i+1}, s{sHI}, v{4+i}")
        a(f"v_add_u32 v{vT}, 1, v{vT}")
        for i in range(4):
            a(f"v_add_f32 v{4+i}, v{X+i}, v{X+4+i}")
        for i in range(4):
            a(f"v_add_f32 v{4+i}, v{4+i}, v{X+8+i}")
        for i in range(4):
            a(f"v_add_f32 v{4+i}, v{4+i}, v{X+12+i}")
        a("v_add_f32 v4, v4, v5")
        a("v_add_f32 v6, v6, v7")
        a("v_add_f32 v4, v4, v6")
        self.row_reduce("v_add_f32", [4])
        self.swap_reduce("v_add_f32", 4, 5, 16)
        a("v_mul_f32 v4, 0x3b000000, v4")
        for i in range(16):
            a(f"v_sub_f32 v{32+i}, v{X+i}, v4")
        a("v_mul_f32 v5, v32, v32")
        a("v_mul_f32 v6, v33, v33")
        for i in range(2, 16, 2):
            a(f"v_fmac_f32 v5, v{32+i}, v{32+i}")
            a(f"v_fmac_f32 v6, v{33+i}, v{33+i}")
        a("v_add_f32 v5, v5, v6")
        self.row_reduce("v_add_f32", [5])
        self.swap_reduce("v_add_f32", 5, 6, 16)
        a("v_mul_f32 v5, 0x3b000000, v5")
        a("v_cvt_pk_bf16_f32 v4, v4, v5")
        a(f"v_and_b32 v5, s{sHI}, v4")
        a("v_lshlrev_b32 v4, 16, v4")
        a(f"v_add_f32 v5, {EPS:#x}, v5")
        a("v_cvt_pk_bf16_f32 v5, v5, v5")
        a(f"v_and_b32 v5, s{sHI}, v5")
        a("v_sqrt_f32 v5, v5")
        a("v_cvt_pk_bf16_f32 v5, v5, v5")
        a(f"v_and_b32 v5, s{sHI}, v5")
        a("v_rcp_f32 v5, v5")
        for i in range(16):
            a(f"v_sub_f32 v{X+i}, v{X+i}, v4")
        for i in range(8):
            a(f"v_cvt_pk_bf16_f32 v{32+i}, v{X+2*i}, v{X+2*i+1}")
        for i in range(8):
            a(f"v_lshlrev_b32 v{X+2*i}, 16, v{32+i}")
            a(f"v_and_b32 v{X+2*i+1}, s{sHI}, v{32+i}")
        for i in range(16):
            a(f"v_mul_f32 v{X+i}, v{X+i}, v5")
        for i in range(8):
            a(f"v_cvt_pk_bf16_f32 v{32+i}, v{X+2*i}, v{X+2*i+1}")
        for gq in range(4):
            a(f"ds_write_b64 v13, v[{32+2*gq}:{33+2*gq}] offset:{XN+16*gq}")
        a("s_mov_b64 exec, 1")
        a(f"ds_write_b32 v{vSM}, v{vT} offset:{F_TAG}")
        a(f"ds_write_b32 v{vSM}, v{vOne} offset:{F_XN}")
        a("s_mov_b64 exec, -1")
        self.stamp(3)
        a(f"v_and_b32 v{vT}, s{sM10}, v{vT}")
        if self.o.get("nolocal"):
            a("s_waitcnt vmcnt(0)")
            a(f"s_mov_b32 s{sMODE}, 1")
        else:
            top, got = self.uniq("hello"), self.uniq("hellod")
            a("s_mov_b32 s73, 10")
            a.label(top)
            a("s_waitcnt vmcnt(0)")
            a("v_cmp_eq_u32 vcc, 0, v58")
            a(f"s_cbranch_vccz {got}")
            a(f"v_cmp_ne_u32 s[74:75], v58, v{vHI}")
            a("s_andn2_b64 s[74:75], s[74:75], vcc")
            a(f"s_cbranch_scc1 {got}")
            a("s_sub_u32 s73, s73, 1")
            a(f"s_cbranch_scc1 {got}")
            a("buffer_load_ubyte v58, v57, s[48:51], s71 offen sc1")
            a(f"s_branch {top}")
            a.label(got)
            a(f"v_cmp_ne_u32 vcc, v58, v{vHI}")
            a("s_cmp_eq_u64 vcc, 0")
            a(f"s_cselect_b32 s{sMODE}, 2, 1")
        a("s_mov_b64 exec, 1")
        a(f"v_mov_b32 v4, s{sMODE}")
        a(f"ds_write_b32 v{vSM}, v4 offset:{F_MODE}")
        a("s_mov_b64 exec, -1")
        a(f"s_lshl_b32 s33, s{sG}, 2")
        a(f"s_lshr_b32 s34, s{sJ}, 3")
        a("s_add_u32 s33, s33, s34")
        a("s_lshl_b32 s33, s33, 13")
        a(f"s_and_b32 s34, s{sJ}, 7")
        a("s_lshl_b32 s34, s34, 4")
        a("s_add_u32 s33, s33, s34")
        a(f"s_add_u32 s76, s33, {FX}")
        a(f"v_lshlrev_b32 v{vF}, 7, v0")
        a(f"v_lshlrev_b32 v{vXF}, 16, v{vXF}")
        self.glu_ids(70, 71, 72)
        a(f"s_cbranch_scc1 {self.lab('hasglu')}")
        self.signal(vSM, F_CG, vOne)
        a(f"s_branch {self.lab('final')}")
        a.label(self.lab("hasglu"))
        a("v_lshrrev_b32 v4, 4, v0")
        a("v_and_b32 v5, 1, v0")
        a(f"v_mul_u32_u24 v6, {XNS}, v5")
        a("v_lshl_add_u32 v6, v4, 4, v6")
        a("s_lshl_b32 s33, s72, 7")
        a(f"s_add_u32 s33, s33, {SM+XN}")
        a("v_add_u32 v6, s33, v6")
        a("ds_read_b128 v[8:11], v6")
        a("ds_read_b128 v[12:15], v6 offset:64")
        a("v_lshlrev_b32 v63, 4, v4")
        a("v_lshl_add_u32 v63, v5, 9, v63")
        self.tr_addr(16, 7, False, 17, 18, 19)
        for ct in range(1, 4):
            a(f"v_xor_b32 v{16+ct}, {ct << 5:#x}, v16")
        a("s_lshl_b32 s33, s71, 13")
        a(f"s_add_u32 s74, s33, {GX}")
        a("s_lshl_b32 s34, s72, 10")
        a("s_add_u32 s73, s74, s34")
        a("s_add_u32 s75, s74, 4096")
        self.wait_flag(vSM, F_PROG, max(TH["g"], TH["u"]), 20)
        AB, ACC = 64, 24
        for mat in range(2):
            for ct in range(4):
                for ks in range(2):
                    for t in range(2):
                        r = AB + (ct * 2 + ks) * 4 + t * 2
                        a(f"ds_read_b64_tr_b16 v[{r}:{r+1}], v{16+ct} offset:{W1 + mat*8192 + ks*4096 + t*2048}")
            a("s_waitcnt lgkmcnt(0)")
            if mat == 1:
                self.signal(vSM, F_CG, vOne)
            for ks in range(2):
                for ct in range(4):
                    d = ACC + (mat * 4 + ct) * 4
                    r = AB + ct * 8 + 4 * ks
                    a(f"{MFMA} v[{d}:{d+3}], v[{r}:{r+3}], v[{8+4*ks}:{11+4*ks}], {'0' if ks == 0 else f'v[{d}:{d+3}]'}")
            if mat == 0:
                a("s_nop 3")
        for r in range(ACC, ACC + 32):
            self.tag(r, vT, sM10)
        self.publish("g", [f"buffer_store_dwordx4 v[{ACC+4*tile}:{ACC+4*tile+3}], v63, s[40:43], s73 offen offset:{(tile >> 2)*256 + (tile & 3)*64} sc1" for tile in range(8)], M_J01)
        a("v_lshlrev_b32 v6, 4, v0")
        gl = [f"buffer_load_dwordx4 v[{64+4*t}:{67+4*t}], v6, s[40:43], s{74 + (t >> 2)} offen offset:{1024*(t & 3)} sc1" for t in range(8)]
        if "g" in self.o["pref"]:
            for t in gl:
                a(t + self.o.get("gprefl", " nt"))
            if self.o.get("ping"):
                a("s_waitcnt vmcnt(0)")
                for t in gl:
                    a(t)
        a("v_lshrrev_b32 v7, 5, v0")
        a(f"v_mul_u32_u24 v7, {HLS}, v7")
        a("v_and_b32 v8, 3, v0")
        a("v_lshl_add_u32 v7, v8, 4, v7")
        a("v_bfe_u32 v8, v0, 2, 1")
        a("v_lshl_add_u32 v7, v8, 3, v7")
        a("v_bfe_u32 v8, v0, 3, 1")
        a("v_lshl_add_u32 v7, v8, 6, v7")
        a(f"v_add_u32 v7, v{vSM}, v7")
        a(f"v_mul_u32_u24 v59, {HLS}, v5")
        a("v_lshl_add_u32 v59, v4, 4, v59")
        a(f"v_add_u32 v59, v{vSM}, v59")
        if self.o.get("gdelay"):
            self.wait_flag(vSM, F_PROG, self.o["gdelay"], 10)
        self.poll(gl, list(range(64, 96)), vT, sM10, list(range(24, 40)), "g")
        for h in (16, 8, 4):
            for e in range(h):
                a(f"v_add_f32 v{64+e}, v{64+e}, v{64+h+e}")
        a("v_cvt_pk_bf16_f32 v64, v64, v65")
        a("v_cvt_pk_bf16_f32 v66, v66, v67")
        a("v_mov_b32 v68, v64")
        a("v_mov_b32 v70, v66")
        a("v_permlane16_swap_b32 v64, v68")
        a("v_permlane16_swap_b32 v66, v70")
        for base in (64, 68):
            a(f"v_and_b32 v{base+3}, s{sHI}, v{base+2}")
            a(f"v_lshlrev_b32 v{base+2}, 16, v{base+2}")
            a(f"v_and_b32 v{base+1}, s{sHI}, v{base}")
            a(f"v_lshlrev_b32 v{base}, 16, v{base}")
        for e in range(4):
            a(f"v_mul_f32 v{64+e}, {LOG2E ^ 0x80000000:#x}, v{64+e}")
        for e in range(4):
            a(f"v_exp_f32 v{64+e}, v{64+e}")
        for e in range(4):
            a(f"v_add_f32 v{64+e}, 1.0, v{64+e}")
        for e in range(4):
            a(f"v_rcp_f32 v{64+e}, v{64+e}")
        a("v_cvt_pk_bf16_f32 v64, v64, v65")
        a("v_cvt_pk_bf16_f32 v66, v66, v67")
        a(f"v_and_b32 v67, s{sHI}, v66")
        a("v_lshlrev_b32 v66, 16, v66")
        a(f"v_and_b32 v65, s{sHI}, v64")
        a("v_lshlrev_b32 v64, 16, v64")
        for e in range(4):
            a(f"v_mul_f32 v{64+e}, v{64+e}, v{68+e}")
        a("v_cvt_pk_bf16_f32 v64, v64, v65")
        a("v_cvt_pk_bf16_f32 v65, v66, v67")
        self.exec_((0x0000FFFF, 0x0000FFFF))
        a(f"ds_write_b64 v7, v[64:65] offset:{HL}")
        self.exec_(-1)
        a(f"ds_read_b128 v[8:11], v59 offset:{HL}")
        a(f"ds_read_b128 v[12:15], v59 offset:{HL+64}")
        a("v_lshlrev_b32 v63, 4, v4")
        a("v_lshl_add_u32 v63, v5, 17, v63")
        a("v_bfe_u32 v20, v0, 1, 1")
        a("v_lshl_add_u32 v63, v20, 6, v63")
        a("s_lshl_b32 s33, s71, 7")
        a("s_lshl_b32 s34, s72, 14")
        a("s_add_u32 s73, s33, s34")
        a(f"s_add_u32 s73, s73, {FX + 32*128}")
        a(f"s_add_u32 s74, s73, {FXS}")
        a("s_mov_b32 s34, 0xcccccccc")
        a("s_mov_b32 s35, 0xcccccccc")
        self.stamp(15)
        self.wait_flag(vSM, F_PROG, TH["d"], 20)
        for ct in range(4):
            for ks in range(2):
                for t in range(2):
                    r = AB + (ct * 2 + ks) * 4 + t * 2
                    a(f"ds_read_b64_tr_b16 v[{r}:{r+1}], v{16+ct} offset:{W1 + ks*4096 + t*2048}")
        for ks in range(2):
            for ct in range(4):
                if ks == 0:
                    a(f"s_waitcnt lgkmcnt({12-4*ct})")
                d = ACC + ct * 4
                r = AB + (ct * 2 + ks) * 4
                a(f"{MFMA} v[{d}:{d+3}], v[{r}:{r+3}], v[{8+4*ks}:{11+4*ks}], {'0' if ks == 0 else f'v[{d}:{d+3}]'}")
        for h in range(2):
            for e in range(4):
                a(f"v_cndmask_b32 v{ACC+8*h+e}, v{ACC+8*h+e}, v{ACC+8*h+4+e}, s[34:35]")
        for h in range(2):
            for e in range(4):
                self.tag(ACC + 8 * h + e, vT, sM10)
        self.publish("y", [f"buffer_store_dwordx4 v[{ACC+8*h}:{ACC+8*h+3}], v63, s[40:43], s{73 + h} offen sc1" for h in range(2)], M_J03, local=False)
        self.stamp(11)
        a.label(self.lab("final"))
        for e in range(4):
            a(f"v_mov_b32 v{8+e}, 0")
        a("s_barrier")
        a("s_setprio 2")
        ld = f"buffer_load_dwordx4 v[8:11], v{vF}, s[40:43], s76 offen sc1"
        if self.o.get("ysplit", 1):
            a("s_waitcnt vmcnt(0)")
            self.exec_((0, 0x0FFFFFFF))
            self.poll([ld], [8, 9, 10, 11], vT, sM10, [12, 13, 16], "y", (0, 0x0FFFFFFF))
            self.exec_(-1)
            self.half_fold(8, 14)
            a("v_cvt_pk_bf16_f32 v14, v14, v14")
            a(f"v_and_b32 v14, s{sHI}, v14")
            a("v_mov_b32 v15, v14")
            a("v_permlane32_swap_b32 v15, v14")
            a(f"v_mul_f32 v9, {LOG2E ^ 0x80000000:#x}, v14")
            a("v_exp_f32 v9, v9")
            a("v_add_f32 v9, 1.0, v9")
            a("v_rcp_f32 v9, v9")
            a("v_mul_f32 v14, v14, v9")
            a("v_cvt_pk_bf16_f32 v14, v14, v14")
            a(f"v_and_b32 v14, s{sHI}, v14")
            self.exec_((0xFFFFFFFF, 0))
            self.stamp(12)
            a("s_barrier")
            self.poll([ld], [8, 9, 10, 11], vT, sM10, [12, 13, 16], "s", (0xFFFFFFFF, 0))
            self.stamp(13)
            self.half_fold(8, 12)
            a("v_cvt_pk_bf16_f32 v12, v12, v12")
            a(f"v_and_b32 v12, s{sHI}, v12")
        else:
            self.exec_((0xFFFFFFFF, 0x0FFFFFFF))
            self.stamp(12)
            a("s_barrier")
            self.poll([ld], [8, 9, 10, 11], vT, sM10, [12, 13], "s")
            self.stamp(13)
            self.exec_(-1)
            self.half_fold(8, 12)
            a("v_cvt_pk_bf16_f32 v12, v12, v12")
            a(f"v_and_b32 v12, s{sHI}, v12")
            a("v_mov_b32 v14, v12")
            a("v_permlane32_swap_b32 v12, v14")
            a(f"v_mul_f32 v9, {LOG2E ^ 0x80000000:#x}, v14")
            a("v_exp_f32 v9, v9")
            a("v_add_f32 v9, 1.0, v9")
            a("v_rcp_f32 v9, v9")
            a("v_mul_f32 v14, v14, v9")
            a("v_cvt_pk_bf16_f32 v14, v14, v14")
            a(f"v_and_b32 v14, s{sHI}, v14")
        a("v_mul_f32 v12, v12, v14")
        a("v_cvt_pk_bf16_f32 v12, v12, v12")
        a(f"v_and_b32 v12, s{sHI}, v12")
        a(f"v_add_f32 v12, v12, v{vXF}")
        a("v_cvt_pk_bf16_f32 v12, v12, v12")
        self.exec_((0x01010101, 0))
        a(f"buffer_store_short v12, v{vOO}, s[44:47], 0 offen")
        a("s_cmp_lg_u32 s2, 0")
        a(f"s_cbranch_scc1 {self.lab('noepoch')}")
        a("s_mov_b64 exec, 1")
        a(f"ds_read_b32 v4, v{vSM} offset:{F_TAG}")
        a("s_waitcnt lgkmcnt(0)")
        a("buffer_store_dword v4, off, s[40:43], 0 sc1")
        a.label(self.lab("noepoch"))
        self.stamp(14)
        self.amp("end")
        self.flush_stamps()
        a("s_endpgm")
        self.emit_far()

    def cwave(self):
        a = self.a
        TH, BASE = self.TH, self.BASE
        a.c("================= compute waves =================")
        cs = self.o.get("cslots")
        self.init_stamps(cs[0] if cs else [4, 5, 6, 7, 8, 9, 10])
        who = lambda slot: (6 if slot in cs[1] else 0) if cs else (6 if slot in (8, 9) else 0)
        sC = 70
        vSM, vT, vT8, vOne, vQ, vH = 2, 3, 4, 5, 6, 7
        a(f"s_sub_u32 s{sC}, s{sW}, 2")
        a(f"v_mov_b32 v{vSM}, {SM:#x}")
        a(f"v_mov_b32 v{vOne}, 1")
        a(f"s_movk_i32 s{sM10}, 0x3ff")
        a(f"s_movk_i32 s{sM8}, 0xff")
        a(f"s_mov_b32 s{sHI}, 0xffff0000")
        if not self.o.get("noprefetch"):
            a(f"s_cmp_lg_u32 s{sC}, 7")
            a(f"s_cbranch_scc1 {self.lab('nopf')}")
            a("s_getpc_b64 s[34:35]")
            a.label(self.lab("pcref"))
            a(f"s_sub_u32 s34, s34, {self.lab('pcref')}-{self.name}")
            a("s_subb_u32 s35, s35, 0")
            a("v_lshlrev_b32 v8, 7, v0")
            a(f"v_min_u32 v9, {self.lab('codeend')}-{self.name}-4, v8")
            a("global_load_dword v9, v9, s[34:35]")
            a("v_add_u32 v8, 0x2000, v8")
            a(f"v_min_u32 v8, {self.lab('codeend')}-{self.name}-4, v8")
            a("global_load_dword v10, v8, s[34:35]")
            a.label(self.lab("nopf"))
        a(f"v_lshrrev_b32 v{vQ}, 4, v0")
        a(f"v_lshlrev_b32 v{vQ}, 4, v{vQ}")
        a(f"v_bfe_u32 v{vH}, v0, 2, 2")
        vKA, vQB, vMW, vMR, vPW, vPR, vVA, vVT, vPub = 12, 16, 17, 18, 19, 20, 21, 22, 23
        a("v_and_b32 v8, 15, v0")
        a("v_lshrrev_b32 v11, 4, v0")
        a("v_xor_b32 v11, v8, v11")
        a("v_lshlrev_b32 v11, 4, v11")
        a("v_lshl_add_u32 v11, v8, 8, v11")
        a(f"s_lshl_b32 s33, s{sC}, 13")
        a(f"s_add_u32 s33, s33, {KB}")
        a(f"v_add_u32 v{vKA}, s33, v11")
        for ks in range(1, 4):
            a(f"v_xor_b32 v{vKA+ks}, {ks << 6:#x}, v{vKA}")
        a(f"v_mul_u32_u24 v{vQB}, {QLS}, v{vH}")
        a(f"v_add3_u32 v{vQB}, v{vQB}, v{vQ}, v{vSM}")
        a(f"v_lshl_add_u32 v{vMR}, v{vH}, 5, v{vSM}")
        a(f"s_lshl_b32 s33, s{sC}, 2")
        a(f"v_add_u32 v{vMW}, s33, v{vMR}")
        a(f"v_mul_u32_u24 v{vPR}, {PLS}, v{vH}")
        a(f"v_add3_u32 v{vPR}, v{vPR}, v{vQ}, v{vSM}")
        a(f"s_lshl_b32 s33, s{sC}, 6")
        a(f"v_add_u32 v{vPW}, s33, v{vPR}")
        self.tr_addr(24, 8, True, 25, 26, 27)
        a(f"s_lshl_b32 s33, s{sC}, 6")
        a("s_and_b32 s33, s33, 0xc0")
        a("v_xor_b32 v24, s33, v24")
        a(f"v_add_u32 v{vVA}, {VB:#x}, v24")
        a(f"v_add_u32 v{vVT}, {W2:#x}, v24")
        a(f"v_lshl_add_u32 v{vPub}, v{vH}, 14, v{vQ}")
        a("v_and_b32 v25, 1, v0")
        a(f"v_lshl_add_u32 v{vPub}, v25, 6, v{vPub}")
        a(f"s_lshl_b32 s33, s{sG}, 16")
        a(f"s_lshl_b32 s34, s{sB}, 13")
        a("s_add_u32 s33, s33, s34")
        a(f"s_lshl_b32 s34, s{sS}, 9")
        a("s_add_u32 s33, s33, s34")
        a(f"s_add_u32 s76, s33, {OX}")
        a(f"s_lshl_b32 s34, s{sC}, 7")
        a("s_add_u32 s71, s76, s34")
        a(f"s_lshl_b32 s33, s{sG}, 10")
        a(f"s_lshl_b32 s34, s{sB}, 7")
        a("s_add_u32 s33, s33, s34")
        a(f"s_lshl_b32 s34, s{sS}, 3")
        a("s_add_u32 s33, s33, s34")
        a(f"s_add_u32 s77, s33, {MLX}")
        self.tr_addr(11, 7, False, 25, 26, 27)
        a(f"s_lshl_b32 s33, s{sC}, 5")
        a("v_xor_b32 v11, s33, v11")
        a("s_waitcnt lgkmcnt(0)")
        self.srd(40, 26, None, WS_USE)
        a("s_barrier")
        if self.o.get("bare"):
            a("s_endpgm")
        self.wait_flag(vSM, F_XN, 1, 8)
        a(f"ds_read_b32 v{vT}, v{vSM} offset:{F_TAG}")
        a(f"s_cmp_ge_u32 s{sC}, 4")
        a(f"s_cbranch_scc1 {self.lab('noq')}")
        a("v_and_b32 v26, 1, v0")
        a(f"v_mul_u32_u24 v25, {XNS}, v26")
        a(f"v_add_u32 v25, v25, v{vQ}")
        a(f"s_lshr_b32 s34, s{sJ}, 3")
        a("s_lshl_b32 s33, s34, 8")
        a(f"s_add_u32 s33, s33, {SM+XN}")
        a("v_add_u32 v25, s33, v25")
        for ks in range(4):
            a(f"ds_read_b128 v[{32+4*ks}:{35+4*ks}], v25 offset:{64*ks}")
        a(f"v_lshl_add_u32 v26, v26, 13, v{vQ}")
        a(f"s_lshl_b32 s33, s{sG}, 14")
        a("s_lshl_b32 s34, s34, 11")
        a("s_add_u32 s72, s33, s34")
        a(f"s_and_b32 s34, s{sJ}, 7")
        a("s_lshl_b32 s34, s34, 8")
        a("s_add_u32 s72, s72, s34")
        a(f"s_lshl_b32 s34, s{sC}, 6")
        a("s_add_u32 s72, s72, s34")
        a(f"s_add_u32 s72, s72, {QX}")
        a(f"s_lshl_b32 s34, s{sB}, 13")
        a("s_add_u32 s33, s33, s34")
        a(f"s_lshl_b32 s34, s{sC}, 9")
        a("s_add_u32 s33, s33, s34")
        a(f"s_add_u32 s73, s33, {QX}")
        a("s_add_u32 s74, s73, 4096")
        a("v_lshrrev_b32 v27, 5, v0")
        a("v_and_b32 v28, 31, v0")
        a("v_lshlrev_b32 v27, 11, v27")
        a("v_lshl_add_u32 v27, v28, 4, v27")
        a(f"s_mul_i32 s33, s{sC}, {QLS}")
        a(f"s_add_u32 s33, s33, {SM+QL}")
        a("v_lshl_add_u32 v28, v28, 3, s33")
        self.wait_flag(vSM, F_PROG, TH["q"], 8)
        for ks in range(4):
            for t in range(2):
                r = 48 + ks * 4 + t * 2
                a(f"ds_read_b64_tr_b16 v[{r}:{r+1}], v11 offset:{W0 + ks*4096 + t*2048}")
        a(f"v_and_b32 v{vT8}, s{sM8}, v{vT}")
        for ks in range(4):
            a(f"s_waitcnt lgkmcnt({6-2*ks})")
            r = 48 + ks * 4
            a(f"{MFMA} v[64:67], v[{r}:{r+3}], v[{32+4*ks}:{35+4*ks}], {'0' if ks == 0 else 'v[64:67]'}")
        self.signal(vSM, F_CQ, vOne)
        for e in range(4):
            a(f"v_add_u32 v{64+e}, 0x80, v{64+e}")
        for e in range(4):
            self.tag(64 + e, vT8, sM8)
        self.wait_flag(vSM, F_MODE, 1, 8)
        a(f"v_readfirstlane_b32 s{sMODE}, v8")
        self.publish("q", ["buffer_store_dwordx4 v[64:67], v26, s[40:43], s72 offen sc1"], M_J01)
        self.stamp(4)
        ql = ["buffer_load_dwordx4 v[32:35], v27, s[40:43], s73 offen sc1", "buffer_load_dwordx4 v[36:39], v27, s[40:43], s74 offen sc1"]
        if "q" in self.o["pref"]:
            for t in ql:
                a(t + self.o.get("qprefl", " nt"))
            if self.o.get("pinq"):
                a("s_waitcnt vmcnt(0)")
                for t in ql:
                    a(t)
        if self.o.get("qdelay"):
            self.wait_flag(vSM, F_PROG, self.o["qdelay"], 8)
        self.poll(ql, list(range(32, 40)), vT8, sM8, [40, 41, 42, 43, 44], "q")
        for e in range(8):
            a(f"v_xor_b32 v{32+e}, v{vT8}, v{32+e}")
        for e in range(4):
            a(f"v_add_f32 v{32+e}, v{32+e}, v{36+e}")
        a("v_permlane32_swap_b32 v32, v33")
        a("v_permlane32_swap_b32 v34, v35")
        a("v_add_f32 v32, v32, v33")
        a("v_add_f32 v34, v34, v35")
        a("v_mov_b32 v33, v32")
        a("v_mov_b32 v35, v34")
        a("v_permlane32_swap_b32 v32, v33")
        a("v_permlane32_swap_b32 v34, v35")
        a("v_cvt_pk_bf16_f32 v32, v32, v33")
        a("v_cvt_pk_bf16_f32 v33, v34, v35")
        self.exec_((0xFFFFFFFF, 0))
        a("ds_write_b64 v28, v[32:33]")
        self.signal(vSM, F_QR, vOne)
        self.stamp(5)
        a(f"s_branch {self.lab('scores')}")
        a.label(self.lab("noq"))
        self.wait_flag(vSM, F_MODE, 1, 8)
        a(f"v_readfirstlane_b32 s{sMODE}, v8")
        a.label(self.lab("scores"))
        a("s_waitcnt vmcnt(0) lgkmcnt(0)")
        a(f"v_and_b32 v{vT}, s{sM10}, v{vT}")
        a(f"s_lshl_b32 s34, s{sC}, 3")
        a(f"s_add_u32 s34, s34, {BASE['k'] + 8}")
        self.wait_flag(vSM, F_PROG, "s34", 8)
        KA, S = 48, 80
        for tt in range(2):
            for ks in range(4):
                r = KA + (tt * 4 + ks) * 4
                a(f"ds_read_b128 v[{r}:{r+3}], v{vKA+ks} offset:{4096*tt}")
        self.wait_flag(vSM, F_QR, 4, 8)
        for ks in range(4):
            a(f"ds_read_b128 v[{32+4*ks}:{35+4*ks}], v{vQB} offset:{QL + 64*ks}")
        for ks in range(4):
            a(f"s_waitcnt lgkmcnt({3-ks})")
            for tt in range(2):
                r = KA + (tt * 4 + ks) * 4
                d = S + 4 * tt
                a(f"{MFMA} v[{d}:{d+3}], v[{r}:{r+3}], v[{32+4*ks}:{35+4*ks}], {'0' if ks == 0 else f'v[{d}:{d+3}]'}")
        for rep in range(2):
            for i in range(4):
                a(f"v_cvt_pk_bf16_f32 v{32+i}, v{S+2*i}, v{S+2*i+1}")
            for i in range(4):
                a(f"v_lshlrev_b32 v{S+2*i}, 16, v{32+i}")
                a(f"v_and_b32 v{S+2*i+1}, s{sHI}, v{32+i}")
            if rep == 0:
                for i in range(8):
                    a(f"v_mul_f32 v{S+i}, {SCALE:#x}, v{S+i}")
        a(f"v_max3_f32 v32, v{S}, v{S+1}, v{S+2}")
        a(f"v_max3_f32 v33, v{S+3}, v{S+4}, v{S+5}")
        a(f"v_max3_f32 v32, v32, v{S+6}, v{S+7}")
        a("v_max_f32 v32, v32, v33")
        self.swap_reduce("v_max_f32", 32, 33, 16)
        self.swap_reduce("v_max_f32", 32, 33, 32)
        self.exec_(0x1111)
        a(f"ds_write_b32 v{vMW}, v32 offset:{MX}")
        self.signal(vSM, F_MAX, vOne)
        a(f"s_mov_b32 s34, {LOG2E:#x}")
        self.wait_flag(vSM, F_MAX, 8, 8)
        a(f"ds_read_b128 v[32:35], v{vMR} offset:{MX}")
        a(f"ds_read_b128 v[36:39], v{vMR} offset:{MX+16}")
        a("s_waitcnt lgkmcnt(0)")
        a("v_max3_f32 v32, v32, v33, v34")
        a("v_max3_f32 v35, v35, v36, v37")
        a("v_max3_f32 v32, v32, v38, v39")
        vM = 8
        a(f"v_max_f32 v{vM}, v32, v35")
        a(f"v_mul_f32 v33, s34, v{vM}")
        for i in range(8):
            a(f"v_fma_f32 v{S+i}, v{S+i}, s34, -v33")
        for i in range(8):
            a(f"v_exp_f32 v{S+i}, v{S+i}")
        for i in range(4):
            a(f"v_cvt_pk_bf16_f32 v{32+i}, v{S+2*i}, v{S+2*i+1}")
        self.exec_(M_J4)
        a(f"ds_write_b128 v{vPW}, v[32:35] offset:{PL}")
        self.exec_(-1)
        for i in range(4):
            a(f"v_add_f32 v{S+i}, v{S+i}, v{S+4+i}")
        a(f"v_add_f32 v{S}, v{S}, v{S+1}")
        a(f"v_add_f32 v{S+2}, v{S+2}, v{S+3}")
        a(f"v_add_f32 v{S}, v{S}, v{S+2}")
        self.swap_reduce("v_add_f32", S, S + 1, 16)
        self.swap_reduce("v_add_f32", S, S + 1, 32)
        self.exec_(0x1111)
        a(f"ds_write_b32 v{vMW}, v{S} offset:{LS}")
        self.signal(vSM, F_P, vOne)
        a(f"s_cmp_ge_u32 s{sC}, 4")
        a(f"s_cbranch_scc1 {self.lab('comb')}")
        a("s_setprio 2")
        self.wait_flag(vSM, F_P, 8, 9)
        PB = 32
        for ks in range(8):
            a(f"ds_read_b128 v[{PB+4*ks}:{PB+4*ks+3}], v{vPR} offset:{PL + 64*ks}")
        self.stamp(6)
        a(f"s_cmp_lg_u32 s{sC}, 0")
        a(f"s_cbranch_scc1 {self.lab('noml')}")
        a(f"ds_read_b128 v[64:67], v{vMR} offset:{LS}")
        a(f"ds_read_b128 v[68:71], v{vMR} offset:{LS+16}")
        a(f"v_lshlrev_b32 v72, 8, v{vH}")
        a("s_waitcnt lgkmcnt(0)")
        for e in range(4):
            a(f"v_add_f32 v{64+e}, v{64+e}, v{68+e}")
        a("v_add_f32 v64, v64, v65")
        a("v_add_f32 v66, v66, v67")
        a("v_add_f32 v65, v64, v66")
        self.tag(64, vT, sM10, vM)
        self.tag(65, vT, sM10)
        self.publish("m", ["buffer_store_dwordx2 v[64:65], v72, s[40:43], s77 offen sc1"], 0x1111)
        a.label(self.lab("noml"))
        O = 96
        a(f"v_xor_b32 v24, 32, v{vVA}")
        a(f"v_xor_b32 v25, 32, v{vVT}")
        a(f"s_lshl_b32 s33, s{sC}, 5")
        a("v_xor_b32 v11, s33, v11")
        a(f"s_lshl_b32 s33, s{sC}, 6")
        a("v_xor_b32 v11, s33, v11")
        a("v_xor_b32 v10, 32, v11")
        a("v_and_b32 v28, 1, v0")
        a(f"v_mul_u32_u24 v29, {OLS}, v28")
        a(f"v_add3_u32 v29, v29, v{vQ}, v{vSM}")
        a(f"v_lshl_add_u32 v28, v28, 17, v{vQ}")
        a("v_bfe_u32 v26, v0, 1, 1")
        a("v_lshl_add_u32 v28, v26, 6, v28")
        a(f"s_and_b32 s33, s{sJ}, 7")
        a("s_lshl_b32 s33, s33, 1")
        a(f"s_add_u32 s33, s33, s{sC}")
        a("s_lshl_b32 s33, s33, 13")
        a(f"s_lshl_b32 s34, s{sG}, 2")
        a(f"s_lshr_b32 s72, s{sJ}, 3")
        a("s_add_u32 s34, s34, s72")
        a("s_lshl_b32 s34, s34, 7")
        a("s_add_u32 s33, s33, s34")
        a(f"s_add_u32 s72, s33, {FX}")

        def pv(grp, thr):
            self.wait_flag(vSM, F_PROG, thr, 9)
            for n, ks in enumerate(grp):
                for u in range(2):
                    for t in range(2):
                        r = 64 + n * 8 + u * 4 + t * 2
                        if ks < 7:
                            a(f"ds_read_b64_tr_b16 v[{r}:{r+1}], v{24 if u else vVA} offset:{ks*8192 + t*4096}")
                        else:
                            a(f"ds_read_b64_tr_b16 v[{r}:{r+1}], v{25 if u else vVT} offset:{t*4096}")
            for n, ks in enumerate(grp):
                for u in range(2):
                    a(f"s_waitcnt lgkmcnt({4*(len(grp)-1-n) + 2*(1-u)})")
                    r = 64 + n * 8 + u * 4
                    d = O + 4 * u
                    a(f"{MFMA} v[{d}:{d+3}], v[{r}:{r+3}], v[{PB+4*ks}:{PB+4*ks+3}], {'0' if ks == 0 else f'v[{d}:{d+3}]'}")

        bv = BASE["v"]
        pv((0, 1, 2), bv + 24)
        pv((3, 4), bv + 40)
        pv((5,), bv + 48)
        pv((6,), bv + 56)
        a("s_mov_b32 s34, 0x22222222")
        a("s_mov_b32 s35, 0x22222222")
        pv((7,), TH["t"])
        for e in range(4):
            a(f"v_cndmask_b32 v{O+e}, v{O+e}, v{O+4+e}, s[34:35]")
        for e in range(4):
            self.tag(O + e, vT, sM10)
        self.publish("o", [f"buffer_store_dwordx4 v[{O}:{O+3}], v{vPub}, s[40:43], s71 offen sc1"], (0x33333333, 0x33333333))
        self.stamp(7)
        self.fine("opub", 94)
        self.fine_flush("opub", 94)
        a(f"s_cmp_ge_u32 s{sC}, 2")
        a(f"s_cbranch_scc1 {self.lab('cend')}")
        a("s_mov_b32 s34, 0xcccccccc")
        a("s_mov_b32 s35, 0xcccccccc")
        self.wait_flag(vSM, F_PROG, max(TH["o"], TH["p"]), 9)
        for u in range(2):
            for ks in range(4):
                for t in range(2):
                    r = 48 + u * 16 + ks * 4 + t * 2
                    a(f"ds_read_b64_tr_b16 v[{r}:{r+1}], v{10 if u else 11} offset:{W0 + ks*4096 + t*2048}")
        a("s_waitcnt lgkmcnt(0)")
        a("s_barrier")
        for ks in range(4):
            a(f"ds_read_b128 v[{32+4*ks}:{35+4*ks}], v29 offset:{OL + 64*ks}")
        for ks in range(4):
            a(f"s_waitcnt lgkmcnt({3-ks})")
            for u in range(2):
                r = 48 + u * 16 + ks * 4
                d = 80 + 4 * u
                a(f"{MFMA} v[{d}:{d+3}], v[{r}:{r+3}], v[{32+4*ks}:{35+4*ks}], {'0' if ks == 0 else f'v[{d}:{d+3}]'}")
        for e in range(4):
            a(f"v_cndmask_b32 v{80+e}, v{80+e}, v{84+e}, s[34:35]")
        for e in range(4):
            self.tag(80 + e, vT, sM10)
        self.publish("s", ["buffer_store_dwordx4 v[80:83], v28, s[40:43], s72 offen sc1"], M_J03, local=False, restore=None)
        self.stamp(10)
        if self.o.get("ack", 1):
            a("s_waitcnt vmcnt(0)")
        a("s_barrier")
        a.label(self.lab("cend"))
        self.flush_stamps(who)
        a("s_endpgm")
        a.label(self.lab("comb"))
        a("s_setprio 1")
        if "o" in self.o["pref"]:
            a(f"s_cmp_ge_u32 s{sC}, 6")
            a(f"s_cbranch_scc1 {self.lab('pre6')}")
            a("v_lshrrev_b32 v27, 5, v0")
            a("v_and_b32 v28, 31, v0")
            a("v_lshlrev_b32 v27, 14, v27")
            a("v_lshl_add_u32 v27, v28, 4, v27")
            a(f"s_sub_u32 s33, s{sC}, 4")
            a("s_lshl_b32 s33, s33, 15")
            a("s_add_u32 s33, s33, s76")
            if self.o.get("opre_at"):
                self.wait_flag(vSM, F_PROG, self.o["opre_at"], 9)
            a(f"buffer_load_dwordx4 v[32:35], v27, s[40:43], s33 offen {self.o.get('oprefl', 'sc1 nt')}")
            if self.o.get("pin") == "ld":
                a("s_waitcnt vmcnt(0)")
                a("buffer_load_dwordx4 v[32:35], v27, s[40:43], s33 offen sc1")
            elif self.o.get("pin") == "st":
                a(f"v_add_u32 v36, -1, v{vT}")
                for e in range(1, 4):
                    a(f"v_mov_b32 v{36+e}, v36")
                a("s_waitcnt vmcnt(0)")
                a("buffer_store_dwordx4 v[36:39], v27, s[40:43], s33 offen")
            a.label(self.lab("pre6"))
        a(f"s_and_b32 s72, s{sC}, 1")
        a(f"s_bfe_u32 s75, s{sC}, 0x10001")
        a(f"s_lshr_b32 s74, s{sJ}, 3")
        a(f"s_lshl_b32 s33, s{sG}, 10")
        a("s_lshl_b32 s34, s74, 8")
        a("s_add_u32 s33, s33, s34")
        a("s_lshl_b32 s34, s72, 7")
        a("s_add_u32 s33, s33, s34")
        a(f"s_add_u32 s77, s33, {MLX}")
        a(f"v_lshlrev_b32 v24, 1, v{vQ}")
        a("v_and_b32 v26, 15, v0")
        a(f"v_lshlrev_b32 v25, 7, v{vQ}")
        a("v_lshl_add_u32 v25, v26, 4, v25")
        a(f"s_lshl_b32 s33, s{sG}, 16")
        a("s_lshl_b32 s34, s74, 14")
        a("s_add_u32 s33, s33, s34")
        a("s_lshl_b32 s34, s72, 13")
        a("s_add_u32 s33, s33, s34")
        a("s_lshl_b32 s34, s75, 8")
        a("s_add_u32 s33, s33, s34")
        a(f"s_add_u32 s73, s33, {OX}")
        a("v_and_b32 v26, 3, v0")
        a("v_lshlrev_b32 v26, 4, v26")
        a("v_bfe_u32 v27, v0, 2, 1")
        a("v_lshl_add_u32 v26, v27, 3, v26")
        a("v_bfe_u32 v27, v0, 3, 1")
        a("v_lshl_add_u32 v26, v27, 6, v26")
        a("v_bfe_u32 v27, v0, 4, 1")
        a("v_lshl_add_u32 v26, v27, 2, v26")
        a("v_lshrrev_b32 v27, 5, v0")
        a("v_lshl_add_u32 v26, v27, 1, v26")
        a(f"s_mul_i32 s33, s72, {OLS}")
        a("s_lshl_b32 s34, s75, 7")
        a("s_add_u32 s33, s33, s34")
        a(f"s_add_u32 s33, s33, {SM+OL}")
        a("v_add_u32 v26, s33, v26")
        a(f"s_mov_b32 s34, {LOG2E:#x}")
        if self.o.get("mdelay"):
            self.wait_flag(vSM, F_PROG, self.o["mdelay"], 9)
        tm = list(range(48, 58))
        ml = ["buffer_load_dwordx4 v[80:83], v24, s[40:43], s77 offen sc1", "buffer_load_dwordx4 v[84:87], v24, s[40:43], s77 offen offset:16 sc1"]
        ol = [f"buffer_load_dwordx4 v[{32+4*t}:{35+4*t}], v25, s[40:43], s73 offen offset:{512*t} sc1" for t in range(4)]
        merged = self.o.get("merge") and not self.o.get("skip")
        if merged:
            topA, gotm = self.uniq("pa"), self.uniq("pm")
            a.label(topA)
            a(f"s_sub_u32 s{sCAP}, s{sCAP}, 16")
            a(f"s_cbranch_scc1 {self.lab('abort')}")
            a(f"ds_read_b32 v9, v{vSM} offset:{F_PROG}")
            for t in ml:
                a(t)
            a("s_waitcnt lgkmcnt(0)")
            a(f"v_cmp_le_i32 vcc, {self.o['merge']}, v9")
            a("s_nop 0")
            a("s_mov_b64 s[74:75], vcc")
            a("s_cmp_eq_u64 s[74:75], 0")
            a(f"s_cbranch_scc1 {gotm}")
            for t in ol:
                a(t)
            a.label(gotm)
            a("s_waitcnt vmcnt(0)")
            self.check(list(range(80, 88)), vT, sM10, tm)
            a(f"s_cbranch_vccnz {topA}")
        else:
            self.poll(ml, list(range(80, 88)), vT, sM10, tm, "m")
        for t in range(4):
            a(f"v_xor_b32 v{80+2*t}, v{vT}, v{80+2*t}")
        a("v_max3_f32 v8, v80, v82, v84")
        a("v_max_f32 v8, v8, v86")
        self.swap_reduce("v_max_f32", 8, 9, 16)
        self.swap_reduce("v_max_f32", 8, 9, 32)
        for t in range(4):
            a(f"v_sub_f32 v{80+2*t}, v{80+2*t}, v8")
        for t in range(4):
            a(f"v_mul_f32 v{80+2*t}, s34, v{80+2*t}")
        for t in range(4):
            a(f"v_exp_f32 v{80+2*t}, v{80+2*t}")
        a("v_mul_f32 v8, v80, v81")
        for t in range(1, 4):
            a(f"v_fmac_f32 v8, v{80+2*t}, v{81+2*t}")
        self.swap_reduce("v_add_f32", 8, 9, 16)
        self.swap_reduce("v_add_f32", 8, 9, 32)
        a("v_rcp_f32 v8, v8")
        for t in range(4):
            a(f"v_mul_f32 v{80+2*t}, v{80+2*t}, v8")
        self.stamp(8)
        self.stamp(11) if self.o.get("fine") else None
        if merged:
            topB, chk = self.uniq("pb"), self.uniq("pc")
            a("s_cmp_lg_u64 s[74:75], 0")
            a(f"s_cbranch_scc1 {chk}")
            self.wait_flag(vSM, F_PROG, self.o["merge"], 9)
            a.label(topB)
            a(f"s_sub_u32 s{sCAP}, s{sCAP}, 16")
            a(f"s_cbranch_scc1 {self.lab('abort')}")
            for t in ol:
                a(t)
            a("s_waitcnt vmcnt(0)")
            a.label(chk)
            self.check(list(range(32, 48)), vT, sM10, tm)
            a(f"s_cbranch_vccnz {topB}")
        else:
            if self.o.get("odelay"):
                self.wait_flag(vSM, F_PROG, self.o["odelay"], 9)
            self.poll(ol, list(range(32, 48)), vT, sM10, tm, "o")
        self.fine("ogot", 94)
        for h in range(2):
            a(f"v_pk_mul_f32 v[{32+2*h}:{33+2*h}], v[{32+2*h}:{33+2*h}], v[80:81] op_sel_hi:[1,0]")
        for t in range(1, 4):
            for h in range(2):
                a(f"v_pk_fma_f32 v[{32+2*h}:{33+2*h}], v[{32+4*t+2*h}:{33+4*t+2*h}], v[{80+2*t}:{81+2*t}], v[{32+2*h}:{33+2*h}] op_sel_hi:[1,0,1]")
        a("v_permlane32_swap_b32 v32, v33")
        a("v_permlane32_swap_b32 v34, v35")
        a("v_add_f32 v32, v32, v33")
        a("v_add_f32 v34, v34, v35")
        a("v_permlane16_swap_b32 v32, v34")
        a("v_add_f32 v32, v32, v34")
        a("v_cvt_pk_bf16_f32 v32, v32, v32")
        a("ds_write_b16 v26, v32")
        a("s_waitcnt lgkmcnt(0)")
        a("s_barrier")
        self.stamp(9)
        self.stamp(12) if self.o.get("fine") else None
        self.fine_flush("ogot", 94)
        self.flush_stamps(who)
        a("s_endpgm")
        self.emit_far()

    def body(self):
        a = self.a
        self.far = []
        self.prologue()
        self.loader()
        a.label(self.lab("notloader"))
        a(f"s_cmp_lg_u32 s{sW}, 1")
        a(f"s_cbranch_scc1 {self.lab('cwave')}")
        self.gwave()
        a.label(self.lab("cwave"))
        self.cwave()
        a.label(self.lab("abort"))
        a.label(self.lab("end"))
        a("s_endpgm")
        a.label(self.lab("codeend"))
        return a.text()


def header():
    ref = open("recurrent_scan__sliding_block_cached__glu_gated_glu__decode.s.ref").read().split("\n")
    out = []
    for l in ref:
        if l.startswith("; @launch"):
            out.append(f"; @launch grid=(256,1,1) block=({NW*64},1,1) lds={LDS_BYTES}")
            break
        out.append(l)
    return "\n".join(out) + "\n"


def final_file(path, cls=None, **kw):
    g = (cls or Gen3)(**kw)
    body = g.body()
    s = header()
    s += f""".amdgcn_target "amdgcn-amd-amdhsa--gfx950"
.text
.globl {KNAME}
.p2align 8
.type {KNAME},@function
{KNAME}:
{body}.section .rodata,"a"
.p2align 6
.amdhsa_kernel {KNAME}
  .amdhsa_next_free_vgpr {NVGPR}
  .amdhsa_next_free_sgpr 102
  .amdhsa_accum_offset {NVGPR}
  .amdhsa_group_segment_fixed_size 0
  .amdhsa_kernarg_size 96
  .amdhsa_user_sgpr_count 2
  .amdhsa_user_sgpr_kernarg_segment_ptr 1
  .amdhsa_system_sgpr_workgroup_id_x 1
.end_amdhsa_kernel
"""
    open(path, "w").write(s)
    return g


def build_variants(out, variants, cls=None):
    from asmlib import build
    ks = []
    for n, kw in variants:
        g = (cls or Gen3)(name=n + "_kernel", **kw)
        ks.append((n + "_kernel", g.body(), NVGPR, NW * 64))
    build(out, ks)
    open(out + ".names", "w").write("".join(f"{n}_kernel:256:{NW*64}:{LDS_BYTES}\n" for n, kw in variants))


if __name__ == "__main__":
    build_variants("kern3", [("k3s", dict(N=24, stamps=True)), ("k3", dict(N=24)), ("k3nl", dict(N=24, opts=dict(nolocal=1)))])
```

```python
from gen3 import *
GB=dict(ilv=None,rot=(3,2),pin="ld",order="qgukvtdop",qdelay=72,gdelay=128,mdelay=136,odelay=168)
for a,b in ((7,1),(7,0),(4,1),(7,3),(7,7)):
    final_file(f"cand/skew_{a}_{b}.s",N=24,opts=dict(GB,amp=(40,a,"end"),ampskew=b))
final_file(f"cand/c_GB.s",N=24,opts=GB)
```

```python
from dsl import Asm

KNAME = "recurrent_scan__sliding_block_cached__glu_gated_glu__decode_kernel"

W0, W1, W2, KB, VB, SM = 0x0000, 0x4000, 0x6000, 0x8000, 0x18000, 0x26000
XN, QL, PL, MX, LS, OL, HL, FL = 0x0000, 0x0900, 0x0E00, 0x1700, 0x1780, 0x1800, 0x1A80, 0x1C00
XNS, QLS, PLS, OLS, HLS = 1088, 320, 576, 320, 192
F_PROG, F_XN, F_CQ, F_CG, F_QR, F_MAX, F_P, F_TAG, F_MODE = [FL + 4 * i for i in range(9)]
LDS_BYTES = 163840
QX, GX, MLX, OX, FX = 0x1000, 0x21000, 0x59000, 0x61000, 0xE1000
FXS = 64 * 128
WS_USE = 0x200000
sG, sJ, sW, sB, sS = 28, 29, 30, 31, 32
sMODE, sM10, sM8, sCAP, sHI = 64, 65, 66, 67, 63
SCALE = 0x3DB504F3
LOG2E = 0x3FB8AA3B
EPS = 0x3727C5AC
M_J01 = (0x00030003, 0x00030003)
M_J03 = (0x000F000F, 0x000F000F)
M_J4 = (0x11111111, 0x11111111)
NW = 10
NVGPR = 104
CNT = dict(q=16, g=8, u=8, k=64, v=56, t=8, o=8, p=8, d=8)
MFMA = "v_mfma_f32_16x16x32_bf16"


class Gen3:
    def __init__(self, N=24, stamps=False, name=KNAME, opts=None):
        self.a = Asm()
        self.N = N
        self.stamps = stamps
        self.name = name
        self.u = 0
        self.o = dict(order="qgukvtdop", ilv=4096, qdelay=72, gdelay=128, mdelay=0, odelay=160, pref="qgo")
        self.o.update(opts or {})
        self.TH, self.BASE = {}, {}
        self.CNT = dict(CNT)
        if "w" in self.o["order"]:
            assert "vw" in self.o["order"]
            self.CNT["v"] = self.o["vsplit"]
            self.CNT["w"] = 56 - self.o["vsplit"]
        if "j" in self.o["order"]:
            assert "kj" in self.o["order"]
            self.CNT["k"] = self.o["ksplit"]
            self.CNT["j"] = 64 - self.o["ksplit"]
        n = 0
        for p in self.o["order"]:
            self.BASE[p] = n
            n += self.CNT[p]
            self.TH[p] = n
        assert n == 184

    def lab(self, s):
        return f"L_{s}_{self.name[-24:]}" if self.name != KNAME else f"L_{s}"

    def uniq(self, s):
        self.u += 1
        return self.lab(f"{s}{self.u}")

    def srd(self, d, p, off, size):
        a = self.a
        if off is None:
            a(f"s_mov_b32 s{d}, s{p}")
            a(f"s_mov_b32 s{d+1}, s{p+1}")
        else:
            a(f"s_add_u32 s{d}, s{p}, {off}")
            a(f"s_addc_u32 s{d+1}, s{p+1}, 0")
        if self.o.get("nostream") and p in (6, 8, 10, 12, 16, 18, 20):
            size = 0
        if p in self.o.get("zero", ()):
            size = 0
        a(f"s_mov_b32 s{d+2}, {size}")
        a(f"s_mov_b32 s{d+3}, 0x20000")

    def exec_(self, m):
        a = self.a
        if isinstance(m, int):
            a(f"s_mov_b64 exec, {m}")
        else:
            a(f"s_mov_b32 exec_lo, {m[0]:#x}")
            a(f"s_mov_b32 exec_hi, {m[1]:#x}")

    def init_stamps(self, slots):
        self.myslots = slots
        if self.stamps:
            for i in range(len(slots)):
                self.a(f"s_mov_b64 s[{80+2*i}:{81+2*i}], 0")

    def stamp(self, slot):
        if self.stamps and slot in self.myslots:
            i = self.myslots.index(slot)
            self.a(f"s_memrealtime s[{80+2*i}:{81+2*i}]")
            self.a("s_waitcnt lgkmcnt(0)")

    def flush_stamps(self, who=None):
        if not self.stamps:
            return
        a = self.a
        a("s_lshl_b32 s33, s2, 7")
        a("s_add_u32 s33, s33, 0x10000000")
        self.srd(76, 26, "s33", 128)
        a("s_mov_b64 exec, 1")
        for i, slot in enumerate(self.myslots):
            sk = self.uniq("cs")
            if who is not None:
                a(f"s_cmp_eq_u32 s70, {who(slot)}")
                a(f"s_cbranch_scc0 {sk}")
            a(f"v_mov_b32 v24, s{80+2*i}")
            a(f"v_mov_b32 v25, s{81+2*i}")
            a(f"buffer_store_dwordx2 v[24:25], off, s[76:79], 0 offset:{8*slot}")
            a("s_nop 1")
            a.label(sk)

    def fine(self, name, base):
        if self.stamps and self.o.get("fine", {}).get(name) is not None:
            self.a(f"s_memrealtime s[{base}:{base+1}]")
            self.a("s_waitcnt lgkmcnt(0)")

    def fine_flush(self, name, base):
        if self.stamps and self.o.get("fine", {}).get(name) is not None:
            a = self.a
            a("s_lshl_b32 s33, s2, 7")
            a("s_add_u32 s33, s33, 0x10000000")
            self.srd(76, 26, "s33", 128)
            a("s_mov_b64 exec, 1")
            a("s_and_b32 s33, s70, 3")
            a(f"s_add_u32 s33, s33, {self.o['fine'][name]}")
            a("s_lshl_b32 s33, s33, 3")
            a(f"v_mov_b32 v24, s{base}")
            a(f"v_mov_b32 v25, s{base+1}")
            a("buffer_store_dwordx2 v[24:25], off, s[76:79], s33")
            a("s_nop 1")

    def amp(self, what):
        if not self.o.get("amp") or self.o["amp"][2] != what:
            return
        K, wg, _ = self.o["amp"]
        a = self.a
        top, done = self.uniq("amp"), self.uniq("ampd")
        a(f"s_cmp_lg_u32 s2, {wg}")
        a(f"s_cbranch_scc1 {done}")
        a("s_memrealtime s[94:95]")
        a("s_waitcnt lgkmcnt(0)")
        if self.o.get("ampskew") is not None:
            a("s_mov_b64 exec, 1")
            a(f"buffer_load_dword v4, off, s[40:43], 0 offset:{256 + 4*self.o['ampskew']} sc1")
            a("s_waitcnt vmcnt(0)")
            a("v_readfirstlane_b32 s96, v4")
            a("s_nop 3")
            a("s_sub_u32 s96, s98, s96")
            a("s_add_u32 s96, s96, 200")
        else:
            a("s_sub_u32 s96, s94, s98")
        a(f"s_mul_i32 s96, s96, {K}")
        a("s_min_u32 s96, s96, 100000")
        a.label(top)
        a("s_memrealtime s[92:93]")
        a("s_waitcnt lgkmcnt(0)")
        a("s_sub_u32 s92, s92, s94")
        a("s_cmp_lt_u32 s92, s96")
        a(f"s_cbranch_scc1 {top}")
        a.label(done)

    def wait_flag(self, vsm, flag, thr, vt, urgent=False):
        a = self.a
        slp = 0 if urgent else self.o.get("ldssleep", 0)
        top = self.uniq("w")
        a.label(top)
        a(f"s_sub_u32 s{sCAP}, s{sCAP}, 1")
        a(f"s_cbranch_scc1 {self.lab('abort')}")
        a(f"ds_read_b32 v{vt}, v{vsm} offset:{flag}")
        a("s_waitcnt lgkmcnt(0)")
        a(f"v_cmp_le_i32 vcc, {thr}, v{vt}")
        if slp:
            done = self.uniq("wd")
            a(f"s_cbranch_vccnz {done}")
            a(f"s_sleep {slp}")
            a(f"s_branch {top}")
            a.label(done)
        else:
            a(f"s_cbranch_vccz {top}")

    def signal(self, vsm, flag, vone, restore=-1):
        a = self.a
        a("s_mov_b64 exec, 1")
        a(f"ds_add_u32 v{vsm}, v{vone} offset:{flag}")
        if restore is not None:
            self.exec_(restore)

    def check(self, regs, vT, smask, tmps):
        a = self.a
        xs = []
        for i in range(0, len(regs), 2):
            t = tmps[i // 2]
            a(f"v_bitop3_b32 v{t}, v{regs[i]}, v{regs[i+1]}, v{vT} bitop3:0x7e")
            xs.append(t)
        while len(xs) > 1:
            nx, i = [], 0
            while i < len(xs):
                if i + 2 < len(xs):
                    a(f"v_or3_b32 v{xs[i]}, v{xs[i]}, v{xs[i+1]}, v{xs[i+2]}")
                    nx.append(xs[i]); i += 3
                elif i + 1 < len(xs):
                    a(f"v_or_b32 v{xs[i]}, v{xs[i]}, v{xs[i+1]}")
                    nx.append(xs[i]); i += 2
                else:
                    nx.append(xs[i]); i += 1
            xs = nx
        a(f"v_and_b32 v{xs[0]}, s{smask}, v{xs[0]}")
        a(f"v_cmp_ne_u32 vcc, 0, v{xs[0]}")

    def poll_masked(self, loads, regs, vT, smask, tmps, base_exec):
        a = self.a
        n = len(loads)
        M = [52 + 2 * i for i in range(n)]
        assert n <= 4
        top, done = self.uniq("p"), self.uniq("pd")
        for t in loads:
            a(t)
        a("s_waitcnt vmcnt(0)")

        def checks(first):
            if first:
                for i in range(n):
                    r = regs[4 * i:4 * i + 4]
                    a(f"v_bitop3_b32 v{tmps[2*i]}, v{r[0]}, v{r[1]}, v{vT} bitop3:0x7e")
                    a(f"v_bitop3_b32 v{tmps[2*i+1]}, v{r[2]}, v{r[3]}, v{vT} bitop3:0x7e")
                self.check_tail([tmps[i] for i in range(2 * n)], smask, tmps[2 * n])
            for i in range(n):
                r = regs[4 * i:4 * i + 4]
                if not first:
                    a(f"s_mov_b64 exec, s[{M[i]}:{M[i]+1}]")
                    a(f"v_bitop3_b32 v{tmps[2*i]}, v{r[0]}, v{r[1]}, v{vT} bitop3:0x7e")
                    a(f"v_bitop3_b32 v{tmps[2*i+1]}, v{r[2]}, v{r[3]}, v{vT} bitop3:0x7e")
                a(f"v_or_b32 v{tmps[2*i]}, v{tmps[2*i]}, v{tmps[2*i+1]}")
                a(f"v_and_b32 v{tmps[2*i]}, s{smask}, v{tmps[2*i]}")
                a(f"v_cmp_ne_u32 s[{M[i]}:{M[i]+1}], 0, v{tmps[2*i]}")

        checks(True)
        a("s_nop 1")
        a.label(top)
        a(f"s_sub_u32 s{sCAP}, s{sCAP}, 16")
        a(f"s_cbranch_scc1 {self.lab('abort')}")
        for i, t in enumerate(loads):
            sk = self.uniq("pk")
            a(f"s_mov_b64 exec, s[{M[i]}:{M[i]+1}]")
            a(f"s_cbranch_execz {sk}")
            a(t)
            a.label(sk)
        a("s_waitcnt vmcnt(0)")
        checks(False)
        a("s_nop 1")
        a(f"s_mov_b64 s[60:61], s[{M[0]}:{M[0]+1}]")
        for i in range(1, n):
            a(f"s_or_b64 s[60:61], s[60:61], s[{M[i]}:{M[i]+1}]")
        a("s_cmp_lg_u64 s[60:61], 0")
        a(f"s_cbranch_scc1 {top}")
        a.label(self.pm_done)
        self.exec_(base_exec)

    def check_tail(self, xs, smask, t):
        a = self.a
        self.pm_done = self.uniq("pmd")
        cur = xs[0]
        i = 1
        first = True
        while i < len(xs):
            if i + 1 < len(xs):
                a(f"v_or3_b32 v{t}, v{cur}, v{xs[i]}, v{xs[i+1]}")
                i += 2
            else:
                a(f"v_or_b32 v{t}, v{cur}, v{xs[i]}")
                i += 1
            cur = t
        a(f"v_and_b32 v{t}, s{smask}, v{t}")
        a(f"v_cmp_ne_u32 vcc, 0, v{t}")
        a(f"s_cbranch_vccz {self.pm_done}")

    def poll(self, loads, regs, vT, smask, tmps, name, base_exec=-1):
        a = self.a
        if name in self.o.get("skip", ""):
            return
        if name in self.o.get("ntfirst", ""):
            top, chk = self.uniq("p"), self.uniq("pc")
            for t in loads:
                a(t + " nt")
            a(f"s_branch {chk}")
            a.label(top)
            a(f"s_sub_u32 s{sCAP}, s{sCAP}, 16")
            a(f"s_cbranch_scc1 {self.lab('abort')}")
            for t in loads:
                a(t)
            a.label(chk)
            a("s_waitcnt vmcnt(0)")
            self.check(regs, vT, smask, tmps)
            a(f"s_cbranch_vccnz {top}")
            return
        if name in self.o.get("masked", ""):
            return self.poll_masked(loads, regs, vT, smask, tmps, base_exec)
        top = self.uniq("p")
        tr = self.stamps and self.o.get("count", {}).get(name)
        if tr and all(x in self.myslots for x in tr):
            self.stamp(tr[0])
            i = self.myslots.index(tr[1])
            a(f"s_mov_b64 s[{80+2*i}:{81+2*i}], s[98:99]")
            for t in loads:
                a(t)
            a("s_waitcnt vmcnt(0)")
            self.stamp(tr[2])
            a.label(top)
            a(f"s_add_u32 s{80+2*i}, s{80+2*i}, 1")
            a(f"s_sub_u32 s{sCAP}, s{sCAP}, 16")
            a(f"s_cbranch_scc1 {self.lab('abort')}")
            self.check(regs, vT, smask, tmps)
            done = self.uniq("pd")
            a(f"s_cbranch_vccz {done}")
            for t in loads:
                a(t)
            a("s_waitcnt vmcnt(0)")
            a(f"s_branch {top}")
            a.label(done)
            return
        a.label(top)
        a(f"s_sub_u32 s{sCAP}, s{sCAP}, 16")
        a(f"s_cbranch_scc1 {self.lab('abort')}")
        for t in loads:
            a(t)
        a("s_waitcnt vmcnt(0)")
        self.check(regs, vT, smask, tmps)
        a(f"s_cbranch_vccnz {top}")

    def tag(self, r, vT, smask, src=None):
        self.a(f"v_bfi_b32 v{r}, s{smask}, v{vT}, v{r if src is None else src}")

    def publish(self, name, stores, mask, local=True, restore=-1):
        a = self.a
        if name in self.o.get("nostore", ""):
            if restore is not None:
                self.exec_(restore)
            return
        self.exec_(mask)
        if local:
            far, done = self.uniq("far"), self.uniq("pub")
            a(f"s_cmp_eq_u32 s{sMODE}, 2")
            a(f"s_cbranch_scc0 {far}")
            for t in stores:
                a(t.replace(" sc1", ""))
            self.far.append((far, stores, done))
            a.label(done)
        else:
            for t in stores:
                a(t)
        if restore is not None:
            self.exec_(restore)

    def emit_far(self):
        a = self.a
        for far, stores, done in self.far:
            a.label(far)
            for t in stores:
                a(t)
            a(f"s_branch {done}")
        self.far = []

    def row_reduce(self, op, regs):
        for sh in (8, 4, 2, 1):
            for r in regs:
                self.a(f"{op}_dpp v{r}, v{r}, v{r} row_ror:{sh} row_mask:0xf bank_mask:0xf")

    def swap_reduce(self, op, r, tmp, which):
        a = self.a
        a(f"v_mov_b32 v{tmp}, v{r}")
        a(f"v_permlane{which}_swap_b32 v{r}, v{tmp}")
        a(f"{op} v{r}, v{r}, v{tmp}")

    def tr_addr(self, vd, rowshift, wide, t1, t2, t3):
        a = self.a
        a(f"v_bfe_u32 v{t1}, v0, 2, 2")
        a(f"v_lshrrev_b32 v{t2}, 4, v0")
        a(f"v_lshl_add_u32 v{t1}, v{t2}, 2, v{t1}")
        if wide:
            a(f"v_and_b32 v{t2}, 7, v{t1}")
        else:
            a(f"v_bfe_u32 v{t2}, v{t1}, 1, 2")
        a(f"v_lshlrev_b32 v{t2}, 5, v{t2}")
        a(f"v_lshl_add_u32 v{vd}, v{t1}, {rowshift}, v{t2}")
        a(f"v_and_b32 v{t3}, 3, v0")
        a(f"v_lshl_add_u32 v{vd}, v{t3}, 3, v{vd}")

    def half_fold(self, r, t):
        a = self.a
        a(f"v_permlane16_swap_b32 v{r}, v{r+1}")
        a(f"v_permlane16_swap_b32 v{r+2}, v{r+3}")
        a(f"v_add_f32 v{r}, v{r}, v{r+1}")
        a(f"v_add_f32 v{r+2}, v{r+2}, v{r+3}")
        a(f"v_add_f32_dpp v{t}, v{r}, v{r} row_ror:8 row_mask:0xf bank_mask:0x3")
        a(f"v_add_f32_dpp v{t}, v{r+2}, v{r+2} row_ror:8 row_mask:0xf bank_mask:0xc")
        a(f"v_add_f32_dpp v{t}, v{t}, v{t} row_half_mirror row_mask:0xf bank_mask:0xf")
        a(f"v_add_f32_dpp v{t}, v{t}, v{t} quad_perm:[1,0,3,2] row_mask:0xf bank_mask:0xf")
        a(f"v_add_f32_dpp v{t}, v{t}, v{t} quad_perm:[2,3,0,1] row_mask:0xf bank_mask:0xf")

    def glu_ids(self, sn, sc, si):
        a = self.a
        a(f"s_min_u32 s{sn}, s{sG}, 4")
        a(f"s_mul_i32 s{sc}, s{sG}, 3")
        a(f"s_add_u32 s{sc}, s{sc}, s{sn}")
        a(f"s_lshr_b32 s{sn}, s{sJ}, 3")
        a(f"s_add_u32 s{sc}, s{sc}, s{sn}")
        a(f"s_and_b32 s{si}, s{sJ}, 7")
        a(f"s_cmp_lt_u32 s{sG}, 4")
        a(f"s_cselect_b32 s{sn}, 32, 24")
        a(f"s_cmp_lt_u32 s{sJ}, s{sn}")

    def prologue(self):
        a = self.a
        a("s_load_dwordx16 s[4:19], s[0:1], 0")
        a("s_load_dwordx8 s[20:27], s[0:1], 64")
        a("s_cmp_ge_u32 s2, 256")
        a(f"s_cbranch_scc1 {self.lab('end')}")
        if self.stamps or self.o.get("amp"):
            a("s_memrealtime s[98:99]")
        a("v_lshrrev_b32 v1, 6, v0")
        a("v_and_b32 v0, 63, v0")
        a(f"s_and_b32 s{sG}, s2, 7")
        a(f"v_readfirstlane_b32 s{sW}, v1")
        a(f"s_lshr_b32 s{sJ}, s2, 3")
        a(f"s_and_b32 s{sB}, s{sJ}, 1")
        a(f"s_lshr_b32 s{sS}, s{sJ}, 1")
        a(f"s_mov_b32 s{sCAP}, 0x80000")
        a(f"s_cmp_lg_u32 s{sW}, 0")
        a(f"s_cbranch_scc1 {self.lab('notloader')}")

    def loader(self):
        a = self.a
        N = self.N
        rot, ilv = self.o.get("rot"), self.o.get("ilv")
        a.c("================= loader wave: streams this CU's share of the weights and of K / V into LDS =================")
        self.init_stamps([0, 1, 2])
        a("s_setprio 3")
        vWQ, vGU, vK, vV, vW1, vSM, vP = 2, 3, 4, 8, 10, 16, 17
        sOff, sProg = 68, 69
        npf = 0
        if self.o.get("lpf"):
            a("s_getpc_b64 s[34:35]")
            a.label(self.lab("pcref0"))
            a("v_lshlrev_b32 v22, 7, v0")
            a(f"v_min_u32 v23, {self.lab('codeend')}-{self.lab('pcref0')}-4, v22")
            a("global_load_dword v26, v23, s[34:35]")
            a("v_add_u32 v22, 0x2000, v22")
            a(f"v_min_u32 v22, {self.lab('codeend')}-{self.lab('pcref0')}-4, v22")
            a("global_load_dword v27, v22, s[34:35]")
        a("v_lshrrev_b32 v18, 4, v0")
        a("v_lshlrev_b32 v19, 1, v18")
        a("v_and_b32 v20, 7, v0")
        a("v_xor_b32 v20, v19, v20")
        a("v_lshlrev_b32 v20, 4, v20")
        a("v_lshrrev_b32 v21, 3, v0")
        a(f"v_lshl_add_u32 v{vWQ}, v21, 13, v20")
        a(f"s_lshr_b32 s33, s{sJ}, 3")
        a("s_lshl_b32 s33, s33, 20")
        a(f"s_lshl_b32 s34, s{sG}, 10")
        a("s_add_u32 s33, s33, s34")
        a(f"s_and_b32 s34, s{sJ}, 7")
        a("s_lshl_b32 s71, s34, 7")
        a("s_add_u32 s33, s33, s71")
        a(f"s_mov_b32 s{sOff}, 0")
        a(f"s_mov_b32 m0, {W0}")
        a(f"s_mov_b32 s{sProg}, {-N}")
        a(f"v_mov_b32 v{vSM}, {SM:#x}")
        a("s_waitcnt lgkmcnt(0)")
        self.srd(36, 10, "s33", 127 * 8192 + 128)
        if self.stamps:
            a("s_mov_b64 s[80:81], s[98:99]")

        def loop(name, vo, srd, step, end, N):
            top = self.uniq("ld" + name)
            kv = name in "kjvwt"
            itstep, wrap = 4096, 0xffff
            if ilv and kv:
                assert ilv == 4096
                itstep, wrap, end = 65536, 0xfffff, end * 16
            rr = rot and kv
            if rr:
                endm = dict(k=KB + self.CNT["k"] * 1024, j=KB + 65536, v=VB + self.CNT["v"] * 1024, w=VB + 57344, t=W2 + 8192)[name]
            a.label(top)
            for k in range(4):
                a(f"buffer_load_dwordx4 v{vo[k % len(vo)]}, s[{srd}:{srd+3}], s{sOff} offen offset:{k*1024} nt lds")
                if step != 1024:
                    a(f"s_add_u32 s{sOff}, s{sOff}, {step-1024}")
                a(f"s_waitcnt vmcnt({N})")
            a(f"s_add_u32 s{sProg}, s{sProg}, 4")
            a("s_mov_b64 exec, 1")
            a(f"v_mov_b32 v{vP}, s{sProg}")
            a(f"ds_write_b32 v{vSM}, v{vP} offset:{F_PROG}")
            a("s_mov_b64 exec, -1")
            a(f"s_add_u32 s{sOff}, s{sOff}, {itstep}")
            if rr:
                a(f"s_and_b32 s{sOff}, s{sOff}, {wrap:#x}")
            a("s_add_u32 m0, m0, 4096")
            a(f"s_cmp_lg_u32 m0, {endm}" if rr else f"s_cmp_lg_u32 s{sOff}, {end}")
            a(f"s_cbranch_scc1 {top}")

        assert self.o["order"][0] == "q"
        loop("q", [vWQ], 36, 65536, 16 * 65536, N)
        early = self.o.get("early", 0)
        a("s_movk_i32 s33, 3584")
        a(f"v_mad_u32_u24 v{vGU}, v21, s33, v20")
        self.glu_ids(33, 34, 35)
        a("s_cselect_b32 s72, -1, 0")
        a(f"s_mul_i32 s33, s35, {64*3584}")
        a("s_lshl_b32 s70, s34, 7")
        a("s_add_u32 s33, s33, s70")
        a("s_and_b32 s33, s33, s72")
        for d, p in ((40, 16), (44, 18)):
            self.srd(d, p, "s33", 63 * 3584 + 128)
            a(f"s_and_b32 s{d+2}, s{d+2}, s72")

        def rest():
            a(f"v_lshl_add_u32 v{vW1}, v21, 10, v20")
            a("s_lshl_b32 s33, s34, 16")
            if self.o.get("dsh"):
                a(f"s_add_u32 s35, s35, {self.o['dsh']}")
                a("s_and_b32 s35, s35, 7")
            a("s_lshl_b32 s35, s35, 7")
            a("s_add_u32 s33, s33, s35")
            a("s_and_b32 s33, s33, s72")
            self.srd(60, 20, "s33", 63 * 1024 + 128)
            a("s_and_b32 s62, s62, s72")
            a(f"s_lshl_b32 s33, s{sB}, 3")
            a(f"s_add_u32 s33, s33, s{sG}")
            a("s_lshl_b32 s33, s33, 23")
            a(f"s_lshl_b32 s34, s{sS}, {12 if ilv else 16}")
            a("s_add_u32 s33, s33, s34")
            a(f"s_add_u32 s33, s33, {28672*256}")
            kvsize = 65536 if not ilv else (1048576 - 15 * ilv)
            self.srd(48, 6, "s33", kvsize)
            self.srd(52, 8, "s33", kvsize)
            a("v_and_b32 v19, 15, v0")
            a("v_xor_b32 v20, v18, v19")
            a("v_lshlrev_b32 v20, 4, v20")
            a(f"v_lshl_add_u32 v{vK}, v18, 8, v20")
            for k in range(1, 4):
                a(f"v_xor_b32 v{vK+k}, {k << 6:#x}, v{vK}")
            a("v_lshlrev_b32 v20, 1, v18")
            a("v_xor_b32 v20, v20, v19")
            a("v_lshlrev_b32 v20, 4, v20")
            a(f"v_lshl_add_u32 v{vV}, v18, 8, v20")
            a(f"v_xor_b32 v{vV+1}, 0x80, v{vV}")
            a(f"s_lshl_b32 s33, s{sG}, 2")
            a(f"s_lshr_b32 s34, s{sJ}, 3")
            a("s_add_u32 s33, s33, s34")
            a("s_lshl_b32 s33, s33, 17")
            if self.o.get("wsh"):
                a(f"s_add_u32 s71, s{sJ}, {self.o['wsh']}")
                a("s_and_b32 s71, s71, 7")
                a("s_lshl_b32 s71, s71, 7")
            a("s_add_u32 s33, s33, s71")
            self.srd(56, 12, "s33", 127 * 1024 + 128)
            if rot:
                r3 = rot if len(rot) == 3 else (2 * rot[0], rot[0], rot[1])
                a(f"s_mul_i32 s73, s{sS}, {r3[0]}")
                a(f"s_mul_i32 s33, s{sB}, {r3[1]}")
                a("s_add_u32 s73, s73, s33")
                a(f"s_mul_i32 s33, s{sG}, {r3[2]}")
                a("s_add_u32 s73, s73, s33")
                a(f"s_lshl_b32 s73, s73, {16 if ilv else 12}")
                a(f"s_and_b32 s73, s73, {0xfffff if ilv else 0xffff:#x}")
            a("s_barrier")

        if not early:
            rest()
        spec = dict(g=([vGU], 40, 28672, 0, 8 * 28672, W1), u=([vGU], 44, 28672, 0, 8 * 28672, W2),
                    k=([vK, vK + 1, vK + 2, vK + 3], 48, 1024, 0, self.CNT["k"] * 1024, KB), v=([vV, vV + 1], 52, 1024, 0, self.CNT["v"] * 1024, VB),
                    j=([vK, vK + 1, vK + 2, vK + 3], 48, 1024, 0, 65536, KB + self.CNT["k"] * 1024),
                    w=([vV, vV + 1], 52, 1024, 0, 57344, VB + self.CNT["v"] * 1024),
                    t=([vV, vV + 1], 52, 1024, 57344, 65536, W2), o=([vW1], 56, 8192, 0, 8 * 8192, W0),
                    p=([vW1], 56, 8192, 8 * 8192, 16 * 8192, W0 + 8192),
                    d=([vW1], 60, 8192, 0, 8 * 8192, W1))
        nwin = self.o.get("win", {})
        waited, m0, prev = set(), W0 + 16384, "q"
        for pi, p in enumerate(self.o["order"][1:]):
            if early and pi == early:
                rest()
            assert not (pi < early and p not in "gu")
            vo, srd, step, start, end, lds = spec[p]
            if not self.o.get("bare"):
                if p in "op" and "q" not in waited:
                    self.wait_flag(vSM, F_CQ, 4, 22)
                    waited.add("q")
                if p in "td" and "g" not in waited:
                    self.wait_flag(vSM, F_CG, 1, 22)
                    waited.add("g")
            if p in nwin:
                a(f"s_add_u32 s{sProg}, s{sProg}, {N - nwin[p]}")
                N = nwin[p]
            if (p, prev) in (("t", "v"), ("t", "w"), ("w", "v"), ("j", "k"), ("p", "o")):
                pass
            elif rot and p in "kv":
                a(f"s_mov_b32 s{sOff}, s73")
            elif rot and p == "t":
                a(f"s_add_u32 s{sOff}, s73, {57344 * (16 if ilv else 1)}")
                a(f"s_and_b32 s{sOff}, s{sOff}, {0xfffff if ilv else 0xffff:#x}")
            else:
                a(f"s_mov_b32 s{sOff}, {start * (16 if ilv and p == 't' else 1)}")
            if m0 != lds:
                a(f"s_mov_b32 m0, {lds}")
            loop(p, vo, srd, step, end, N)
            m0, prev = lds + self.CNT[p] * 1024, p
        self.stamp(1)
        a("s_mov_b64 exec, 1")
        for n in range((N - 1) // 4 * 4, -1, -4):
            a(f"v_mov_b32 v{vP}, {184 - n}")
            a(f"s_waitcnt vmcnt({n})")
            a(f"ds_write_b32 v{vSM}, v{vP} offset:{F_PROG}")
        self.stamp(2)
        self.amp("stream")
        self.flush_stamps()
        a("s_endpgm")

    def gwave(self):
        a = self.a
        TH = self.TH
        a.c("================= G wave: layernorm, GLU branch, final reduction =================")
        self.init_stamps(self.o.get("gslots", [3, 15, 11, 12, 13, 14]))
        vSM, vT, vOne, vXF, vOO, vHI, vF = 2, 3, 60, 61, 62, 56, 57
        a("s_getreg_b32 s70, hwreg(HW_REG_XCC_ID, 0, 4)")
        a(f"v_mov_b32 v{vSM}, {SM:#x}")
        a(f"v_lshl_add_u32 v1, v0, 2, v{vSM}")
        a("v_mov_b32 v4, 0")
        a(f"ds_write_b32 v1, v4 offset:{FL}")
        a("s_add_u32 s70, s70, 1")
        a(f"v_mov_b32 v{vHI}, s70")
        a("v_lshlrev_b32 v12, 5, v0")
        a("v_bfe_u32 v13, v0, 3, 1")
        a("v_bfe_u32 v14, v0, 4, 1")
        a("v_lshl_add_u32 v13, v13, 1, v14")
        a(f"s_lshl_b32 s33, s{sG}, 8")
        a(f"s_lshl_b32 s34, s{sJ}, 3")
        a("s_add_u32 s33, s33, s34")
        a(f"v_lshl_add_u32 v{vOO}, v13, 1, s33")
        a(f"v_mov_b32 v{vOne}, 1")
        a(f"s_movk_i32 s{sM10}, 0x3ff")
        a(f"s_mov_b32 s{sHI}, 0xffff0000")
        a(f"s_lshl_b32 s71, s{sG}, 5")
        a(f"s_add_u32 s72, s71, s{sJ}")
        a("v_and_b32 v57, 31, v0")
        a("s_waitcnt lgkmcnt(0)")
        self.srd(48, 24, None, 256)
        self.srd(36, 4, None, 2048)
        a("s_mov_b64 exec, 1")
        a(f"buffer_store_byte v{vHI}, off, s[48:51], s72")
        a("s_mov_b64 exec, -1")
        self.srd(40, 26, None, WS_USE)
        a("buffer_load_dwordx4 v[4:7], v12, s[36:39], 0 offen")
        a("buffer_load_dwordx4 v[8:11], v12, s[36:39], 0 offen offset:16")
        a(f"buffer_load_dword v{vT}, off, s[40:43], 0 sc1")
        a(f"buffer_load_ushort v{vXF}, v{vOO}, s[36:39], 0 offen")
        if self.o.get("ampskew") is not None:
            a("s_lshl_b32 s33, s2, 2")
            a("s_add_u32 s33, s33, 256")
            a("v_mov_b32 v13, s98")
            a("s_mov_b64 exec, 1")
            a("buffer_store_dword v13, off, s[40:43], s33 sc1")
            a("s_mov_b64 exec, -1")
        self.srd(44, 22, None, 2048)
        a("s_barrier")
        if self.o.get("bare"):
            a("s_endpgm")
        a("v_lshrrev_b32 v13, 5, v0")
        a(f"v_mul_u32_u24 v13, {XNS}, v13")
        a("v_bfe_u32 v14, v0, 1, 4")
        a("v_lshl_add_u32 v13, v14, 6, v13")
        a("v_and_b32 v14, 1, v0")
        a("v_lshl_add_u32 v13, v14, 3, v13")
        a(f"v_add_u32 v13, v{vSM}, v13")
        a("s_waitcnt vmcnt(0)")
        a("buffer_load_ubyte v58, v57, s[48:51], s71 offen sc1")
        X = 16
        for i in range(8):
            a(f"v_lshlrev_b32 v{X+2*i}, 16, v{4+i}")
            a(f"v_and_b32 v{X+2*i+1}, s{sHI}, v{4+i}")
        a(f"v_add_u32 v{vT}, 1, v{vT}")
        for i in range(4):
            a(f"v_add_f32 v{4+i}, v{X+i}, v{X+4+i}")
        for i in range(4):
            a(f"v_add_f32 v{4+i}, v{4+i}, v{X+8+i}")
        for i in range(4):
            a(f"v_add_f32 v{4+i}, v{4+i}, v{X+12+i}")
        a("v_add_f32 v4, v4, v5")
        a("v_add_f32 v6, v6, v7")
        a("v_add_f32 v4, v4, v6")
        self.row_reduce("v_add_f32", [4])
        self.swap_reduce("v_add_f32", 4, 5, 16)
        a("v_mul_f32 v4, 0x3b000000, v4")
        for i in range(16):
            a(f"v_sub_f32 v{32+i}, v{X+i}, v4")
        a("v_mul_f32 v5, v32, v32")
        a("v_mul_f32 v6, v33, v33")
        for i in range(2, 16, 2):
            a(f"v_fmac_f32 v5, v{32+i}, v{32+i}")
            a(f"v_fmac_f32 v6, v{33+i}, v{33+i}")
        a("v_add_f32 v5, v5, v6")
        self.row_reduce("v_add_f32", [5])
        self.swap_reduce("v_add_f32", 5, 6, 16)
        a("v_mul_f32 v5, 0x3b000000, v5")
        a("v_cvt_pk_bf16_f32 v4, v4, v5")
        a(f"v_and_b32 v5, s{sHI}, v4")
        a("v_lshlrev_b32 v4, 16, v4")
        a(f"v_add_f32 v5, {EPS:#x}, v5")
        a("v_cvt_pk_bf16_f32 v5, v5, v5")
        a(f"v_and_b32 v5, s{sHI}, v5")
        a("v_sqrt_f32 v5, v5")
        a("v_cvt_pk_bf16_f32 v5, v5, v5")
        a(f"v_and_b32 v5, s{sHI}, v5")
        a("v_rcp_f32 v5, v5")
        for i in range(16):
            a(f"v_sub_f32 v{X+i}, v{X+i}, v4")
        for i in range(8):
            a(f"v_cvt_pk_bf16_f32 v{32+i}, v{X+2*i}, v{X+2*i+1}")
        for i in range(8):
            a(f"v_lshlrev_b32 v{X+2*i}, 16, v{32+i}")
            a(f"v_and_b32 v{X+2*i+1}, s{sHI}, v{32+i}")
        for i in range(16):
            a(f"v_mul_f32 v{X+i}, v{X+i}, v5")
        for i in range(8):
            a(f"v_cvt_pk_bf16_f32 v{32+i}, v{X+2*i}, v{X+2*i+1}")
        for gq in range(4):
            a(f"ds_write_b64 v13, v[{32+2*gq}:{33+2*gq}] offset:{XN+16*gq}")
        a("s_mov_b64 exec, 1")
        a(f"ds_write_b32 v{vSM}, v{vT} offset:{F_TAG}")
        a(f"ds_write_b32 v{vSM}, v{vOne} offset:{F_XN}")
        a("s_mov_b64 exec, -1")
        self.stamp(3)
        a(f"v_and_b32 v{vT}, s{sM10}, v{vT}")
        if self.o.get("nolocal"):
            a("s_waitcnt vmcnt(0)")
            a(f"s_mov_b32 s{sMODE}, 1")
        else:
            top, got = self.uniq("hello"), self.uniq("hellod")
            a("s_mov_b32 s73, 10")
            a.label(top)
            a("s_waitcnt vmcnt(0)")
            a("v_cmp_eq_u32 vcc, 0, v58")
            a(f"s_cbranch_vccz {got}")
            a(f"v_cmp_ne_u32 s[74:75], v58, v{vHI}")
            a("s_andn2_b64 s[74:75], s[74:75], vcc")
            a(f"s_cbranch_scc1 {got}")
            a("s_sub_u32 s73, s73, 1")
            a(f"s_cbranch_scc1 {got}")
            a("buffer_load_ubyte v58, v57, s[48:51], s71 offen sc1")
            a(f"s_branch {top}")
            a.label(got)
            a(f"v_cmp_ne_u32 vcc, v58, v{vHI}")
            a("s_cmp_eq_u64 vcc, 0")
            a(f"s_cselect_b32 s{sMODE}, 2, 1")
        a("s_mov_b64 exec, 1")
        a(f"v_mov_b32 v4, s{sMODE}")
        a(f"ds_write_b32 v{vSM}, v4 offset:{F_MODE}")
        a("s_mov_b64 exec, -1")
        a(f"s_lshl_b32 s33, s{sG}, 2")
        a(f"s_lshr_b32 s34, s{sJ}, 3")
        a("s_add_u32 s33, s33, s34")
        a("s_lshl_b32 s33, s33, 13")
        a(f"s_and_b32 s34, s{sJ}, 7")
        a("s_lshl_b32 s34, s34, 4")
        a("s_add_u32 s33, s33, s34")
        a(f"s_add_u32 s76, s33, {FX}")
        a(f"v_lshlrev_b32 v{vF}, 7, v0")
        a(f"v_lshlrev_b32 v{vXF}, 16, v{vXF}")
        self.glu_ids(70, 71, 72)
        a(f"s_cbranch_scc1 {self.lab('hasglu')}")
        self.signal(vSM, F_CG, vOne)
        a(f"s_branch {self.lab('final')}")
        a.label(self.lab("hasglu"))
        a("v_lshrrev_b32 v4, 4, v0")
        a("v_and_b32 v5, 1, v0")
        a(f"v_mul_u32_u24 v6, {XNS}, v5")
        a("v_lshl_add_u32 v6, v4, 4, v6")
        a("s_lshl_b32 s33, s72, 7")
        a(f"s_add_u32 s33, s33, {SM+XN}")
        a("v_add_u32 v6, s33, v6")
        a("ds_read_b128 v[8:11], v6")
        a("ds_read_b128 v[12:15], v6 offset:64")
        a("v_lshlrev_b32 v63, 4, v4")
        a("v_lshl_add_u32 v63, v5, 9, v63")
        self.tr_addr(16, 7, False, 17, 18, 19)
        for ct in range(1, 4):
            a(f"v_xor_b32 v{16+ct}, {ct << 5:#x}, v16")
        a("s_lshl_b32 s33, s71, 13")
        a(f"s_add_u32 s74, s33, {GX}")
        a("s_lshl_b32 s34, s72, 10")
        a("s_add_u32 s73, s74, s34")
        a("s_add_u32 s75, s74, 4096")
        self.wait_flag(vSM, F_PROG, max(TH["g"], TH["u"]), 20)
        AB, ACC = 64, 24
        for mat in range(2):
            for ct in range(4):
                for ks in range(2):
                    for t in range(2):
                        r = AB + (ct * 2 + ks) * 4 + t * 2
                        a(f"ds_read_b64_tr_b16 v[{r}:{r+1}], v{16+ct} offset:{W1 + mat*8192 + ks*4096 + t*2048}")
            a("s_waitcnt lgkmcnt(0)")
            if mat == 1:
                self.signal(vSM, F_CG, vOne)
            for ks in range(2):
                for ct in range(4):
                    d = ACC + (mat * 4 + ct) * 4
                    r = AB + ct * 8 + 4 * ks
                    a(f"{MFMA} v[{d}:{d+3}], v[{r}:{r+3}], v[{8+4*ks}:{11+4*ks}], {'0' if ks == 0 else f'v[{d}:{d+3}]'}")
            if mat == 0:
                a("s_nop 3")
        for r in range(ACC, ACC + 32):
            self.tag(r, vT, sM10)
        self.publish("g", [f"buffer_store_dwordx4 v[{ACC+4*tile}:{ACC+4*tile+3}], v63, s[40:43], s73 offen offset:{(tile >> 2)*256 + (tile & 3)*64} sc1" for tile in range(8)], M_J01)
        a("v_lshlrev_b32 v6, 4, v0")
        gl = [f"buffer_load_dwordx4 v[{64+4*t}:{67+4*t}], v6, s[40:43], s{74 + (t >> 2)} offen offset:{1024*(t & 3)} sc1" for t in range(8)]
        if "g" in self.o["pref"]:
            for t in gl:
                a(t + self.o.get("gprefl", " nt"))
            if self.o.get("ping"):
                a("s_waitcnt vmcnt(0)")
                for t in gl:
                    a(t)
        a("v_lshrrev_b32 v7, 5, v0")
        a(f"v_mul_u32_u24 v7, {HLS}, v7")
        a("v_and_b32 v8, 3, v0")
        a("v_lshl_add_u32 v7, v8, 4, v7")
        a("v_bfe_u32 v8, v0, 2, 1")
        a("v_lshl_add_u32 v7, v8, 3, v7")
        a("v_bfe_u32 v8, v0, 3, 1")
        a("v_lshl_add_u32 v7, v8, 6, v7")
        a(f"v_add_u32 v7, v{vSM}, v7")
        a(f"v_mul_u32_u24 v59, {HLS}, v5")
        a("v_lshl_add_u32 v59, v4, 4, v59")
        a(f"v_add_u32 v59, v{vSM}, v59")
        if self.o.get("gdelay"):
            self.wait_flag(vSM, F_PROG, self.o["gdelay"], 10)
        self.poll(gl, list(range(64, 96)), vT, sM10, list(range(24, 40)), "g")
        for h in (16, 8, 4):
            for e in range(h):
                a(f"v_add_f32 v{64+e}, v{64+e}, v{64+h+e}")
        a("v_cvt_pk_bf16_f32 v64, v64, v65")
        a("v_cvt_pk_bf16_f32 v66, v66, v67")
        a("v_mov_b32 v68, v64")
        a("v_mov_b32 v70, v66")
        a("v_permlane16_swap_b32 v64, v68")
        a("v_permlane16_swap_b32 v66, v70")
        for base in (64, 68):
            a(f"v_and_b32 v{base+3}, s{sHI}, v{base+2}")
            a(f"v_lshlrev_b32 v{base+2}, 16, v{base+2}")
            a(f"v_and_b32 v{base+1}, s{sHI}, v{base}")
            a(f"v_lshlrev_b32 v{base}, 16, v{base}")
        for e in range(4):
            a(f"v_mul_f32 v{64+e}, {LOG2E ^ 0x80000000:#x}, v{64+e}")
        for e in range(4):
            a(f"v_exp_f32 v{64+e}, v{64+e}")
        for e in range(4):
            a(f"v_add_f32 v{64+e}, 1.0, v{64+e}")
        for e in range(4):
            a(f"v_rcp_f32 v{64+e}, v{64+e}")
        a("v_cvt_pk_bf16_f32 v64, v64, v65")
        a("v_cvt_pk_bf16_f32 v66, v66, v67")
        a(f"v_and_b32 v67, s{sHI}, v66")
        a("v_lshlrev_b32 v66, 16, v66")
        a(f"v_and_b32 v65, s{sHI}, v64")
        a("v_lshlrev_b32 v64, 16, v64")
        for e in range(4):
            a(f"v_mul_f32 v{64+e}, v{64+e}, v{68+e}")
        a("v_cvt_pk_bf16_f32 v64, v64, v65")
        a("v_cvt_pk_bf16_f32 v65, v66, v67")
        self.exec_((0x0000FFFF, 0x0000FFFF))
        a(f"ds_write_b64 v7, v[64:65] offset:{HL}")
        self.exec_(-1)
        a(f"ds_read_b128 v[8:11], v59 offset:{HL}")
        a(f"ds_read_b128 v[12:15], v59 offset:{HL+64}")
        a("v_lshlrev_b32 v63, 4, v4")
        a("v_lshl_add_u32 v63, v5, 17, v63")
        a("v_bfe_u32 v20, v0, 1, 1")
        a("v_lshl_add_u32 v63, v20, 6, v63")
        a("s_lshl_b32 s33, s71, 7")
        if self.o.get("dsh"):
            a(f"s_add_u32 s72, s72, {self.o['dsh']}")
            a("s_and_b32 s72, s72, 7")
        a("s_lshl_b32 s34, s72, 14")
        a("s_add_u32 s73, s33, s34")
        a(f"s_add_u32 s73, s73, {FX + 32*128}")
        a(f"s_add_u32 s74, s73, {FXS}")
        a("s_mov_b32 s34, 0xcccccccc")
        a("s_mov_b32 s35, 0xcccccccc")
        self.stamp(15)
        self.wait_flag(vSM, F_PROG, TH["d"], 20)
        for ct in range(4):
            for ks in range(2):
                for t in range(2):
                    r = AB + (ct * 2 + ks) * 4 + t * 2
                    a(f"ds_read_b64_tr_b16 v[{r}:{r+1}], v{16+ct} offset:{W1 + ks*4096 + t*2048}")
        for ks in range(2):
            for ct in range(4):
                if ks == 0:
                    a(f"s_waitcnt lgkmcnt({12-4*ct})")
                d = ACC + ct * 4
                r = AB + (ct * 2 + ks) * 4
                a(f"{MFMA} v[{d}:{d+3}], v[{r}:{r+3}], v[{8+4*ks}:{11+4*ks}], {'0' if ks == 0 else f'v[{d}:{d+3}]'}")
        for h in range(2):
            for e in range(4):
                a(f"v_cndmask_b32 v{ACC+8*h+e}, v{ACC+8*h+e}, v{ACC+8*h+4+e}, s[34:35]")
        for h in range(2):
            for e in range(4):
                self.tag(ACC + 8 * h + e, vT, sM10)
        self.publish("y", [f"buffer_store_dwordx4 v[{ACC+8*h}:{ACC+8*h+3}], v63, s[40:43], s{73 + h} offen sc1" for h in range(2)], M_J03, local=False)
        self.stamp(11)
        a.label(self.lab("final"))
        for e in range(4):
            a(f"v_mov_b32 v{8+e}, 0")
        a("s_barrier")
        a("s_setprio 2")
        ld = f"buffer_load_dwordx4 v[8:11], v{vF}, s[40:43], s76 offen sc1"
        if self.o.get("ysplit", 1):
            a("s_waitcnt vmcnt(0)")
            self.exec_((0, 0x0FFFFFFF))
            self.poll([ld], [8, 9, 10, 11], vT, sM10, [12, 13, 16], "y", (0, 0x0FFFFFFF))
            self.exec_(-1)
            self.half_fold(8, 14)
            a("v_cvt_pk_bf16_f32 v14, v14, v14")
            a(f"v_and_b32 v14, s{sHI}, v14")
            a("v_mov_b32 v15, v14")
            a("v_permlane32_swap_b32 v15, v14")
            a(f"v_mul_f32 v9, {LOG2E ^ 0x80000000:#x}, v14")
            a("v_exp_f32 v9, v9")
            a("v_add_f32 v9, 1.0, v9")
            a("v_rcp_f32 v9, v9")
            a("v_mul_f32 v14, v14, v9")
            a("v_cvt_pk_bf16_f32 v14, v14, v14")
            a(f"v_and_b32 v14, s{sHI}, v14")
            self.exec_((0xFFFFFFFF, 0))
            self.stamp(12)
            a("s_barrier")
            self.poll([ld], [8, 9, 10, 11], vT, sM10, [12, 13, 16], "s", (0xFFFFFFFF, 0))
            self.stamp(13)
            self.half_fold(8, 12)
            a("v_cvt_pk_bf16_f32 v12, v12, v12")
            a(f"v_and_b32 v12, s{sHI}, v12")
        else:
            self.exec_((0xFFFFFFFF, 0x0FFFFFFF))
            self.stamp(12)
            a("s_barrier")
            self.poll([ld], [8, 9, 10, 11], vT, sM10, [12, 13], "s")
            self.stamp(13)
            self.exec_(-1)
            self.half_fold(8, 12)
            a("v_cvt_pk_bf16_f32 v12, v12, v12")
            a(f"v_and_b32 v12, s{sHI}, v12")
            a("v_mov_b32 v14, v12")
            a("v_permlane32_swap_b32 v12, v14")
            a(f"v_mul_f32 v9, {LOG2E ^ 0x80000000:#x}, v14")
            a("v_exp_f32 v9, v9")
            a("v_add_f32 v9, 1.0, v9")
            a("v_rcp_f32 v9, v9")
            a("v_mul_f32 v14, v14, v9")
            a("v_cvt_pk_bf16_f32 v14, v14, v14")
            a(f"v_and_b32 v14, s{sHI}, v14")
        a("v_mul_f32 v12, v12, v14")
        a("v_cvt_pk_bf16_f32 v12, v12, v12")
        a(f"v_and_b32 v12, s{sHI}, v12")
        a(f"v_add_f32 v12, v12, v{vXF}")
        a("v_cvt_pk_bf16_f32 v12, v12, v12")
        self.exec_((0x01010101, 0))
        a(f"buffer_store_short v12, v{vOO}, s[44:47], 0 offen")
        a("s_cmp_lg_u32 s2, 0")
        a(f"s_cbranch_scc1 {self.lab('noepoch')}")
        a("s_mov_b64 exec, 1")
        a(f"ds_read_b32 v4, v{vSM} offset:{F_TAG}")
        a("s_waitcnt lgkmcnt(0)")
        a("buffer_store_dword v4, off, s[40:43], 0 sc1")
        a.label(self.lab("noepoch"))
        self.stamp(14)
        self.amp("end")
        self.flush_stamps()
        a("s_endpgm")
        self.emit_far()

    def cwave(self):
        a = self.a
        TH, BASE = self.TH, self.BASE
        a.c("================= compute waves =================")
        cs = self.o.get("cslots")
        self.init_stamps(cs[0] if cs else [4, 5, 6, 7, 8, 9, 10])
        who = lambda slot: (6 if slot in cs[1] else 0) if cs else (6 if slot in (8, 9) else 0)
        sC = 70
        vSM, vT, vT8, vOne, vQ, vH = 2, 3, 4, 5, 6, 7
        a(f"s_sub_u32 s{sC}, s{sW}, 2")
        a(f"v_mov_b32 v{vSM}, {SM:#x}")
        a(f"v_mov_b32 v{vOne}, 1")
        a(f"s_movk_i32 s{sM10}, 0x3ff")
        a(f"s_movk_i32 s{sM8}, 0xff")
        a(f"s_mov_b32 s{sHI}, 0xffff0000")
        if not self.o.get("noprefetch") and not self.o.get("lpf"):
            a(f"s_cmp_lg_u32 s{sC}, 7")
            a(f"s_cbranch_scc1 {self.lab('nopf')}")
            a("s_getpc_b64 s[34:35]")
            a.label(self.lab("pcref"))
            a(f"s_sub_u32 s34, s34, {self.lab('pcref')}-{self.name}")
            a("s_subb_u32 s35, s35, 0")
            a("v_lshlrev_b32 v8, 7, v0")
            a(f"v_min_u32 v9, {self.lab('codeend')}-{self.name}-4, v8")
            a("global_load_dword v9, v9, s[34:35]")
            a("v_add_u32 v8, 0x2000, v8")
            a(f"v_min_u32 v8, {self.lab('codeend')}-{self.name}-4, v8")
            a("global_load_dword v10, v8, s[34:35]")
            a.label(self.lab("nopf"))
        a(f"v_lshrrev_b32 v{vQ}, 4, v0")
        a(f"v_lshlrev_b32 v{vQ}, 4, v{vQ}")
        a(f"v_bfe_u32 v{vH}, v0, 2, 2")
        vKA, vQB, vMW, vMR, vPW, vPR, vVA, vVT, vPub = 12, 16, 17, 18, 19, 20, 21, 22, 23
        a("v_and_b32 v8, 15, v0")
        a("v_lshrrev_b32 v11, 4, v0")
        a("v_xor_b32 v11, v8, v11")
        a("v_lshlrev_b32 v11, 4, v11")
        a("v_lshl_add_u32 v11, v8, 8, v11")
        a(f"s_lshl_b32 s33, s{sC}, 13")
        a(f"s_add_u32 s33, s33, {KB}")
        a(f"v_add_u32 v{vKA}, s33, v11")
        for ks in range(1, 4):
            a(f"v_xor_b32 v{vKA+ks}, {ks << 6:#x}, v{vKA}")
        a(f"v_mul_u32_u24 v{vQB}, {QLS}, v{vH}")
        a(f"v_add3_u32 v{vQB}, v{vQB}, v{vQ}, v{vSM}")
        a(f"v_lshl_add_u32 v{vMR}, v{vH}, 5, v{vSM}")
        a(f"s_lshl_b32 s33, s{sC}, 2")
        a(f"v_add_u32 v{vMW}, s33, v{vMR}")
        a(f"v_mul_u32_u24 v{vPR}, {PLS}, v{vH}")
        a(f"v_add3_u32 v{vPR}, v{vPR}, v{vQ}, v{vSM}")
        a(f"s_lshl_b32 s33, s{sC}, 6")
        a(f"v_add_u32 v{vPW}, s33, v{vPR}")
        self.tr_addr(24, 8, True, 25, 26, 27)
        a(f"s_lshl_b32 s33, s{sC}, 6")
        a("s_and_b32 s33, s33, 0xc0")
        a("v_xor_b32 v24, s33, v24")
        a(f"v_add_u32 v{vVA}, {VB:#x}, v24")
        a(f"v_add_u32 v{vVT}, {W2:#x}, v24")
        a(f"v_lshl_add_u32 v{vPub}, v{vH}, 14, v{vQ}")
        a("v_and_b32 v25, 1, v0")
        a(f"v_lshl_add_u32 v{vPub}, v25, 6, v{vPub}")
        a(f"s_lshl_b32 s33, s{sG}, 16")
        a(f"s_lshl_b32 s34, s{sB}, 13")
        a("s_add_u32 s33, s33, s34")
        a(f"s_lshl_b32 s34, s{sS}, 9")
        a("s_add_u32 s33, s33, s34")
        a(f"s_add_u32 s76, s33, {OX}")
        a(f"s_lshl_b32 s34, s{sC}, 7")
        a("s_add_u32 s71, s76, s34")
        a(f"s_lshl_b32 s33, s{sG}, 10")
        a(f"s_lshl_b32 s34, s{sB}, 7")
        a("s_add_u32 s33, s33, s34")
        a(f"s_lshl_b32 s34, s{sS}, 3")
        a("s_add_u32 s33, s33, s34")
        a(f"s_add_u32 s77, s33, {MLX}")
        if self.o.get("touch"):
            a(f"s_cmp_lg_u32 s{sC}, 6")
            a(f"s_cbranch_scc1 {self.lab('notouch')}")
            a("s_waitcnt lgkmcnt(0)")
            a(f"s_lshl_b32 s33, s{sB}, 3")
            a(f"s_add_u32 s33, s33, s{sG}")
            a("s_lshl_b32 s33, s33, 23")
            a(f"s_add_u32 s33, s33, {28672*256}")
            a(f"s_lshl_b32 s34, s{sG}, 19")
            a("v_mov_b32 v30, 0")
            for p_, o_ in ((16, None), (18, None), (6, "s33"), (8, "s33"), (20, None), (12, "s34")):
                if o_:
                    a(f"s_add_u32 s44, s{p_}, {o_}")
                    a(f"s_addc_u32 s45, s{p_+1}, 0")
                    a("s_mov_b64 exec, 1")
                    a(f"global_load_dword v31, v30, s[44:45]{self.o['touch']}")
                else:
                    a("s_mov_b64 exec, 1")
                    a(f"global_load_dword v31, v30, s[{p_}:{p_+1}]{self.o['touch']}")
            a("s_mov_b64 exec, -1")
            a.label(self.lab("notouch"))
        self.tr_addr(11, 7, False, 25, 26, 27)
        a(f"s_lshl_b32 s33, s{sC}, 5")
        a("v_xor_b32 v11, s33, v11")
        a("s_waitcnt lgkmcnt(0)")
        self.srd(40, 26, None, WS_USE)
        a("s_barrier")
        if self.o.get("bare"):
            if self.o.get("spin"):
                a(f"s_cmp_ge_u32 s{sC}, {self.o['spin']}")
                a(f"s_cbranch_scc1 {self.lab('end')}")
                self.wait_flag(vSM, F_PROG, 184, 8)
            if self.o.get("mon"):
                a(f"s_cmp_lg_u32 s{sC}, 0")
                a(f"s_cbranch_scc1 {self.lab('end')}")
                self.init_stamps([3, 4, 5, 6, 7, 8, 9, 10][:len(self.o["mon"])])
                for i, th in enumerate(self.o["mon"]):
                    self.wait_flag(vSM, F_PROG, th, 8)
                    self.stamp(3 + i)
                self.flush_stamps()
            a("s_endpgm")
        self.wait_flag(vSM, F_XN, 1, 8)
        a(f"ds_read_b32 v{vT}, v{vSM} offset:{F_TAG}")
        a(f"s_cmp_ge_u32 s{sC}, 4")
        a(f"s_cbranch_scc1 {self.lab('noq')}")
        a("v_and_b32 v26, 1, v0")
        a(f"v_mul_u32_u24 v25, {XNS}, v26")
        a(f"v_add_u32 v25, v25, v{vQ}")
        a(f"s_lshr_b32 s34, s{sJ}, 3")
        a("s_lshl_b32 s33, s34, 8")
        a(f"s_add_u32 s33, s33, {SM+XN}")
        a("v_add_u32 v25, s33, v25")
        for ks in range(4):
            a(f"ds_read_b128 v[{32+4*ks}:{35+4*ks}], v25 offset:{64*ks}")
        a(f"v_lshl_add_u32 v26, v26, 13, v{vQ}")
        a(f"s_lshl_b32 s33, s{sG}, 14")
        a("s_lshl_b32 s34, s34, 11")
        a("s_add_u32 s72, s33, s34")
        a(f"s_and_b32 s34, s{sJ}, 7")
        a("s_lshl_b32 s34, s34, 8")
        a("s_add_u32 s72, s72, s34")
        a(f"s_lshl_b32 s34, s{sC}, 6")
        a("s_add_u32 s72, s72, s34")
        a(f"s_add_u32 s72, s72, {QX}")
        a(f"s_lshl_b32 s34, s{sB}, 13")
        a("s_add_u32 s33, s33, s34")
        a(f"s_lshl_b32 s34, s{sC}, 9")
        a("s_add_u32 s33, s33, s34")
        a(f"s_add_u32 s73, s33, {QX}")
        a("s_add_u32 s74, s73, 4096")
        a("v_lshrrev_b32 v27, 5, v0")
        a("v_and_b32 v28, 31, v0")
        a("v_lshlrev_b32 v27, 11, v27")
        a("v_lshl_add_u32 v27, v28, 4, v27")
        a(f"s_mul_i32 s33, s{sC}, {QLS}")
        a(f"s_add_u32 s33, s33, {SM+QL}")
        a("v_lshl_add_u32 v28, v28, 3, s33")
        self.wait_flag(vSM, F_PROG, TH["q"], 8)
        for ks in range(4):
            for t in range(2):
                r = 48 + ks * 4 + t * 2
                a(f"ds_read_b64_tr_b16 v[{r}:{r+1}], v11 offset:{W0 + ks*4096 + t*2048}")
        a(f"v_and_b32 v{vT8}, s{sM8}, v{vT}")
        for ks in range(4):
            a(f"s_waitcnt lgkmcnt({6-2*ks})")
            r = 48 + ks * 4
            a(f"{MFMA} v[64:67], v[{r}:{r+3}], v[{32+4*ks}:{35+4*ks}], {'0' if ks == 0 else 'v[64:67]'}")
        self.signal(vSM, F_CQ, vOne)
        for e in range(4):
            a(f"v_add_u32 v{64+e}, 0x80, v{64+e}")
        for e in range(4):
            self.tag(64 + e, vT8, sM8)
        self.wait_flag(vSM, F_MODE, 1, 8)
        a(f"v_readfirstlane_b32 s{sMODE}, v8")
        self.publish("q", ["buffer_store_dwordx4 v[64:67], v26, s[40:43], s72 offen sc1"], M_J01)
        self.stamp(4)
        ql = ["buffer_load_dwordx4 v[32:35], v27, s[40:43], s73 offen sc1", "buffer_load_dwordx4 v[36:39], v27, s[40:43], s74 offen sc1"]
        if "q" in self.o["pref"]:
            for t in ql:
                a(t + self.o.get("qprefl", " nt"))
            if self.o.get("pinq"):
                a("s_waitcnt vmcnt(0)")
                for t in ql:
                    a(t)
        if self.o.get("qdelay"):
            self.wait_flag(vSM, F_PROG, self.o["qdelay"], 8)
        self.poll(ql, list(range(32, 40)), vT8, sM8, [40, 41, 42, 43, 44], "q")
        for e in range(8):
            a(f"v_xor_b32 v{32+e}, v{vT8}, v{32+e}")
        for e in range(4):
            a(f"v_add_f32 v{32+e}, v{32+e}, v{36+e}")
        a("v_permlane32_swap_b32 v32, v33")
        a("v_permlane32_swap_b32 v34, v35")
        a("v_add_f32 v32, v32, v33")
        a("v_add_f32 v34, v34, v35")
        a("v_mov_b32 v33, v32")
        a("v_mov_b32 v35, v34")
        a("v_permlane32_swap_b32 v32, v33")
        a("v_permlane32_swap_b32 v34, v35")
        a("v_cvt_pk_bf16_f32 v32, v32, v33")
        a("v_cvt_pk_bf16_f32 v33, v34, v35")
        self.exec_((0xFFFFFFFF, 0))
        a("ds_write_b64 v28, v[32:33]")
        self.signal(vSM, F_QR, vOne)
        self.stamp(5)
        a(f"s_branch {self.lab('scores')}")
        a.label(self.lab("noq"))
        self.wait_flag(vSM, F_MODE, 1, 8)
        a(f"v_readfirstlane_b32 s{sMODE}, v8")
        a.label(self.lab("scores"))
        a("s_waitcnt vmcnt(0) lgkmcnt(0)")
        a(f"v_and_b32 v{vT}, s{sM10}, v{vT}")
        a(f"s_lshl_b32 s34, s{sC}, 3")
        a(f"s_add_u32 s34, s34, {BASE['k'] + 8}")
        self.wait_flag(vSM, F_PROG, "s34", 8)
        KA, S = 48, 80
        for tt in range(2):
            for ks in range(4):
                r = KA + (tt * 4 + ks) * 4
                a(f"ds_read_b128 v[{r}:{r+3}], v{vKA+ks} offset:{4096*tt}")
        self.wait_flag(vSM, F_QR, 4, 8)
        for ks in range(4):
            a(f"ds_read_b128 v[{32+4*ks}:{35+4*ks}], v{vQB} offset:{QL + 64*ks}")
        for ks in range(4):
            a(f"s_waitcnt lgkmcnt({3-ks})")
            for tt in range(2):
                r = KA + (tt * 4 + ks) * 4
                d = S + 4 * tt
                a(f"{MFMA} v[{d}:{d+3}], v[{r}:{r+3}], v[{32+4*ks}:{35+4*ks}], {'0' if ks == 0 else f'v[{d}:{d+3}]'}")
        for rep in range(2):
            for i in range(4):
                a(f"v_cvt_pk_bf16_f32 v{32+i}, v{S+2*i}, v{S+2*i+1}")
            for i in range(4):
                a(f"v_lshlrev_b32 v{S+2*i}, 16, v{32+i}")
                a(f"v_and_b32 v{S+2*i+1}, s{sHI}, v{32+i}")
            if rep == 0:
                for i in range(8):
                    a(f"v_mul_f32 v{S+i}, {SCALE:#x}, v{S+i}")
        a(f"v_max3_f32 v32, v{S}, v{S+1}, v{S+2}")
        a(f"v_max3_f32 v33, v{S+3}, v{S+4}, v{S+5}")
        a(f"v_max3_f32 v32, v32, v{S+6}, v{S+7}")
        a("v_max_f32 v32, v32, v33")
        self.swap_reduce("v_max_f32", 32, 33, 16)
        self.swap_reduce("v_max_f32", 32, 33, 32)
        self.exec_(0x1111)
        a(f"ds_write_b32 v{vMW}, v32 offset:{MX}")
        self.signal(vSM, F_MAX, vOne)
        a(f"s_mov_b32 s34, {LOG2E:#x}")
        self.wait_flag(vSM, F_MAX, 8, 8)
        a(f"ds_read_b128 v[32:35], v{vMR} offset:{MX}")
        a(f"ds_read_b128 v[36:39], v{vMR} offset:{MX+16}")
        a("s_waitcnt lgkmcnt(0)")
        a("v_max3_f32 v32, v32, v33, v34")
        a("v_max3_f32 v35, v35, v36, v37")
        a("v_max3_f32 v32, v32, v38, v39")
        vM = 8
        a(f"v_max_f32 v{vM}, v32, v35")
        a(f"v_mul_f32 v33, s34, v{vM}")
        for i in range(8):
            a(f"v_fma_f32 v{S+i}, v{S+i}, s34, -v33")
        for i in range(8):
            a(f"v_exp_f32 v{S+i}, v{S+i}")
        for i in range(4):
            a(f"v_cvt_pk_bf16_f32 v{32+i}, v{S+2*i}, v{S+2*i+1}")
        self.exec_(M_J4)
        a(f"ds_write_b128 v{vPW}, v[32:35] offset:{PL}")
        self.exec_(-1)
        for i in range(4):
            a(f"v_add_f32 v{S+i}, v{S+i}, v{S+4+i}")
        a(f"v_add_f32 v{S}, v{S}, v{S+1}")
        a(f"v_add_f32 v{S+2}, v{S+2}, v{S+3}")
        a(f"v_add_f32 v{S}, v{S}, v{S+2}")
        self.swap_reduce("v_add_f32", S, S + 1, 16)
        self.swap_reduce("v_add_f32", S, S + 1, 32)
        self.exec_(0x1111)
        a(f"ds_write_b32 v{vMW}, v{S} offset:{LS}")
        self.signal(vSM, F_P, vOne)
        a(f"s_cmp_ge_u32 s{sC}, 4")
        a(f"s_cbranch_scc1 {self.lab('comb')}")
        a("s_setprio 2")
        self.wait_flag(vSM, F_P, 8, 9)
        PB = 32
        for ks in range(8):
            a(f"ds_read_b128 v[{PB+4*ks}:{PB+4*ks+3}], v{vPR} offset:{PL + 64*ks}")
        self.stamp(6)
        a(f"s_cmp_lg_u32 s{sC}, 0")
        a(f"s_cbranch_scc1 {self.lab('noml')}")
        a(f"ds_read_b128 v[64:67], v{vMR} offset:{LS}")
        a(f"ds_read_b128 v[68:71], v{vMR} offset:{LS+16}")
        a(f"v_lshlrev_b32 v72, 8, v{vH}")
        a("s_waitcnt lgkmcnt(0)")
        for e in range(4):
            a(f"v_add_f32 v{64+e}, v{64+e}, v{68+e}")
        a("v_add_f32 v64, v64, v65")
        a("v_add_f32 v66, v66, v67")
        a("v_add_f32 v65, v64, v66")
        self.tag(64, vT, sM10, vM)
        self.tag(65, vT, sM10)
        self.publish("m", ["buffer_store_dwordx2 v[64:65], v72, s[40:43], s77 offen sc1"], 0x1111)
        a.label(self.lab("noml"))
        O = 96
        a(f"v_xor_b32 v24, 32, v{vVA}")
        a(f"v_xor_b32 v25, 32, v{vVT}")
        a(f"s_lshl_b32 s33, s{sC}, 5")
        a("v_xor_b32 v11, s33, v11")
        a(f"s_lshl_b32 s33, s{sC}, 6")
        a("v_xor_b32 v11, s33, v11")
        a("v_xor_b32 v10, 32, v11")
        a("v_and_b32 v28, 1, v0")
        a(f"v_mul_u32_u24 v29, {OLS}, v28")
        a(f"v_add3_u32 v29, v29, v{vQ}, v{vSM}")
        a(f"v_lshl_add_u32 v28, v28, 17, v{vQ}")
        a("v_bfe_u32 v26, v0, 1, 1")
        a("v_lshl_add_u32 v28, v26, 6, v28")
        if self.o.get("wsh"):
            a(f"s_add_u32 s33, s{sJ}, {self.o['wsh']}")
            a("s_and_b32 s33, s33, 7")
        else:
            a(f"s_and_b32 s33, s{sJ}, 7")
        a("s_lshl_b32 s33, s33, 1")
        a(f"s_add_u32 s33, s33, s{sC}")
        a("s_lshl_b32 s33, s33, 13")
        a(f"s_lshl_b32 s34, s{sG}, 2")
        a(f"s_lshr_b32 s72, s{sJ}, 3")
        a("s_add_u32 s34, s34, s72")
        a("s_lshl_b32 s34, s34, 7")
        a("s_add_u32 s33, s33, s34")
        a(f"s_add_u32 s72, s33, {FX}")

        def pv(grp, thr):
            self.wait_flag(vSM, F_PROG, thr, 9)
            for n, ks in enumerate(grp):
                for u in range(2):
                    for t in range(2):
                        r = 64 + n * 8 + u * 4 + t * 2
                        if ks < 7:
                            a(f"ds_read_b64_tr_b16 v[{r}:{r+1}], v{24 if u else vVA} offset:{ks*8192 + t*4096}")
                        else:
                            a(f"ds_read_b64_tr_b16 v[{r}:{r+1}], v{25 if u else vVT} offset:{t*4096}")
            for n, ks in enumerate(grp):
                for u in range(2):
                    a(f"s_waitcnt lgkmcnt({4*(len(grp)-1-n) + 2*(1-u)})")
                    r = 64 + n * 8 + u * 4
                    d = O + 4 * u
                    a(f"{MFMA} v[{d}:{d+3}], v[{r}:{r+3}], v[{PB+4*ks}:{PB+4*ks+3}], {'0' if ks == 0 else f'v[{d}:{d+3}]'}")

        bv = BASE["v"]
        pv((0, 1, 2), bv + 24)
        pv((3, 4), bv + 40)
        pv((5,), bv + 48)
        pv((6,), bv + 56)
        a("s_mov_b32 s34, 0x22222222")
        a("s_mov_b32 s35, 0x22222222")
        pv((7,), TH["t"])
        for e in range(4):
            a(f"v_cndmask_b32 v{O+e}, v{O+e}, v{O+4+e}, s[34:35]")
        for e in range(4):
            self.tag(O + e, vT, sM10)
        self.publish("o", [f"buffer_store_dwordx4 v[{O}:{O+3}], v{vPub}, s[40:43], s71 offen sc1"], (0x33333333, 0x33333333))
        self.stamp(7)
        self.fine("opub", 94)
        self.fine_flush("opub", 94)
        a(f"s_cmp_ge_u32 s{sC}, 2")
        a(f"s_cbranch_scc1 {self.lab('cend')}")
        a("s_mov_b32 s34, 0xcccccccc")
        a("s_mov_b32 s35, 0xcccccccc")
        self.wait_flag(vSM, F_PROG, max(TH["o"], TH["p"]), 9)
        for u in range(2):
            for ks in range(4):
                for t in range(2):
                    r = 48 + u * 16 + ks * 4 + t * 2
                    a(f"ds_read_b64_tr_b16 v[{r}:{r+1}], v{10 if u else 11} offset:{W0 + ks*4096 + t*2048}")
        a("s_waitcnt lgkmcnt(0)")
        a("s_barrier")
        for ks in range(4):
            a(f"ds_read_b128 v[{32+4*ks}:{35+4*ks}], v29 offset:{OL + 64*ks}")
        for ks in range(4):
            a(f"s_waitcnt lgkmcnt({3-ks})")
            for u in range(2):
                r = 48 + u * 16 + ks * 4
                d = 80 + 4 * u
                a(f"{MFMA} v[{d}:{d+3}], v[{r}:{r+3}], v[{32+4*ks}:{35+4*ks}], {'0' if ks == 0 else f'v[{d}:{d+3}]'}")
        for e in range(4):
            a(f"v_cndmask_b32 v{80+e}, v{80+e}, v{84+e}, s[34:35]")
        for e in range(4):
            self.tag(80 + e, vT, sM10)
        self.publish("s", ["buffer_store_dwordx4 v[80:83], v28, s[40:43], s72 offen sc1"], M_J03, local=False, restore=None)
        self.stamp(10)
        if self.o.get("ack", 1):
            a("s_waitcnt vmcnt(0)")
        a("s_barrier")
        a.label(self.lab("cend"))
        self.flush_stamps(who)
        a("s_endpgm")
        a.label(self.lab("comb"))
        a("s_setprio 1")
        if "o" in self.o["pref"]:
            a(f"s_cmp_ge_u32 s{sC}, 6")
            a(f"s_cbranch_scc1 {self.lab('pre6')}")
            a("v_lshrrev_b32 v27, 5, v0")
            a("v_and_b32 v28, 31, v0")
            a("v_lshlrev_b32 v27, 14, v27")
            a("v_lshl_add_u32 v27, v28, 4, v27")
            a(f"s_sub_u32 s33, s{sC}, 4")
            a("s_lshl_b32 s33, s33, 15")
            a("s_add_u32 s33, s33, s76")
            if self.o.get("opre_at"):
                self.wait_flag(vSM, F_PROG, self.o["opre_at"], 9)
            a(f"buffer_load_dwordx4 v[32:35], v27, s[40:43], s33 offen {self.o.get('oprefl', 'sc1 nt')}")
            if self.o.get("pin") == "ld":
                a("s_waitcnt vmcnt(0)")
                a("buffer_load_dwordx4 v[32:35], v27, s[40:43], s33 offen sc1")
            elif self.o.get("pin") == "st":
                a(f"v_add_u32 v36, -1, v{vT}")
                for e in range(1, 4):
                    a(f"v_mov_b32 v{36+e}, v36")
                a("s_waitcnt vmcnt(0)")
                a("buffer_store_dwordx4 v[36:39], v27, s[40:43], s33 offen")
            a.label(self.lab("pre6"))
        a(f"s_and_b32 s72, s{sC}, 1")
        a(f"s_bfe_u32 s75, s{sC}, 0x10001")
        a(f"s_lshr_b32 s74, s{sJ}, 3")
        a(f"s_lshl_b32 s33, s{sG}, 10")
        a("s_lshl_b32 s34, s74, 8")
        a("s_add_u32 s33, s33, s34")
        a("s_lshl_b32 s34, s72, 7")
        a("s_add_u32 s33, s33, s34")
        a(f"s_add_u32 s77, s33, {MLX}")
        a(f"v_lshlrev_b32 v24, 1, v{vQ}")
        a("v_and_b32 v26, 15, v0")
        a(f"v_lshlrev_b32 v25, 7, v{vQ}")
        a("v_lshl_add_u32 v25, v26, 4, v25")
        a(f"s_lshl_b32 s33, s{sG}, 16")
        a("s_lshl_b32 s34, s74, 14")
        a("s_add_u32 s33, s33, s34")
        a("s_lshl_b32 s34, s72, 13")
        a("s_add_u32 s33, s33, s34")
        a("s_lshl_b32 s34, s75, 8")
        a("s_add_u32 s33, s33, s34")
        a(f"s_add_u32 s73, s33, {OX}")
        a("v_and_b32 v26, 3, v0")
        a("v_lshlrev_b32 v26, 4, v26")
        a("v_bfe_u32 v27, v0, 2, 1")
        a("v_lshl_add_u32 v26, v27, 3, v26")
        a("v_bfe_u32 v27, v0, 3, 1")
        a("v_lshl_add_u32 v26, v27, 6, v26")
        a("v_bfe_u32 v27, v0, 4, 1")
        a("v_lshl_add_u32 v26, v27, 2, v26")
        a("v_lshrrev_b32 v27, 5, v0")
        a("v_lshl_add_u32 v26, v27, 1, v26")
        a(f"s_mul_i32 s33, s72, {OLS}")
        a("s_lshl_b32 s34, s75, 7")
        a("s_add_u32 s33, s33, s34")
        a(f"s_add_u32 s33, s33, {SM+OL}")
        a("v_add_u32 v26, s33, v26")
        a(f"s_mov_b32 s34, {LOG2E:#x}")
        if self.o.get("mdelay"):
            self.wait_flag(vSM, F_PROG, self.o["mdelay"], 9)
        tm = list(range(48, 58))
        ml = ["buffer_load_dwordx4 v[80:83], v24, s[40:43], s77 offen sc1", "buffer_load_dwordx4 v[84:87], v24, s[40:43], s77 offen offset:16 sc1"]
        ol = [f"buffer_load_dwordx4 v[{32+4*t}:{35+4*t}], v25, s[40:43], s73 offen offset:{512*t} sc1" for t in range(4)]
        merged = self.o.get("merge") and not self.o.get("skip")
        if merged:
            topA, gotm = self.uniq("pa"), self.uniq("pm")
            a.label(topA)
            a(f"s_sub_u32 s{sCAP}, s{sCAP}, 16")
            a(f"s_cbranch_scc1 {self.lab('abort')}")
            a(f"ds_read_b32 v9, v{vSM} offset:{F_PROG}")
            for t in ml:
                a(t)
            a("s_waitcnt lgkmcnt(0)")
            a(f"v_cmp_le_i32 vcc, {self.o['merge']}, v9")
            a("s_nop 0")
            a("s_mov_b64 s[74:75], vcc")
            a("s_cmp_eq_u64 s[74:75], 0")
            a(f"s_cbranch_scc1 {gotm}")
            for t in ol:
                a(t)
            a.label(gotm)
            a("s_waitcnt vmcnt(0)")
            self.check(list(range(80, 88)), vT, sM10, tm)
            a(f"s_cbranch_vccnz {topA}")
        else:
            self.poll(ml, list(range(80, 88)), vT, sM10, tm, "m")
        for t in range(4):
            a(f"v_xor_b32 v{80+2*t}, v{vT}, v{80+2*t}")
        a("v_max3_f32 v8, v80, v82, v84")
        a("v_max_f32 v8, v8, v86")
        self.swap_reduce("v_max_f32", 8, 9, 16)
        self.swap_reduce("v_max_f32", 8, 9, 32)
        for t in range(4):
            a(f"v_sub_f32 v{80+2*t}, v{80+2*t}, v8")
        for t in range(4):
            a(f"v_mul_f32 v{80+2*t}, s34, v{80+2*t}")
        for t in range(4):
            a(f"v_exp_f32 v{80+2*t}, v{80+2*t}")
        a("v_mul_f32 v8, v80, v81")
        for t in range(1, 4):
            a(f"v_fmac_f32 v8, v{80+2*t}, v{81+2*t}")
        self.swap_reduce("v_add_f32", 8, 9, 16)
        self.swap_reduce("v_add_f32", 8, 9, 32)
        a("v_rcp_f32 v8, v8")
        for t in range(4):
            a(f"v_mul_f32 v{80+2*t}, v{80+2*t}, v8")
        self.stamp(8)
        self.stamp(11) if self.o.get("fine") else None
        if merged:
            topB, chk = self.uniq("pb"), self.uniq("pc")
            a("s_cmp_lg_u64 s[74:75], 0")
            a(f"s_cbranch_scc1 {chk}")
            self.wait_flag(vSM, F_PROG, self.o["merge"], 9)
            a.label(topB)
            a(f"s_sub_u32 s{sCAP}, s{sCAP}, 16")
            a(f"s_cbranch_scc1 {self.lab('abort')}")
            for t in ol:
                a(t)
            a("s_waitcnt vmcnt(0)")
            a.label(chk)
            self.check(list(range(32, 48)), vT, sM10, tm)
            a(f"s_cbranch_vccnz {topB}")
        else:
            if self.o.get("odelay"):
                self.wait_flag(vSM, F_PROG, self.o["odelay"], 9)
            self.poll(ol, list(range(32, 48)), vT, sM10, tm, "o")
        self.fine("ogot", 94)
        for h in range(2):
            a(f"v_pk_mul_f32 v[{32+2*h}:{33+2*h}], v[{32+2*h}:{33+2*h}], v[80:81] op_sel_hi:[1,0]")
        for t in range(1, 4):
            for h in range(2):
                a(f"v_pk_fma_f32 v[{32+2*h}:{33+2*h}], v[{32+4*t+2*h}:{33+4*t+2*h}], v[{80+2*t}:{81+2*t}], v[{32+2*h}:{33+2*h}] op_sel_hi:[1,0,1]")
        a("v_permlane32_swap_b32 v32, v33")
        a("v_permlane32_swap_b32 v34, v35")
        a("v_add_f32 v32, v32, v33")
        a("v_add_f32 v34, v34, v35")
        a("v_permlane16_swap_b32 v32, v34")
        a("v_add_f32 v32, v32, v34")
        a("v_cvt_pk_bf16_f32 v32, v32, v32")
        a("ds_write_b16 v26, v32")
        a("s_waitcnt lgkmcnt(0)")
        a("s_barrier")
        self.stamp(9)
        self.stamp(12) if self.o.get("fine") else None
        self.fine_flush("ogot", 94)
        self.flush_stamps(who)
        a("s_endpgm")
        self.emit_far()

    def body(self):
        a = self.a
        self.far = []
        self.prologue()
        self.loader()
        a.label(self.lab("notloader"))
        a(f"s_cmp_lg_u32 s{sW}, 1")
        a(f"s_cbranch_scc1 {self.lab('cwave')}")
        self.gwave()
        a.label(self.lab("cwave"))
        self.cwave()
        a.label(self.lab("abort"))
        a.label(self.lab("end"))
        a("s_endpgm")
        a.label(self.lab("codeend"))
        return a.text()


def header():
    ref = open("recurrent_scan__sliding_block_cached__glu_gated_glu__decode.s.ref").read().split("\n")
    out = []
    for l in ref:
        if l.startswith("; @launch"):
            out.append(f"; @launch grid=(256,1,1) block=({NW*64},1,1) lds={LDS_BYTES}")
            break
        out.append(l)
    return "\n".join(out) + "\n"


def final_file(path, cls=None, **kw):
    g = (cls or Gen3)(**kw)
    body = g.body()
    s = header()
    s += f""".amdgcn_target "amdgcn-amd-amdhsa--gfx950"
.text
.globl {KNAME}
.p2align 8
.type {KNAME},@function
{KNAME}:
{body}.section .rodata,"a"
.p2align 6
.amdhsa_kernel {KNAME}
  .amdhsa_next_free_vgpr {NVGPR}
  .amdhsa_next_free_sgpr 102
  .amdhsa_accum_offset {NVGPR}
  .amdhsa_group_segment_fixed_size 0
  .amdhsa_kernarg_size 96
  .amdhsa_user_sgpr_count 2
  .amdhsa_user_sgpr_kernarg_segment_ptr 1
  .amdhsa_system_sgpr_workgroup_id_x 1
.end_amdhsa_kernel
"""
    open(path, "w").write(s)
    return g


def build_variants(out, variants, cls=None):
    from asmlib import build
    ks = []
    for n, kw in variants:
        g = (cls or Gen3)(name=n + "_kernel", **kw)
        ks.append((n + "_kernel", g.body(), NVGPR, NW * 64))
    build(out, ks)
    open(out + ".names", "w").write("".join(f"{n}_kernel:256:{NW*64}:{LDS_BYTES}\n" for n, kw in variants))


if __name__ == "__main__":
    build_variants("kern3", [("k3s", dict(N=24, stamps=True)), ("k3", dict(N=24)), ("k3nl", dict(N=24, opts=dict(nolocal=1)))])
```

```python
from gen3 import *
full=dict(ilv=None,rot=(9,4,2),order="qgukvtdop",qdelay=64,gdelay=128,mdelay=128,odelay=168,early=1,lpf=1,pref="",ntfirst="qgmo")
final_file("cand/d_A.s",N=22,opts=full)
final_file("cand/d_A_amp.s",N=22,opts=dict(full,amp=(20,7,"end")))
final_file("cand/d_A_amp2.s",N=22,opts=dict(full,amp=(20,2,"end")))
final_file("cand/d_A_ampS.s",N=22,opts=dict(full,amp=(20,7,"stream")))
```

```python
from dsl import Asm

KNAME = "recurrent_scan__sliding_block_cached__glu_gated_glu__decode_kernel"

W0, W1, W2, KB, VB, SM = 0x0000, 0x4000, 0x6000, 0x8000, 0x18000, 0x26000
XN, QL, PL, MX, LS, OL, HL, FL = 0x0000, 0x0900, 0x0E00, 0x1700, 0x1780, 0x1800, 0x1A80, 0x1C00
XNS, QLS, PLS, OLS, HLS = 1088, 320, 576, 320, 192
F_PROG, F_XN, F_CQ, F_CG, F_QR, F_MAX, F_P, F_TAG, F_MODE, F_OS = [FL + 4 * i for i in range(10)]
LDS_BYTES = 163840
QX, GX, MLX, OX, FX = 0x1000, 0x21000, 0x59000, 0x61000, 0xE1000
FXS = 64 * 128
WS_USE = 0x200000
sG, sJ, sW, sB, sS = 28, 29, 30, 31, 32
sMODE, sM10, sM8, sCAP, sHI = 64, 65, 66, 67, 63
SCALE = 0x3DB504F3
LOG2E = 0x3FB8AA3B
EPS = 0x3727C5AC
M_J01 = (0x00030003, 0x00030003)
M_J03 = (0x000F000F, 0x000F000F)
M_J4 = (0x11111111, 0x11111111)
NW = 10
NVGPR = 104
CNT = dict(q=16, g=8, u=8, k=64, v=56, t=8, o=8, p=8, d=8)
MFMA = "v_mfma_f32_16x16x32_bf16"


class Gen3:
    def __init__(self, N=24, stamps=False, name=KNAME, opts=None):
        self.a = Asm()
        self.N = N
        self.stamps = stamps
        self.name = name
        self.u = 0
        self.o = dict(order="qgukvtdop", ilv=4096, qdelay=72, gdelay=128, mdelay=0, odelay=160, pref="qgo")
        self.o.update(opts or {})
        self.TH, self.BASE = {}, {}
        self.CNT = dict(CNT)
        if "w" in self.o["order"]:
            assert "vw" in self.o["order"]
            self.CNT["v"] = self.o["vsplit"]
            self.CNT["w"] = 56 - self.o["vsplit"]
        if "j" in self.o["order"]:
            assert "kj" in self.o["order"]
            self.CNT["k"] = self.o["ksplit"]
            self.CNT["j"] = 64 - self.o["ksplit"]
        n = 0
        for p in self.o["order"]:
            self.BASE[p] = n
            n += self.CNT[p]
            self.TH[p] = n
        assert n == 184

    def lab(self, s):
        return f"L_{s}_{self.name[-24:]}" if self.name != KNAME else f"L_{s}"

    def uniq(self, s):
        self.u += 1
        return self.lab(f"{s}{self.u}")

    def srd(self, d, p, off, size):
        a = self.a
        if off is None:
            a(f"s_mov_b32 s{d}, s{p}")
            a(f"s_mov_b32 s{d+1}, s{p+1}")
        else:
            a(f"s_add_u32 s{d}, s{p}, {off}")
            a(f"s_addc_u32 s{d+1}, s{p+1}, 0")
        if self.o.get("nostream") and p in (6, 8, 10, 12, 16, 18, 20):
            size = 0
        if p in self.o.get("zero", ()):
            size = 0
        a(f"s_mov_b32 s{d+2}, {size}")
        a(f"s_mov_b32 s{d+3}, 0x20000")

    def exec_(self, m):
        a = self.a
        if isinstance(m, int):
            a(f"s_mov_b64 exec, {m}")
        else:
            a(f"s_mov_b32 exec_lo, {m[0]:#x}")
            a(f"s_mov_b32 exec_hi, {m[1]:#x}")

    def init_stamps(self, slots):
        self.myslots = slots
        if self.stamps:
            for i in range(len(slots)):
                self.a(f"s_mov_b64 s[{80+2*i}:{81+2*i}], 0")

    def stamp(self, slot):
        if self.stamps and slot in self.myslots:
            i = self.myslots.index(slot)
            self.a(f"s_memrealtime s[{80+2*i}:{81+2*i}]")
            self.a("s_waitcnt lgkmcnt(0)")

    def flush_stamps(self, who=None):
        if not self.stamps:
            return
        a = self.a
        a("s_lshl_b32 s33, s2, 7")
        a("s_add_u32 s33, s33, 0x10000000")
        self.srd(76, 26, "s33", 128)
        a("s_mov_b64 exec, 1")
        for i, slot in enumerate(self.myslots):
            sk = self.uniq("cs")
            if who is not None:
                a(f"s_cmp_eq_u32 s70, {who(slot)}")
                a(f"s_cbranch_scc0 {sk}")
            a(f"v_mov_b32 v24, s{80+2*i}")
            a(f"v_mov_b32 v25, s{81+2*i}")
            a(f"buffer_store_dwordx2 v[24:25], off, s[76:79], 0 offset:{8*slot}")
            a("s_nop 1")
            a.label(sk)

    def fine(self, name, base):
        if self.stamps and self.o.get("fine", {}).get(name) is not None:
            self.a(f"s_memrealtime s[{base}:{base+1}]")
            self.a("s_waitcnt lgkmcnt(0)")

    def fine_flush(self, name, base):
        if self.stamps and self.o.get("fine", {}).get(name) is not None:
            a = self.a
            a("s_lshl_b32 s33, s2, 7")
            a("s_add_u32 s33, s33, 0x10000000")
            self.srd(76, 26, "s33", 128)
            a("s_mov_b64 exec, 1")
            a("s_and_b32 s33, s70, 3")
            a(f"s_add_u32 s33, s33, {self.o['fine'][name]}")
            a("s_lshl_b32 s33, s33, 3")
            a(f"v_mov_b32 v24, s{base}")
            a(f"v_mov_b32 v25, s{base+1}")
            a("buffer_store_dwordx2 v[24:25], off, s[76:79], s33")
            a("s_nop 1")

    def amp(self, what):
        if not self.o.get("amp") or self.o["amp"][2] != what:
            return
        K, wg, _ = self.o["amp"]
        a = self.a
        top, done = self.uniq("amp"), self.uniq("ampd")
        a(f"s_cmp_lg_u32 s2, {wg}")
        a(f"s_cbranch_scc1 {done}")
        a("s_memrealtime s[94:95]")
        a("s_waitcnt lgkmcnt(0)")
        if self.o.get("ampskew") is not None:
            a("s_mov_b64 exec, 1")
            a(f"buffer_load_dword v4, off, s[40:43], 0 offset:{256 + 4*self.o['ampskew']} sc1")
            a("s_waitcnt vmcnt(0)")
            a("v_readfirstlane_b32 s96, v4")
            a("s_nop 3")
            a("s_sub_u32 s96, s98, s96")
            a("s_add_u32 s96, s96, 200")
        else:
            a("s_sub_u32 s96, s94, s98")
        a(f"s_mul_i32 s96, s96, {K}")
        a("s_min_u32 s96, s96, 100000")
        a.label(top)
        a("s_memrealtime s[92:93]")
        a("s_waitcnt lgkmcnt(0)")
        a("s_sub_u32 s92, s92, s94")
        a("s_cmp_lt_u32 s92, s96")
        a(f"s_cbranch_scc1 {top}")
        a.label(done)

    def wait_flag(self, vsm, flag, thr, vt, urgent=False):
        a = self.a
        slp = 0 if urgent else self.o.get("ldssleep", 0)
        top = self.uniq("w")
        a.label(top)
        a(f"s_sub_u32 s{sCAP}, s{sCAP}, 1")
        a(f"s_cbranch_scc1 {self.lab('abort')}")
        a(f"ds_read_b32 v{vt}, v{vsm} offset:{flag}")
        a("s_waitcnt lgkmcnt(0)")
        a(f"v_cmp_le_i32 vcc, {thr}, v{vt}")
        if slp:
            done = self.uniq("wd")
            a(f"s_cbranch_vccnz {done}")
            a(f"s_sleep {slp}")
            a(f"s_branch {top}")
            a.label(done)
        else:
            a(f"s_cbranch_vccz {top}")

    def signal(self, vsm, flag, vone, restore=-1):
        a = self.a
        a("s_mov_b64 exec, 1")
        a(f"ds_add_u32 v{vsm}, v{vone} offset:{flag}")
        if restore is not None:
            self.exec_(restore)

    def check(self, regs, vT, smask, tmps):
        a0 = self.a
        ex = list(getattr(self, "extra", []))

        def a(t):
            a0(t)
            if ex and not t.startswith("v_bitop3"):
                a0(ex.pop(0))
                if ex:
                    a0(ex.pop(0))
        xs = []
        for i in range(0, len(regs), 2):
            t = tmps[i // 2]
            a(f"v_bitop3_b32 v{t}, v{regs[i]}, v{regs[i+1]}, v{vT} bitop3:0x7e")
            xs.append(t)
        while len(xs) > 1:
            nx, i = [], 0
            while i < len(xs):
                if i + 2 < len(xs):
                    a(f"v_or3_b32 v{xs[i]}, v{xs[i]}, v{xs[i+1]}, v{xs[i+2]}")
                    nx.append(xs[i]); i += 3
                elif i + 1 < len(xs):
                    a(f"v_or_b32 v{xs[i]}, v{xs[i]}, v{xs[i+1]}")
                    nx.append(xs[i]); i += 2
                else:
                    nx.append(xs[i]); i += 1
            xs = nx
        a(f"v_and_b32 v{xs[0]}, s{smask}, v{xs[0]}")
        while ex:
            a0(ex.pop(0))
        a0(f"v_cmp_ne_u32 vcc, 0, v{xs[0]}")

    def poll_masked(self, loads, regs, vT, smask, tmps, base_exec):
        a = self.a
        n = len(loads)
        M = [52 + 2 * i for i in range(n)]
        assert n <= 4
        top, done = self.uniq("p"), self.uniq("pd")
        for t in loads:
            a(t)
        a("s_waitcnt vmcnt(0)")

        def checks(first):
            if first:
                for i in range(n):
                    r = regs[4 * i:4 * i + 4]
                    a(f"v_bitop3_b32 v{tmps[2*i]}, v{r[0]}, v{r[1]}, v{vT} bitop3:0x7e")
                    a(f"v_bitop3_b32 v{tmps[2*i+1]}, v{r[2]}, v{r[3]}, v{vT} bitop3:0x7e")
                self.check_tail([tmps[i] for i in range(2 * n)], smask, tmps[2 * n])
            for i in range(n):
                r = regs[4 * i:4 * i + 4]
                if not first:
                    a(f"s_mov_b64 exec, s[{M[i]}:{M[i]+1}]")
                    a(f"v_bitop3_b32 v{tmps[2*i]}, v{r[0]}, v{r[1]}, v{vT} bitop3:0x7e")
                    a(f"v_bitop3_b32 v{tmps[2*i+1]}, v{r[2]}, v{r[3]}, v{vT} bitop3:0x7e")
                a(f"v_or_b32 v{tmps[2*i]}, v{tmps[2*i]}, v{tmps[2*i+1]}")
                a(f"v_and_b32 v{tmps[2*i]}, s{smask}, v{tmps[2*i]}")
                a(f"v_cmp_ne_u32 s[{M[i]}:{M[i]+1}], 0, v{tmps[2*i]}")

        checks(True)
        a("s_nop 1")
        a.label(top)
        a(f"s_sub_u32 s{sCAP}, s{sCAP}, 16")
        a(f"s_cbranch_scc1 {self.lab('abort')}")
        for i, t in enumerate(loads):
            sk = self.uniq("pk")
            a(f"s_mov_b64 exec, s[{M[i]}:{M[i]+1}]")
            a(f"s_cbranch_execz {sk}")
            a(t)
            a.label(sk)
        a("s_waitcnt vmcnt(0)")
        checks(False)
        a("s_nop 1")
        a(f"s_mov_b64 s[60:61], s[{M[0]}:{M[0]+1}]")
        for i in range(1, n):
            a(f"s_or_b64 s[60:61], s[60:61], s[{M[i]}:{M[i]+1}]")
        a("s_cmp_lg_u64 s[60:61], 0")
        a(f"s_cbranch_scc1 {top}")
        a.label(self.pm_done)
        self.exec_(base_exec)

    def check_tail(self, xs, smask, t):
        a = self.a
        self.pm_done = self.uniq("pmd")
        cur = xs[0]
        i = 1
        first = True
        while i < len(xs):
            if i + 1 < len(xs):
                a(f"v_or3_b32 v{t}, v{cur}, v{xs[i]}, v{xs[i+1]}")
                i += 2
            else:
                a(f"v_or_b32 v{t}, v{cur}, v{xs[i]}")
                i += 1
            cur = t
        a(f"v_and_b32 v{t}, s{smask}, v{t}")
        a(f"v_cmp_ne_u32 vcc, 0, v{t}")
        a(f"s_cbranch_vccz {self.pm_done}")

    def poll(self, loads, regs, vT, smask, tmps, name, base_exec=-1, extra=None):
        a = self.a
        self.extra = list(extra or [])
        if name in self.o.get("skip", ""):
            return
        if name in self.o.get("ntfirst", ""):
            top, chk = self.uniq("p"), self.uniq("pc")
            for t in loads:
                a(t + " nt")
            a(f"s_branch {chk}")
            a.label(top)
            a(f"s_sub_u32 s{sCAP}, s{sCAP}, 16")
            a(f"s_cbranch_scc1 {self.lab('abort')}")
            for t in loads:
                a(t)
            a.label(chk)
            a("s_waitcnt vmcnt(0)")
            self.check(regs, vT, smask, tmps)
            a(f"s_cbranch_vccnz {top}")
            return
        if name in self.o.get("masked", ""):
            return self.poll_masked(loads, regs, vT, smask, tmps, base_exec)
        top = self.uniq("p")
        tr = self.stamps and self.o.get("count", {}).get(name)
        if tr and all(x in self.myslots for x in tr):
            self.stamp(tr[0])
            i = self.myslots.index(tr[1])
            a(f"s_mov_b64 s[{80+2*i}:{81+2*i}], s[98:99]")
            for t in loads:
                a(t)
            a("s_waitcnt vmcnt(0)")
            self.stamp(tr[2])
            a.label(top)
            a(f"s_add_u32 s{80+2*i}, s{80+2*i}, 1")
            a(f"s_sub_u32 s{sCAP}, s{sCAP}, 16")
            a(f"s_cbranch_scc1 {self.lab('abort')}")
            self.check(regs, vT, smask, tmps)
            done = self.uniq("pd")
            a(f"s_cbranch_vccz {done}")
            for t in loads:
                a(t)
            a("s_waitcnt vmcnt(0)")
            a(f"s_branch {top}")
            a.label(done)
            return
        a.label(top)
        a(f"s_sub_u32 s{sCAP}, s{sCAP}, 16")
        a(f"s_cbranch_scc1 {self.lab('abort')}")
        for t in loads:
            a(t)
        a("s_waitcnt vmcnt(0)")
        self.check(regs, vT, smask, tmps)
        a(f"s_cbranch_vccnz {top}")

    def tag(self, r, vT, smask, src=None):
        self.a(f"v_bfi_b32 v{r}, s{smask}, v{vT}, v{r if src is None else src}")

    def publish(self, name, stores, mask, local=True, restore=-1, precmp=False):
        a = self.a
        if name in self.o.get("nostore", ""):
            if restore is not None:
                self.exec_(restore)
            return
        if mask is not None:
            self.exec_(mask)
        if local:
            far, done = self.uniq("far"), self.uniq("pub")
            if not precmp:
                a(f"s_cmp_eq_u32 s{sMODE}, 2")
            a(f"s_cbranch_scc0 {far}")
            for t in stores:
                a(t.replace(" sc1", ""))
            self.far.append((far, stores, done))
            a.label(done)
        else:
            for t in stores:
                a(t)
        if restore is not None:
            self.exec_(restore)

    def emit_far(self):
        a = self.a
        for far, stores, done in self.far:
            a.label(far)
            for t in stores:
                a(t)
            a(f"s_branch {done}")
        self.far = []

    def rnd(self, d, src=None):
        self.a(f"v_cvt_pk_bf16_f32 v{d}, 0, v{d if src is None else src}")

    def row_reduce(self, op, regs):
        for sh in (8, 4, 2, 1):
            for r in regs:
                self.a(f"{op}_dpp v{r}, v{r}, v{r} row_ror:{sh} row_mask:0xf bank_mask:0xf")

    def swap_reduce(self, op, r, tmp, which):
        a = self.a
        a(f"v_mov_b32 v{tmp}, v{r}")
        a(f"v_permlane{which}_swap_b32 v{r}, v{tmp}")
        a(f"{op} v{r}, v{r}, v{tmp}")

    def tr_addr(self, vd, rowshift, wide, t1, t2, t3):
        a = self.a
        a(f"v_bfe_u32 v{t1}, v0, 2, 2")
        a(f"v_lshrrev_b32 v{t2}, 4, v0")
        a(f"v_lshl_add_u32 v{t1}, v{t2}, 2, v{t1}")
        if wide:
            a(f"v_and_b32 v{t2}, 7, v{t1}")
        else:
            a(f"v_bfe_u32 v{t2}, v{t1}, 1, 2")
        a(f"v_lshlrev_b32 v{t2}, 5, v{t2}")
        a(f"v_lshl_add_u32 v{vd}, v{t1}, {rowshift}, v{t2}")
        a(f"v_and_b32 v{t3}, 3, v0")
        a(f"v_lshl_add_u32 v{vd}, v{t3}, 3, v{vd}")

    def half_fold(self, r, t):
        a = self.a
        a(f"v_permlane16_swap_b32 v{r}, v{r+1}")
        a(f"v_permlane16_swap_b32 v{r+2}, v{r+3}")
        a(f"v_add_f32 v{r}, v{r}, v{r+1}")
        a(f"v_add_f32 v{r+2}, v{r+2}, v{r+3}")
        a(f"v_add_f32_dpp v{t}, v{r}, v{r} row_ror:8 row_mask:0xf bank_mask:0x3")
        a(f"v_add_f32_dpp v{t}, v{r+2}, v{r+2} row_ror:8 row_mask:0xf bank_mask:0xc")
        a(f"v_add_f32_dpp v{t}, v{t}, v{t} row_half_mirror row_mask:0xf bank_mask:0xf")
        a(f"v_add_f32_dpp v{t}, v{t}, v{t} quad_perm:[1,0,3,2] row_mask:0xf bank_mask:0xf")
        a(f"v_add_f32_dpp v{t}, v{t}, v{t} quad_perm:[2,3,0,1] row_mask:0xf bank_mask:0xf")

    def glu_ids(self, sn, sc, si):
        a = self.a
        a(f"s_min_u32 s{sn}, s{sG}, 4")
        a(f"s_mul_i32 s{sc}, s{sG}, 3")
        a(f"s_add_u32 s{sc}, s{sc}, s{sn}")
        a(f"s_lshr_b32 s{sn}, s{sJ}, 3")
        a(f"s_add_u32 s{sc}, s{sc}, s{sn}")
        a(f"s_and_b32 s{si}, s{sJ}, 7")
        a(f"s_cmp_lt_u32 s{sG}, 4")
        a(f"s_cselect_b32 s{sn}, 32, 24")
        a(f"s_cmp_lt_u32 s{sJ}, s{sn}")

    def prologue(self):
        a = self.a
        a("s_load_dwordx16 s[4:19], s[0:1], 0")
        a("s_load_dwordx8 s[20:27], s[0:1], 64")
        a("s_cmp_ge_u32 s2, 256")
        a(f"s_cbranch_scc1 {self.lab('end')}")
        if self.stamps or self.o.get("amp"):
            a("s_memrealtime s[98:99]")
        if self.o.get("scramble"):
            k = self.o["scramble"]
            a("s_and_b32 s33, s2, 63")
            a(f"s_lshl_b32 s34, s33, {k}")
            a(f"s_lshr_b32 s33, s33, {6-k}")
            a("s_or_b32 s33, s33, s34")
            a("s_and_b32 s33, s33, 63")
            a("s_andn2_b32 s2, s2, 63")
            a("s_or_b32 s2, s2, s33")
        a("v_lshrrev_b32 v1, 6, v0")
        a("v_and_b32 v0, 63, v0")
        a(f"s_and_b32 s{sG}, s2, 7")
        a(f"v_readfirstlane_b32 s{sW}, v1")
        a(f"s_lshr_b32 s{sJ}, s2, 3")
        a(f"s_and_b32 s{sB}, s{sJ}, 1")
        a(f"s_lshr_b32 s{sS}, s{sJ}, 1")
        a(f"s_mov_b32 s{sCAP}, {self.o.get('cap', 0x80000):#x}")
        a(f"s_cmp_lg_u32 s{sW}, 0")
        a(f"s_cbranch_scc1 {self.lab('notloader')}")

    def loader(self):
        a = self.a
        N = self.N
        rot, ilv = self.o.get("rot"), self.o.get("ilv")
        a.c("================= loader wave: streams this CU's share of the weights and of K / V into LDS =================")
        self.init_stamps([0, 1, 2])
        a("s_setprio 3")
        vWQ, vGU, vK, vV, vW1, vSM, vP = 2, 3, 4, 8, 10, 16, 17
        sOff, sProg = 68, 69
        npf = 0
        if self.o.get("lpf"):
            a("s_getpc_b64 s[34:35]")
            a.label(self.lab("pcref0"))
            a("v_lshlrev_b32 v22, 7, v0")
            a(f"v_min_u32 v23, {self.lab('codeend')}-{self.lab('pcref0')}-4, v22")
            a("global_load_dword v26, v23, s[34:35]")
            a("v_add_u32 v22, 0x2000, v22")
            a(f"v_min_u32 v22, {self.lab('codeend')}-{self.lab('pcref0')}-4, v22")
            a("global_load_dword v27, v22, s[34:35]")
        a("v_lshrrev_b32 v18, 4, v0")
        a("v_lshlrev_b32 v19, 1, v18")
        a("v_and_b32 v20, 7, v0")
        a("v_xor_b32 v20, v19, v20")
        a("v_lshlrev_b32 v20, 4, v20")
        a("v_lshrrev_b32 v21, 3, v0")
        a(f"v_lshl_add_u32 v{vWQ}, v21, 13, v20")
        a(f"s_lshr_b32 s33, s{sJ}, 3")
        a("s_lshl_b32 s33, s33, 20")
        a(f"s_lshl_b32 s34, s{sG}, 10")
        a("s_add_u32 s33, s33, s34")
        a(f"s_and_b32 s34, s{sJ}, 7")
        a("s_lshl_b32 s71, s34, 7")
        a("s_add_u32 s33, s33, s71")
        a(f"s_mov_b32 s{sOff}, 0")
        a(f"s_mov_b32 m0, {W0}")
        a(f"s_mov_b32 s{sProg}, {-N}")
        a(f"v_mov_b32 v{vSM}, {SM:#x}")
        a("s_waitcnt lgkmcnt(0)")
        self.srd(36, 10, "s33", 127 * 8192 + 128)
        if self.stamps:
            a("s_mov_b64 s[80:81], s[98:99]")

        def loop(name, vo, srd, step, end, N, quiet=False):
            top = self.uniq("ld" + name)
            kv = name in "kjvwt"
            itstep, wrap = 4096, 0xffff
            if ilv and kv:
                assert ilv == 4096
                itstep, wrap, end = 65536, 0xfffff, end * 16
            rr = rot and kv
            if rr:
                endm = dict(k=KB + self.CNT["k"] * 1024, j=KB + 65536, v=VB + self.CNT["v"] * 1024, w=VB + 57344, t=W2 + 8192)[name]
            a.label(top)
            for k in range(4):
                a(f"buffer_load_dwordx4 v{vo[k % len(vo)]}, s[{srd}:{srd+3}], s{sOff} offen offset:{k*1024} nt lds")
                if step != 1024:
                    a(f"s_add_u32 s{sOff}, s{sOff}, {step-1024}")
                a(f"s_waitcnt vmcnt({N})")
            a(f"s_add_u32 s{sProg}, s{sProg}, 4")
            if not quiet:
                a("s_mov_b64 exec, 1")
                a(f"v_mov_b32 v{vP}, s{sProg}")
                a(f"ds_write_b32 v{vSM}, v{vP} offset:{F_PROG}")
                a("s_mov_b64 exec, -1")
            a(f"s_add_u32 s{sOff}, s{sOff}, {itstep}")
            if rr:
                a(f"s_and_b32 s{sOff}, s{sOff}, {wrap:#x}")
            a("s_add_u32 m0, m0, 4096")
            a(f"s_cmp_lg_u32 m0, {endm}" if rr else f"s_cmp_lg_u32 s{sOff}, {end}")
            a(f"s_cbranch_scc1 {top}")

        assert self.o["order"][0] == "q"
        loop("q", [vWQ], 36, 65536, 16 * 65536, N)
        early = self.o.get("early", 0)
        a("s_movk_i32 s33, 3584")
        a(f"v_mad_u32_u24 v{vGU}, v21, s33, v20")
        self.glu_ids(33, 34, 35)
        a("s_cselect_b32 s72, -1, 0")
        a(f"s_mul_i32 s33, s35, {64*3584}")
        a("s_lshl_b32 s70, s34, 7")
        a("s_add_u32 s33, s33, s70")
        a("s_and_b32 s33, s33, s72")
        for d, p in ((40, 16), (44, 18)):
            self.srd(d, p, "s33", 63 * 3584 + 128)
            a(f"s_and_b32 s{d+2}, s{d+2}, s72")

        def rest():
            a(f"v_lshl_add_u32 v{vW1}, v21, 10, v20")
            a("s_lshl_b32 s33, s34, 16")
            if self.o.get("dsh"):
                a(f"s_add_u32 s35, s35, {self.o['dsh']}")
                a("s_and_b32 s35, s35, 7")
            a("s_lshl_b32 s35, s35, 7")
            a("s_add_u32 s33, s33, s35")
            a("s_and_b32 s33, s33, s72")
            self.srd(60, 20, "s33", 63 * 1024 + 128)
            a("s_and_b32 s62, s62, s72")
            a(f"s_lshl_b32 s33, s{sB}, 3")
            a(f"s_add_u32 s33, s33, s{sG}")
            a("s_lshl_b32 s33, s33, 23")
            a(f"s_lshl_b32 s34, s{sS}, {12 if ilv else 16}")
            a("s_add_u32 s33, s33, s34")
            a(f"s_add_u32 s33, s33, {28672*256}")
            kvsize = 65536 if not ilv else (1048576 - 15 * ilv)
            self.srd(48, 6, "s33", kvsize)
            self.srd(52, 8, "s33", kvsize)
            a("v_and_b32 v19, 15, v0")
            a("v_xor_b32 v20, v18, v19")
            a("v_lshlrev_b32 v20, 4, v20")
            a(f"v_lshl_add_u32 v{vK}, v18, 8, v20")
            for k in range(1, 4):
                a(f"v_xor_b32 v{vK+k}, {k << 6:#x}, v{vK}")
            a("v_lshlrev_b32 v20, 1, v18")
            a("v_xor_b32 v20, v20, v19")
            a("v_lshlrev_b32 v20, 4, v20")
            a(f"v_lshl_add_u32 v{vV}, v18, 8, v20")
            a(f"v_xor_b32 v{vV+1}, 0x80, v{vV}")
            a(f"s_lshl_b32 s33, s{sG}, 2")
            a(f"s_lshr_b32 s34, s{sJ}, 3")
            a("s_add_u32 s33, s33, s34")
            a("s_lshl_b32 s33, s33, 17")
            if self.o.get("wsh"):
                a(f"s_add_u32 s71, s{sJ}, {self.o['wsh']}")
                a("s_and_b32 s71, s71, 7")
                a("s_lshl_b32 s71, s71, 7")
            a("s_add_u32 s33, s33, s71")
            self.srd(56, 12, "s33", 127 * 1024 + 128)
            if rot:
                r3 = rot if len(rot) == 3 else (2 * rot[0], rot[0], rot[1])
                a(f"s_mul_i32 s73, s{sS}, {r3[0]}")
                a(f"s_mul_i32 s33, s{sB}, {r3[1]}")
                a("s_add_u32 s73, s73, s33")
                a(f"s_mul_i32 s33, s{sG}, {r3[2]}")
                a("s_add_u32 s73, s73, s33")
                a(f"s_lshl_b32 s73, s73, {16 if ilv else 12}")
                a(f"s_and_b32 s73, s73, {0xfffff if ilv else 0xffff:#x}")
            a("s_barrier")

        if not early:
            rest()
        spec = dict(g=([vGU], 40, 28672, 0, 8 * 28672, W1), u=([vGU], 44, 28672, 0, 8 * 28672, W2),
                    k=([vK, vK + 1, vK + 2, vK + 3], 48, 1024, 0, self.CNT["k"] * 1024, KB), v=([vV, vV + 1], 52, 1024, 0, self.CNT["v"] * 1024, VB),
                    j=([vK, vK + 1, vK + 2, vK + 3], 48, 1024, 0, 65536, KB + self.CNT["k"] * 1024),
                    w=([vV, vV + 1], 52, 1024, 0, 57344, VB + self.CNT["v"] * 1024),
                    t=([vV, vV + 1], 52, 1024, 57344, 65536, W2), o=([vW1], 56, 8192, 0, 8 * 8192, W0),
                    p=([vW1], 56, 8192, 8 * 8192, 16 * 8192, W0 + 8192),
                    d=([vW1], 60, 8192, 0, 8 * 8192, W1))
        early_ph = self.o["order"][1:1 + early]
        nwin0 = self.o.get("win", {})
        state = dict(m0=W0 + 16384, prev="q", N=N)

        def phases(lst, nwin, st):
            waited = set()
            for p in lst:
                vo, srd, step, start, end, lds = spec[p]
                if not self.o.get("bare"):
                    if p in "op" and "q" not in waited:
                        self.wait_flag(vSM, F_CQ, 4, 22)
                        waited.add("q")
                    if p in "td" and "g" not in waited:
                        self.wait_flag(vSM, F_CG, 1, 22)
                        waited.add("g")
                if self.o.get("hold") and p == self.o["hold"][0] and not self.o.get("bare"):
                    issued = self.BASE[p]
                    a("s_mov_b64 exec, 1")
                    for n in range((st["N"] - 1) // 4 * 4, issued - self.TH["t"] - 1, -4):
                        a(f"v_mov_b32 v{vP}, {issued - n}")
                        a(f"s_waitcnt vmcnt({n})")
                        a(f"ds_write_b32 v{vSM}, v{vP} offset:{F_PROG}")
                    a("s_mov_b64 exec, -1")
                    self.wait_flag(vSM, F_OS, self.o["hold"][1], 22)
                    a(f"s_mov_b32 s{sProg}, {issued - st['N']}")
                    st["held"] = True
                if p in nwin and nwin[p] != st["N"]:
                    a(f"s_add_u32 s{sProg}, s{sProg}, {st['N'] - nwin[p]}")
                    st["N"] = nwin[p]
                if (p, st["prev"]) in (("t", "v"), ("t", "w"), ("w", "v"), ("j", "k"), ("p", "o")):
                    pass
                elif rot and p in "kv":
                    a(f"s_mov_b32 s{sOff}, s73")
                elif rot and p == "t":
                    a(f"s_add_u32 s{sOff}, s73, {57344 * (16 if ilv else 1)}")
                    a(f"s_and_b32 s{sOff}, s{sOff}, {0xfffff if ilv else 0xffff:#x}")
                else:
                    a(f"s_mov_b32 s{sOff}, {start * (16 if ilv and p == 't' else 1)}")
                if st["m0"] != lds:
                    a(f"s_mov_b32 m0, {lds}")
                loop(p, vo, srd, step, end, st["N"], st.get("held", False))
                st["m0"], st["prev"] = lds + self.CNT[p] * 1024, p

        assert all(p in "gu" for p in early_ph)
        phases(early_ph, nwin0, state)
        if early:
            rest()
        classes = list(self.o.get("classes", [])) + [(None, nwin0)]
        for cls, win in classes:
            nxt = self.uniq("cls")
            if cls is not None:
                a(f"s_and_b32 s33, s{sJ}, 7")
                a(f"s_cmp_eq_u32 s33, {cls}")
                a(f"s_cbranch_scc0 {nxt}")
            st = dict(state)
            phases(self.o["order"][1 + early:], win, st)
            self.stamp(1)
            a("s_mov_b64 exec, 1")
            nmax = (st["N"] - 1) // 4 * 4
            if st.get("held"):
                nmax = min(nmax, 184 - self.TH["t"] - 4)
            for n in range(nmax, -1, -4):
                a(f"v_mov_b32 v{vP}, {184 - n}")
                a(f"s_waitcnt vmcnt({n})")
                a(f"ds_write_b32 v{vSM}, v{vP} offset:{F_PROG}")
            self.stamp(2)
            self.amp("stream")
            self.flush_stamps()
            a("s_endpgm")
            a.label(nxt)

    def gwave(self):
        a = self.a
        TH = self.TH
        a.c("================= G wave: layernorm, GLU branch, final reduction =================")
        self.init_stamps(self.o.get("gslots", [3, 15, 11, 12, 13, 14]))
        vSM, vT, vOne, vXF, vOO, vHI, vF = 2, 3, 60, 61, 62, 56, 57
        a("s_getreg_b32 s70, hwreg(HW_REG_XCC_ID, 0, 4)")
        a(f"v_mov_b32 v{vSM}, {SM:#x}")
        a(f"v_lshl_add_u32 v1, v0, 2, v{vSM}")
        a("v_mov_b32 v4, 0")
        a(f"ds_write_b32 v1, v4 offset:{FL}")
        a("s_add_u32 s70, s70, 1")
        a(f"v_mov_b32 v{vHI}, s70")
        a("v_lshlrev_b32 v12, 5, v0")
        a("v_bfe_u32 v13, v0, 3, 1")
        a("v_bfe_u32 v14, v0, 4, 1")
        a("v_lshl_add_u32 v13, v13, 1, v14")
        a(f"s_lshl_b32 s33, s{sG}, 7")
        a(f"s_lshr_b32 s34, s{sJ}, 3")
        a("s_lshl_b32 s34, s34, 5")
        a("s_add_u32 s33, s33, s34")
        a(f"s_and_b32 s34, s{sJ}, 3")
        a("s_lshl_b32 s34, s34, 3")
        a("s_add_u32 s33, s33, s34")
        a(f"s_bfe_u32 s34, s{sJ}, 0x10002")
        a("s_lshl_b32 s34, s34, 10")
        a("s_add_u32 s33, s33, s34")
        a(f"v_lshl_add_u32 v{vOO}, v13, 1, s33")
        a(f"v_mov_b32 v{vOne}, 1")
        a(f"s_movk_i32 s{sM10}, 0x3ff")
        a(f"s_mov_b32 s{sHI}, 0xffff0000")
        a(f"s_lshl_b32 s71, s{sG}, 5")
        a(f"s_add_u32 s72, s71, s{sJ}")
        a("v_and_b32 v57, 31, v0")
        a("s_waitcnt lgkmcnt(0)")
        self.srd(48, 24, None, 256)
        self.srd(36, 4, None, 2048)
        a("s_mov_b64 exec, 1")
        a(f"buffer_store_byte v{vHI}, off, s[48:51], s72")
        a("s_mov_b64 exec, -1")
        self.srd(40, 26, None, WS_USE)
        a("buffer_load_dwordx4 v[4:7], v12, s[36:39], 0 offen")
        a("buffer_load_dwordx4 v[8:11], v12, s[36:39], 0 offen offset:16")
        a(f"buffer_load_dword v{vT}, off, s[40:43], 0 sc1")
        a(f"buffer_load_ushort v{vXF}, v{vOO}, s[36:39], 0 offen")
        if self.o.get("ampskew") is not None:
            a("s_lshl_b32 s33, s2, 2")
            a("s_add_u32 s33, s33, 256")
            a("v_mov_b32 v13, s98")
            a("s_mov_b64 exec, 1")
            a("buffer_store_dword v13, off, s[40:43], s33 sc1")
            a("s_mov_b64 exec, -1")
        self.srd(44, 22, None, 2048)
        a("s_barrier")
        if self.o.get("bare"):
            a("s_endpgm")
        a("v_lshrrev_b32 v13, 5, v0")
        a(f"v_mul_u32_u24 v13, {XNS}, v13")
        a("v_bfe_u32 v14, v0, 1, 4")
        a("v_lshl_add_u32 v13, v14, 6, v13")
        a("v_and_b32 v14, 1, v0")
        a("v_lshl_add_u32 v13, v14, 3, v13")
        a(f"v_add_u32 v13, v{vSM}, v13")
        a("s_waitcnt vmcnt(0)")
        a("buffer_load_ubyte v58, v57, s[48:51], s71 offen sc1")
        X = 16
        for i in range(8):
            a(f"v_lshlrev_b32 v{X+2*i}, 16, v{4+i}")
            a(f"v_and_b32 v{X+2*i+1}, s{sHI}, v{4+i}")
        a(f"v_add_u32 v{vT}, 1, v{vT}")
        for i in range(4):
            a(f"v_add_f32 v{4+i}, v{X+i}, v{X+4+i}")
        for i in range(4):
            a(f"v_add_f32 v{4+i}, v{4+i}, v{X+8+i}")
        for i in range(4):
            a(f"v_add_f32 v{4+i}, v{4+i}, v{X+12+i}")
        a("v_add_f32 v4, v4, v5")
        a("v_add_f32 v6, v6, v7")
        a("v_add_f32 v4, v4, v6")
        self.row_reduce("v_add_f32", [4])
        self.swap_reduce("v_add_f32", 4, 5, 16)
        a("v_mul_f32 v4, 0x3b000000, v4")
        for i in range(16):
            a(f"v_sub_f32 v{32+i}, v{X+i}, v4")
        a("v_mul_f32 v5, v32, v32")
        a("v_mul_f32 v6, v33, v33")
        for i in range(2, 16, 2):
            a(f"v_fmac_f32 v5, v{32+i}, v{32+i}")
            a(f"v_fmac_f32 v6, v{33+i}, v{33+i}")
        a("v_add_f32 v5, v5, v6")
        self.row_reduce("v_add_f32", [5])
        self.swap_reduce("v_add_f32", 5, 6, 16)
        a("v_mul_f32 v5, 0x3b000000, v5")
        a("v_cvt_pk_bf16_f32 v4, v4, v5")
        a(f"v_and_b32 v5, s{sHI}, v4")
        a("v_lshlrev_b32 v4, 16, v4")
        a(f"v_add_f32 v5, {EPS:#x}, v5")
        a("v_cvt_pk_bf16_f32 v5, v5, v5")
        a(f"v_and_b32 v5, s{sHI}, v5")
        a("v_sqrt_f32 v5, v5")
        a("v_cvt_pk_bf16_f32 v5, v5, v5")
        a(f"v_and_b32 v5, s{sHI}, v5")
        a("v_rcp_f32 v5, v5")
        for i in range(16):
            a(f"v_sub_f32 v{X+i}, v{X+i}, v4")
        for i in range(8):
            a(f"v_cvt_pk_bf16_f32 v{32+i}, v{X+2*i}, v{X+2*i+1}")
        for i in range(8):
            a(f"v_lshlrev_b32 v{X+2*i}, 16, v{32+i}")
            a(f"v_and_b32 v{X+2*i+1}, s{sHI}, v{32+i}")
        for i in range(16):
            a(f"v_mul_f32 v{X+i}, v{X+i}, v5")
        for i in range(8):
            a(f"v_cvt_pk_bf16_f32 v{32+i}, v{X+2*i}, v{X+2*i+1}")
        for gq in range(4):
            a(f"ds_write_b64 v13, v[{32+2*gq}:{33+2*gq}] offset:{XN+16*gq}")
        a("s_mov_b64 exec, 1")
        a(f"ds_write_b32 v{vSM}, v{vT} offset:{F_TAG}")
        a(f"ds_write_b32 v{vSM}, v{vOne} offset:{F_XN}")
        a("s_mov_b64 exec, -1")
        self.stamp(3)
        a(f"v_mov_b32 v1, v{vT}")
        a(f"v_and_b32 v{vT}, s{sM10}, v{vT}")
        if self.o.get("nolocal"):
            a("s_waitcnt vmcnt(0)")
            a(f"s_mov_b32 s{sMODE}, 1")
        else:
            top, got = self.uniq("hello"), self.uniq("hellod")
            a("s_mov_b32 s73, 10")
            a.label(top)
            a("s_waitcnt vmcnt(0)")
            a("v_cmp_eq_u32 vcc, 0, v58")
            a(f"s_cbranch_vccz {got}")
            a(f"v_cmp_ne_u32 s[74:75], v58, v{vHI}")
            a("s_andn2_b64 s[74:75], s[74:75], vcc")
            a(f"s_cbranch_scc1 {got}")
            a("s_sub_u32 s73, s73, 1")
            a(f"s_cbranch_scc1 {got}")
            a("buffer_load_ubyte v58, v57, s[48:51], s71 offen sc1")
            a(f"s_branch {top}")
            a.label(got)
            a(f"v_cmp_ne_u32 vcc, v58, v{vHI}")
            a("s_nop 3")
            a("s_cmp_eq_u64 vcc, 0")
            a(f"s_cselect_b32 s{sMODE}, 2, 1")
        a("s_mov_b64 exec, 1")
        a(f"v_mov_b32 v4, s{sMODE}")
        a(f"ds_write_b32 v{vSM}, v4 offset:{F_MODE}")
        a("s_mov_b64 exec, -1")
        a(f"s_lshl_b32 s33, s{sG}, 2")
        a(f"s_lshr_b32 s34, s{sJ}, 3")
        a("s_add_u32 s33, s33, s34")
        a("s_lshl_b32 s33, s33, 13")
        a(f"s_and_b32 s34, s{sJ}, 7")
        a("s_lshl_b32 s34, s34, 4")
        a("s_add_u32 s33, s33, s34")
        a(f"s_add_u32 s76, s33, {FX}")
        a(f"v_lshlrev_b32 v{vF}, 7, v0")
        a(f"v_lshlrev_b32 v{vXF}, 16, v{vXF}")
        self.glu_ids(70, 71, 72)
        a(f"s_cbranch_scc1 {self.lab('hasglu')}")
        self.signal(vSM, F_CG, vOne)
        a(f"s_branch {self.lab('final')}")
        a.label(self.lab("hasglu"))
        a("v_lshrrev_b32 v4, 4, v0")
        a("v_and_b32 v5, 1, v0")
        a(f"v_mul_u32_u24 v6, {XNS}, v5")
        a("v_lshl_add_u32 v6, v4, 4, v6")
        a("s_lshl_b32 s33, s72, 7")
        a(f"s_add_u32 s33, s33, {SM+XN}")
        a("v_add_u32 v6, s33, v6")
        a("ds_read_b128 v[8:11], v6")
        a("ds_read_b128 v[12:15], v6 offset:64")
        a("v_lshlrev_b32 v63, 4, v4")
        a("v_lshl_add_u32 v63, v5, 9, v63")
        self.tr_addr(16, 7, False, 17, 18, 19)
        for ct in range(1, 4):
            a(f"v_xor_b32 v{16+ct}, {ct << 5:#x}, v16")
        a("s_lshl_b32 s33, s71, 13")
        a(f"s_add_u32 s74, s33, {GX}")
        a("s_lshl_b32 s34, s72, 10")
        a("s_add_u32 s73, s74, s34")
        a("s_add_u32 s75, s74, 4096")
        self.wait_flag(vSM, F_PROG, max(TH["g"], TH["u"]), 20)
        AB, ACC = 64, 24
        for mat in range(2):
            for ct in range(4):
                for ks in range(2):
                    for t in range(2):
                        r = AB + (ct * 2 + ks) * 4 + t * 2
                        a(f"ds_read_b64_tr_b16 v[{r}:{r+1}], v{16+ct} offset:{W1 + mat*8192 + ks*4096 + t*2048}")
            a("s_waitcnt lgkmcnt(0)")
            if mat == 1:
                self.signal(vSM, F_CG, vOne)
            for ks in range(2):
                for ct in range(4):
                    d = ACC + (mat * 4 + ct) * 4
                    r = AB + ct * 8 + 4 * ks
                    a(f"{MFMA} v[{d}:{d+3}], v[{r}:{r+3}], v[{8+4*ks}:{11+4*ks}], {'0' if ks == 0 else f'v[{d}:{d+3}]'}")
            if mat == 0:
                a("s_nop 3")
        for r in range(ACC, ACC + 32):
            self.tag(r, vT, sM10)
        self.publish("g", [f"buffer_store_dwordx4 v[{ACC+4*tile}:{ACC+4*tile+3}], v63, s[40:43], s73 offen offset:{(tile >> 2)*256 + (tile & 3)*64} sc1" for tile in range(8)], M_J01)
        a("v_lshlrev_b32 v6, 4, v0")
        gl = [f"buffer_load_dwordx4 v[{64+4*t}:{67+4*t}], v6, s[40:43], s{74 + (t >> 2)} offen offset:{1024*(t & 3)} sc1" for t in range(8)]
        if "g" in self.o["pref"]:
            for t in gl:
                a(t + self.o.get("gprefl", " nt"))
            if self.o.get("ping"):
                a("s_waitcnt vmcnt(0)")
                for t in gl:
                    a(t)
        a("v_lshrrev_b32 v7, 5, v0")
        a(f"v_mul_u32_u24 v7, {HLS}, v7")
        a("v_and_b32 v8, 3, v0")
        a("v_lshl_add_u32 v7, v8, 4, v7")
        a("v_bfe_u32 v8, v0, 2, 1")
        a("v_lshl_add_u32 v7, v8, 3, v7")
        a("v_bfe_u32 v8, v0, 3, 1")
        a("v_lshl_add_u32 v7, v8, 6, v7")
        a(f"v_add_u32 v7, v{vSM}, v7")
        a(f"v_mul_u32_u24 v59, {HLS}, v5")
        a("v_lshl_add_u32 v59, v4, 4, v59")
        a(f"v_add_u32 v59, v{vSM}, v59")
        if self.o.get("gdelay"):
            self.wait_flag(vSM, F_PROG, self.o["gdelay"], 10)
        self.poll(gl, list(range(64, 96)), vT, sM10, list(range(24, 40)), "g")
        for h in (16, 8, 4):
            for e in range(h):
                a(f"v_add_f32 v{64+e}, v{64+e}, v{64+h+e}")
        a("v_cvt_pk_bf16_f32 v64, v64, v65")
        a("v_cvt_pk_bf16_f32 v66, v66, v67")
        a("v_mov_b32 v68, v64")
        a("v_mov_b32 v70, v66")
        a("v_permlane16_swap_b32 v64, v68")
        a("v_permlane16_swap_b32 v66, v70")
        for base in (64, 68):
            a(f"v_and_b32 v{base+3}, s{sHI}, v{base+2}")
            a(f"v_lshlrev_b32 v{base+2}, 16, v{base+2}")
            a(f"v_and_b32 v{base+1}, s{sHI}, v{base}")
            a(f"v_lshlrev_b32 v{base}, 16, v{base}")
        for e in range(4):
            a(f"v_mul_f32 v{64+e}, {LOG2E ^ 0x80000000:#x}, v{64+e}")
        for e in range(4):
            a(f"v_exp_f32 v{64+e}, v{64+e}")
        for e in range(4):
            a(f"v_add_f32 v{64+e}, 1.0, v{64+e}")
        for e in range(4):
            a(f"v_rcp_f32 v{64+e}, v{64+e}")
        a("v_cvt_pk_bf16_f32 v64, v64, v65")
        a("v_cvt_pk_bf16_f32 v66, v66, v67")
        a(f"v_and_b32 v67, s{sHI}, v66")
        a("v_lshlrev_b32 v66, 16, v66")
        a(f"v_and_b32 v65, s{sHI}, v64")
        a("v_lshlrev_b32 v64, 16, v64")
        for e in range(4):
            a(f"v_mul_f32 v{64+e}, v{64+e}, v{68+e}")
        a("v_cvt_pk_bf16_f32 v64, v64, v65")
        a("v_cvt_pk_bf16_f32 v65, v66, v67")
        self.exec_((0x0000FFFF, 0x0000FFFF))
        a(f"ds_write_b64 v7, v[64:65] offset:{HL}")
        self.exec_(-1)
        a(f"ds_read_b128 v[8:11], v59 offset:{HL}")
        a(f"ds_read_b128 v[12:15], v59 offset:{HL+64}")
        a("v_lshlrev_b32 v63, 4, v4")
        a("v_lshl_add_u32 v63, v5, 6, v63")
        a("s_lshl_b32 s33, s71, 7")
        if self.o.get("dsh"):
            a(f"s_add_u32 s72, s72, {self.o['dsh']}")
            a("s_and_b32 s72, s72, 7")
        a("s_lshl_b32 s34, s72, 15")
        a("s_add_u32 s73, s33, s34")
        a(f"s_add_u32 s72, s73, {FX + 32*128}")
        for ct in range(1, 4):
            a(f"s_add_u32 s{72+ct}, s{71+ct}, {FXS}")
        self.stamp(15)
        self.wait_flag(vSM, F_PROG, TH["d"], 20)
        for ct in range(4):
            for ks in range(2):
                for t in range(2):
                    r = AB + (ct * 2 + ks) * 4 + t * 2
                    a(f"ds_read_b64_tr_b16 v[{r}:{r+1}], v{16+ct} offset:{W1 + ks*4096 + t*2048}")
        for ks in range(2):
            for ct in range(4):
                if ks == 0:
                    a(f"s_waitcnt lgkmcnt({12-4*ct})")
                d = ACC + ct * 4
                r = AB + (ct * 2 + ks) * 4
                a(f"{MFMA} v[{d}:{d+3}], v[{r}:{r+3}], v[{8+4*ks}:{11+4*ks}], {'0' if ks == 0 else f'v[{d}:{d+3}]'}")
        for r in range(ACC, ACC + 16):
            self.tag(r, vT, sM10)
        self.publish("y", [f"buffer_store_dwordx4 v[{ACC+4*ct}:{ACC+4*ct+3}], v63, s[40:43], s{72 + ct} offen sc1" for ct in range(4)], M_J01, local=False)
        self.stamp(11)
        a.label(self.lab("final"))
        for e in range(4):
            a(f"v_mov_b32 v{8+e}, 0")
        a("s_barrier")
        a("s_setprio 2")
        ld = f"buffer_load_dwordx4 v[8:11], v{vF}, s[40:43], s76 offen sc1"
        if self.o.get("ysplit", 1):
            a("s_waitcnt vmcnt(0)")
            self.exec_((0, 0x0FFFFFFF))
            self.poll([ld], [8, 9, 10, 11], vT, sM10, [12, 13, 16], "y", (0, 0x0FFFFFFF))
            self.exec_(-1)
            self.half_fold(8, 14)
            a("v_cvt_pk_bf16_f32 v14, v14, v14")
            a(f"v_and_b32 v14, s{sHI}, v14")
            a("v_mov_b32 v15, v14")
            a("v_permlane32_swap_b32 v15, v14")
            a(f"v_mul_f32 v9, {LOG2E ^ 0x80000000:#x}, v14")
            a("v_exp_f32 v9, v9")
            a("v_add_f32 v9, 1.0, v9")
            a("v_rcp_f32 v9, v9")
            a("v_mul_f32 v14, v14, v9")
            a("v_cvt_pk_bf16_f32 v14, v14, v14")
            a(f"v_and_b32 v14, s{sHI}, v14")
            self.exec_((0xFFFFFFFF, 0))
            self.stamp(12)
            a("s_barrier")
            self.poll([ld], [8, 9, 10, 11], vT, sM10, [12, 13, 16], "s", (0xFFFFFFFF, 0))
            self.stamp(13)
            self.half_fold(8, 12)
            a("v_cvt_pk_bf16_f32 v12, v12, v12")
            a(f"v_and_b32 v12, s{sHI}, v12")
        else:
            self.exec_((0xFFFFFFFF, 0x0FFFFFFF))
            self.stamp(12)
            a("s_barrier")
            if self.o.get("fsleep"):
                a(f"s_sleep {self.o['fsleep']}")
            if self.o.get("sfl"):
                ld = ld.replace(" sc1", " " + self.o["sfl"])
            self.poll([ld], [8, 9, 10, 11], vT, sM10, [12, 13], "s")
            self.stamp(13)
            self.exec_(-1)
            self.half_fold(8, 12)
            self.rnd(14, 12)
            self.rnd(12)
            a("s_mov_b32 s34, 0x01010101")
            a("v_permlane32_swap_b32 v12, v14")
            a(f"v_mul_f32 v9, {LOG2E ^ 0x80000000:#x}, v14")
            a("v_exp_f32 v9, v9")
            a("s_mov_b32 exec_lo, s34")
            a("v_add_f32 v9, 1.0, v9")
            a("v_rcp_f32 v9, v9")
            a("s_mov_b32 exec_hi, 0")
            a("v_mul_f32 v14, v14, v9")
            self.rnd(14)
        a("v_mul_f32 v12, v12, v14")
        self.rnd(12)
        a(f"v_add_f32 v12, v12, v{vXF}")
        a("v_cvt_pk_bf16_f32 v12, v12, v12")
        if self.o.get("ysplit", 1):
            self.exec_((0x01010101, 0))
        a(f"buffer_store_short v12, v{vOO}, s[44:47], 0 offen{self.o.get('outfl', '')}")
        a("s_cmp_lg_u32 s2, 0")
        a(f"s_cbranch_scc1 {self.lab('noepoch')}")
        a("s_mov_b64 exec, 1")
        a(f"buffer_store_dword v1, off, s[40:43], 0{self.o.get('epfl', ' sc1')}")
        a.label(self.lab("noepoch"))
        self.stamp(14)
        self.amp("end")
        self.flush_stamps()
        a("s_endpgm")
        self.emit_far()

    def cwave(self):
        a = self.a
        TH, BASE = self.TH, self.BASE
        a.c("================= compute waves =================")
        cs = self.o.get("cslots")
        self.init_stamps(cs[0] if cs else [4, 5, 6, 7, 8, 9, 10])
        who = lambda slot: (6 if slot in cs[1] else 0) if cs else (6 if slot in (8, 9) else 0)
        sC = 70
        vSM, vT, vT8, vOne, vQ, vH = 2, 3, 4, 5, 6, 7
        a(f"s_sub_u32 s{sC}, s{sW}, 2")
        a(f"v_mov_b32 v{vSM}, {SM:#x}")
        a(f"v_mov_b32 v{vOne}, 1")
        a(f"s_movk_i32 s{sM10}, 0x3ff")
        a(f"s_movk_i32 s{sM8}, 0xff")
        a(f"s_mov_b32 s{sHI}, 0xffff0000")
        if not self.o.get("noprefetch") and not self.o.get("lpf"):
            a(f"s_cmp_lg_u32 s{sC}, 7")
            a(f"s_cbranch_scc1 {self.lab('nopf')}")
            a("s_getpc_b64 s[34:35]")
            a.label(self.lab("pcref"))
            a(f"s_sub_u32 s34, s34, {self.lab('pcref')}-{self.name}")
            a("s_subb_u32 s35, s35, 0")
            a("v_lshlrev_b32 v8, 7, v0")
            a(f"v_min_u32 v9, {self.lab('codeend')}-{self.name}-4, v8")
            a("global_load_dword v9, v9, s[34:35]")
            a("v_add_u32 v8, 0x2000, v8")
            a(f"v_min_u32 v8, {self.lab('codeend')}-{self.name}-4, v8")
            a("global_load_dword v10, v8, s[34:35]")
            a.label(self.lab("nopf"))
        a(f"v_lshrrev_b32 v{vQ}, 4, v0")
        a(f"v_lshlrev_b32 v{vQ}, 4, v{vQ}")
        a(f"v_bfe_u32 v{vH}, v0, 2, 2")
        vKA, vQB, vMW, vMR, vPW, vPR, vVA, vVT, vPub = 12, 16, 17, 18, 19, 20, 21, 22, 23
        a("v_and_b32 v8, 15, v0")
        a("v_lshrrev_b32 v11, 4, v0")
        a("v_xor_b32 v11, v8, v11")
        a("v_lshlrev_b32 v11, 4, v11")
        a("v_lshl_add_u32 v11, v8, 8, v11")
        a(f"s_lshl_b32 s33, s{sC}, 13")
        a(f"s_add_u32 s33, s33, {KB}")
        a(f"v_add_u32 v{vKA}, s33, v11")
        for ks in range(1, 4):
            a(f"v_xor_b32 v{vKA+ks}, {ks << 6:#x}, v{vKA}")
        a(f"v_mul_u32_u24 v{vQB}, {QLS}, v{vH}")
        a(f"v_add3_u32 v{vQB}, v{vQB}, v{vQ}, v{vSM}")
        a(f"v_lshl_add_u32 v{vMR}, v{vH}, 5, v{vSM}")
        a(f"s_lshl_b32 s33, s{sC}, 2")
        a(f"v_add_u32 v{vMW}, s33, v{vMR}")
        a(f"v_mul_u32_u24 v{vPR}, {PLS}, v{vH}")
        a(f"v_add3_u32 v{vPR}, v{vPR}, v{vQ}, v{vSM}")
        a(f"s_lshl_b32 s33, s{sC}, 6")
        a(f"v_add_u32 v{vPW}, s33, v{vPR}")
        self.tr_addr(24, 8, True, 25, 26, 27)
        a(f"s_lshl_b32 s33, s{sC}, 6")
        a("s_and_b32 s33, s33, 0xc0")
        a("v_xor_b32 v24, s33, v24")
        a(f"v_add_u32 v{vVA}, {VB:#x}, v24")
        a(f"v_add_u32 v{vVT}, {W2:#x}, v24")
        a(f"v_lshl_add_u32 v{vPub}, v{vH}, 14, v{vQ}")
        a("v_and_b32 v25, 1, v0")
        a(f"v_lshl_add_u32 v{vPub}, v25, 6, v{vPub}")
        a(f"s_lshl_b32 s33, s{sG}, 16")
        a(f"s_lshl_b32 s34, s{sB}, 13")
        a("s_add_u32 s33, s33, s34")
        a(f"s_lshl_b32 s34, s{sS}, 9")
        a("s_add_u32 s33, s33, s34")
        a(f"s_add_u32 s76, s33, {OX}")
        a(f"s_lshl_b32 s34, s{sC}, 7")
        a("s_add_u32 s71, s76, s34")
        a(f"s_lshl_b32 s33, s{sG}, 11")
        a(f"s_lshl_b32 s34, s{sB}, 8")
        a("s_add_u32 s33, s33, s34")
        a(f"s_lshl_b32 s34, s{sS}, 4")
        a("s_add_u32 s33, s33, s34")
        a(f"s_add_u32 s77, s33, {MLX}")
        if self.o.get("touch"):
            a(f"s_cmp_lg_u32 s{sC}, 6")
            a(f"s_cbranch_scc1 {self.lab('notouch')}")
            a("s_waitcnt lgkmcnt(0)")
            a(f"s_lshl_b32 s33, s{sB}, 3")
            a(f"s_add_u32 s33, s33, s{sG}")
            a("s_lshl_b32 s33, s33, 23")
            a(f"s_add_u32 s33, s33, {28672*256}")
            a(f"s_lshl_b32 s34, s{sG}, 19")
            a("v_mov_b32 v30, 0")
            for p_, o_ in ((16, None), (18, None), (6, "s33"), (8, "s33"), (20, None), (12, "s34")):
                if o_:
                    a(f"s_add_u32 s44, s{p_}, {o_}")
                    a(f"s_addc_u32 s45, s{p_+1}, 0")
                    a("s_mov_b64 exec, 1")
                    a(f"global_load_dword v31, v30, s[44:45]{self.o['touch']}")
                else:
                    a("s_mov_b64 exec, 1")
                    a(f"global_load_dword v31, v30, s[{p_}:{p_+1}]{self.o['touch']}")
            a("s_mov_b64 exec, -1")
            a.label(self.lab("notouch"))
        self.tr_addr(11, 7, False, 25, 26, 27)
        a(f"s_lshl_b32 s33, s{sC}, 5")
        a("v_xor_b32 v11, s33, v11")
        a("s_waitcnt lgkmcnt(0)")
        self.srd(40, 26, None, WS_USE)
        a("s_barrier")
        if self.o.get("bare"):
            if self.o.get("spin"):
                a(f"s_cmp_ge_u32 s{sC}, {self.o['spin']}")
                a(f"s_cbranch_scc1 {self.lab('end')}")
                self.wait_flag(vSM, F_PROG, 184, 8)
            if self.o.get("mon"):
                a(f"s_cmp_lg_u32 s{sC}, 0")
                a(f"s_cbranch_scc1 {self.lab('end')}")
                self.init_stamps([3, 4, 5, 6, 7, 8, 9, 10][:len(self.o["mon"])])
                for i, th in enumerate(self.o["mon"]):
                    self.wait_flag(vSM, F_PROG, th, 8)
                    self.stamp(3 + i)
                self.flush_stamps()
            a("s_endpgm")
        self.wait_flag(vSM, F_XN, 1, 8)
        a(f"ds_read_b32 v{vT}, v{vSM} offset:{F_TAG}")
        a(f"s_cmp_ge_u32 s{sC}, 4")
        a(f"s_cbranch_scc1 {self.lab('noq')}")
        a("v_and_b32 v26, 1, v0")
        a(f"v_mul_u32_u24 v25, {XNS}, v26")
        a(f"v_add_u32 v25, v25, v{vQ}")
        a(f"s_lshr_b32 s34, s{sJ}, 3")
        a("s_lshl_b32 s33, s34, 8")
        a(f"s_add_u32 s33, s33, {SM+XN}")
        a("v_add_u32 v25, s33, v25")
        for ks in range(4):
            a(f"ds_read_b128 v[{32+4*ks}:{35+4*ks}], v25 offset:{64*ks}")
        a(f"v_lshl_add_u32 v26, v26, 13, v{vQ}")
        a(f"s_lshl_b32 s33, s{sG}, 14")
        a("s_lshl_b32 s34, s34, 11")
        a("s_add_u32 s72, s33, s34")
        a(f"s_and_b32 s34, s{sJ}, 7")
        a("s_lshl_b32 s34, s34, 8")
        a("s_add_u32 s72, s72, s34")
        a(f"s_lshl_b32 s34, s{sC}, 6")
        a("s_add_u32 s72, s72, s34")
        a(f"s_add_u32 s72, s72, {QX}")
        a(f"s_lshl_b32 s34, s{sB}, 13")
        a("s_add_u32 s33, s33, s34")
        a(f"s_lshl_b32 s34, s{sC}, 9")
        a("s_add_u32 s33, s33, s34")
        a(f"s_add_u32 s73, s33, {QX}")
        a("s_add_u32 s74, s73, 4096")
        a("v_lshrrev_b32 v27, 5, v0")
        a("v_and_b32 v28, 31, v0")
        a("v_lshlrev_b32 v27, 11, v27")
        a("v_lshl_add_u32 v27, v28, 4, v27")
        a(f"s_mul_i32 s33, s{sC}, {QLS}")
        a(f"s_add_u32 s33, s33, {SM+QL}")
        a("v_lshl_add_u32 v28, v28, 3, s33")
        self.wait_flag(vSM, F_PROG, TH["q"], 8)
        for ks in range(4):
            for t in range(2):
                r = 48 + ks * 4 + t * 2
                a(f"ds_read_b64_tr_b16 v[{r}:{r+1}], v11 offset:{W0 + ks*4096 + t*2048}")
        a(f"v_and_b32 v{vT8}, s{sM8}, v{vT}")
        for ks in range(4):
            a(f"s_waitcnt lgkmcnt({6-2*ks})")
            r = 48 + ks * 4
            a(f"{MFMA} v[64:67], v[{r}:{r+3}], v[{32+4*ks}:{35+4*ks}], {'0' if ks == 0 else 'v[64:67]'}")
        self.signal(vSM, F_CQ, vOne)
        for e in range(4):
            a(f"v_add_u32 v{64+e}, 0x80, v{64+e}")
        for e in range(4):
            self.tag(64 + e, vT8, sM8)
        self.wait_flag(vSM, F_MODE, 1, 8)
        a(f"v_readfirstlane_b32 s{sMODE}, v8")
        self.publish("q", ["buffer_store_dwordx4 v[64:67], v26, s[40:43], s72 offen sc1"], M_J01)
        self.stamp(4)
        ql = ["buffer_load_dwordx4 v[32:35], v27, s[40:43], s73 offen sc1", "buffer_load_dwordx4 v[36:39], v27, s[40:43], s74 offen sc1"]
        if "q" in self.o["pref"]:
            for t in ql:
                a(t + self.o.get("qprefl", " nt"))
            if self.o.get("pinq"):
                a("s_waitcnt vmcnt(0)")
                for t in ql:
                    a(t)
        if self.o.get("qdelay"):
            self.wait_flag(vSM, F_PROG, self.o["qdelay"], 8)
        self.poll(ql, list(range(32, 40)), vT8, sM8, [40, 41, 42, 43, 44], "q")
        for e in range(8):
            a(f"v_xor_b32 v{32+e}, v{vT8}, v{32+e}")
        for e in range(4):
            a(f"v_add_f32 v{32+e}, v{32+e}, v{36+e}")
        a("v_permlane32_swap_b32 v32, v33")
        a("v_permlane32_swap_b32 v34, v35")
        a("v_add_f32 v32, v32, v33")
        a("v_add_f32 v34, v34, v35")
        a("v_mov_b32 v33, v32")
        a("v_mov_b32 v35, v34")
        a("v_permlane32_swap_b32 v32, v33")
        a("v_permlane32_swap_b32 v34, v35")
        a("v_cvt_pk_bf16_f32 v32, v32, v33")
        a("v_cvt_pk_bf16_f32 v33, v34, v35")
        self.exec_((0xFFFFFFFF, 0))
        a("ds_write_b64 v28, v[32:33]")
        self.signal(vSM, F_QR, vOne)
        self.stamp(5)
        a(f"s_branch {self.lab('scores')}")
        a.label(self.lab("noq"))
        self.wait_flag(vSM, F_MODE, 1, 8)
        a(f"v_readfirstlane_b32 s{sMODE}, v8")
        a.label(self.lab("scores"))
        a("s_waitcnt vmcnt(0) lgkmcnt(0)")
        a(f"v_and_b32 v{vT}, s{sM10}, v{vT}")
        a(f"s_lshl_b32 s34, s{sC}, 3")
        a(f"s_add_u32 s34, s34, {BASE['k'] + 8}")
        self.wait_flag(vSM, F_PROG, "s34", 8)
        KA, S = 48, 80
        for tt in range(2):
            for ks in range(4):
                r = KA + (tt * 4 + ks) * 4
                a(f"ds_read_b128 v[{r}:{r+3}], v{vKA+ks} offset:{4096*tt}")
        self.wait_flag(vSM, F_QR, 4, 8)
        for ks in range(4):
            a(f"ds_read_b128 v[{32+4*ks}:{35+4*ks}], v{vQB} offset:{QL + 64*ks}")
        for ks in range(4):
            a(f"s_waitcnt lgkmcnt({3-ks})")
            for tt in range(2):
                r = KA + (tt * 4 + ks) * 4
                d = S + 4 * tt
                a(f"{MFMA} v[{d}:{d+3}], v[{r}:{r+3}], v[{32+4*ks}:{35+4*ks}], {'0' if ks == 0 else f'v[{d}:{d+3}]'}")
        for i in range(8):
            self.rnd(S + i)
        for i in range(8):
            a(f"v_mul_f32 v{S+i}, {SCALE:#x}, v{S+i}")
        for i in range(8):
            self.rnd(S + i)
        a(f"v_max3_f32 v32, v{S}, v{S+1}, v{S+2}")
        a(f"v_max3_f32 v33, v{S+3}, v{S+4}, v{S+5}")
        a(f"v_max3_f32 v32, v32, v{S+6}, v{S+7}")
        a("v_max_f32 v32, v32, v33")
        self.swap_reduce("v_max_f32", 32, 33, 16)
        self.swap_reduce("v_max_f32", 32, 33, 32)
        self.exec_(0x1111)
        a(f"ds_write_b32 v{vMW}, v32 offset:{MX}")
        self.signal(vSM, F_MAX, vOne)
        a(f"s_mov_b32 s34, {LOG2E:#x}")
        self.wait_flag(vSM, F_MAX, 8, 8)
        a(f"ds_read_b128 v[32:35], v{vMR} offset:{MX}")
        a(f"ds_read_b128 v[36:39], v{vMR} offset:{MX+16}")
        a("s_waitcnt lgkmcnt(0)")
        a("v_max3_f32 v32, v32, v33, v34")
        a("v_max3_f32 v35, v35, v36, v37")
        a("v_max3_f32 v32, v32, v38, v39")
        vM = 8
        a(f"v_max_f32 v{vM}, v32, v35")
        for i in range(8):
            a(f"v_sub_f32 v{S+i}, v{S+i}, v{vM}")
        for i in range(8):
            a(f"v_mul_f32 v{S+i}, s34, v{S+i}")
        for i in range(8):
            a(f"v_exp_f32 v{S+i}, v{S+i}")
        for i in range(4):
            a(f"v_cvt_pk_bf16_f32 v{32+i}, v{S+2*i}, v{S+2*i+1}")
        self.exec_(M_J4)
        a(f"ds_write_b128 v{vPW}, v[32:35] offset:{PL}")
        self.exec_(-1)
        for i in range(4):
            a(f"v_add_f32 v{S+i}, v{S+i}, v{S+4+i}")
        a(f"v_add_f32 v{S}, v{S}, v{S+1}")
        a(f"v_add_f32 v{S+2}, v{S+2}, v{S+3}")
        a(f"v_add_f32 v{S}, v{S}, v{S+2}")
        self.swap_reduce("v_add_f32", S, S + 1, 16)
        self.swap_reduce("v_add_f32", S, S + 1, 32)
        self.exec_(0x1111)
        a(f"ds_write_b32 v{vMW}, v{S} offset:{LS}")
        self.signal(vSM, F_P, vOne)
        a(f"s_cmp_ge_u32 s{sC}, 4")
        a(f"s_cbranch_scc1 {self.lab('comb')}")
        a("s_setprio 2")
        self.wait_flag(vSM, F_P, 8, 9)
        PB = 32
        for ks in range(8):
            a(f"ds_read_b128 v[{PB+4*ks}:{PB+4*ks+3}], v{vPR} offset:{PL + 64*ks}")
        self.stamp(6)
        a(f"s_cmp_lg_u32 s{sC}, 0")
        a(f"s_cbranch_scc1 {self.lab('noml')}")
        a(f"ds_read_b128 v[64:67], v{vMR} offset:{LS}")
        a(f"ds_read_b128 v[68:71], v{vMR} offset:{LS+16}")
        a(f"v_lshlrev_b32 v72, 9, v{vH}")
        a("s_waitcnt lgkmcnt(0)")
        for e in range(4):
            a(f"v_add_f32 v{64+e}, v{64+e}, v{68+e}")
        a("v_add_f32 v64, v64, v65")
        a("v_add_f32 v66, v66, v67")
        a("v_add_f32 v65, v64, v66")
        self.tag(64, vT, sM10, vM)
        self.tag(65, vT, sM10)
        a("v_mov_b32 v66, v64")
        a("v_mov_b32 v67, v65")
        self.publish("m", ["buffer_store_dwordx4 v[64:67], v72, s[40:43], s77 offen sc1"], 0x1111)
        a.label(self.lab("noml"))
        O = 96
        a(f"v_xor_b32 v24, 32, v{vVA}")
        a(f"v_xor_b32 v25, 32, v{vVT}")
        a("v_and_b32 v28, 1, v0")
        a(f"v_mul_u32_u24 v29, {OLS}, v28")
        a(f"v_add3_u32 v29, v29, v{vQ}, v{vSM}")
        a(f"v_lshl_add_u32 v28, v28, 6, v{vQ}")
        if self.o.get("wsh"):
            a(f"s_add_u32 s33, s{sJ}, {self.o['wsh']}")
            a("s_and_b32 s33, s33, 7")
        else:
            a(f"s_and_b32 s33, s{sJ}, 7")
        a("s_lshl_b32 s33, s33, 2")
        a(f"s_add_u32 s33, s33, s{sC}")
        a("s_lshl_b32 s33, s33, 13")
        a(f"s_lshl_b32 s34, s{sG}, 2")
        a(f"s_lshr_b32 s72, s{sJ}, 3")
        a("s_add_u32 s34, s34, s72")
        a("s_lshl_b32 s34, s34, 7")
        a("s_add_u32 s33, s33, s34")
        a(f"s_add_u32 s72, s33, {FX}")

        def pv(grp, thr):
            self.wait_flag(vSM, F_PROG, thr, 9)
            for n, ks in enumerate(grp):
                for u in range(2):
                    for t in range(2):
                        r = 64 + n * 8 + u * 4 + t * 2
                        if ks < 7:
                            a(f"ds_read_b64_tr_b16 v[{r}:{r+1}], v{24 if u else vVA} offset:{ks*8192 + t*4096}")
                        else:
                            a(f"ds_read_b64_tr_b16 v[{r}:{r+1}], v{25 if u else vVT} offset:{t*4096}")
            for n, ks in enumerate(grp):
                for u in range(2):
                    a(f"s_waitcnt lgkmcnt({4*(len(grp)-1-n) + 2*(1-u)})")
                    r = 64 + n * 8 + u * 4
                    d = O + 4 * u
                    a(f"{MFMA} v[{d}:{d+3}], v[{r}:{r+3}], v[{PB+4*ks}:{PB+4*ks+3}], {'0' if ks == 0 else f'v[{d}:{d+3}]'}")

        bv = BASE["v"]

        def ppre(k):
            if self.o.get("ppre") == k:
                self.exec_((0x33333333, 0x33333333))
                a(f"buffer_load_dwordx4 v[88:91], v{vPub}, s[40:43], s71 offen sc1 nt")
                self.exec_(-1)

        ppre(0)
        pv((0, 1, 2), bv + 24)
        ppre(3)
        pv((3,), bv + 32)
        ppre(4)
        pv((4,), bv + 40)
        ppre(5)
        pv((5,), bv + 48)
        ppre(6)
        pv((6,), bv + 56)
        ppre(7)
        a("s_mov_b32 s34, 0x22222222")
        a("s_mov_b32 s35, 0x22222222")
        pv((7,), TH["t"])
        self.exec_((0x33333333, 0x33333333))
        a(f"s_cmp_eq_u32 s{sMODE}, 2")
        for e in range(4):
            a(f"v_cndmask_b32 v{O+e}, v{O+e}, v{O+4+e}, s[34:35]")
        for e in range(4):
            self.tag(O + e, vT, sM10)
        self.publish("o", [f"buffer_store_dwordx4 v[{O}:{O+3}], v{vPub}, s[40:43], s71 offen sc1"], None, precmp=True)
        if self.o.get("hold"):
            self.signal(vSM, F_OS, vOne)
        self.stamp(7)
        self.fine("opub", 94)
        self.fine_flush("opub", 94)
        if self.o.get("spre"):
            a(f"v_add_u32 v84, -1, v{vT}")
            for e in range(1, 4):
                a(f"v_mov_b32 v{84+e}, v84")
            if self.o["spre"] > 1:
                self.wait_flag(vSM, F_PROG, self.o["spre"], 9)
            self.exec_(M_J01)
            a("buffer_store_dwordx4 v[84:87], v28, s[40:43], s72 offen sc1")
            self.exec_(-1)
        self.wait_flag(vSM, F_PROG, max(TH["o"], TH["p"]), 9)
        for ks in range(4):
            for t in range(2):
                r = 48 + ks * 4 + t * 2
                a(f"ds_read_b64_tr_b16 v[{r}:{r+1}], v11 offset:{W0 + ks*4096 + t*2048}")
        a("s_waitcnt lgkmcnt(0)")
        a("s_barrier")
        for ks in range(4):
            a(f"ds_read_b128 v[{32+4*ks}:{35+4*ks}], v29 offset:{OL + 64*ks}")
        for ks in range(4):
            a(f"s_waitcnt lgkmcnt({3-ks})")
            r = 48 + ks * 4
            a(f"{MFMA} v[80:83], v[{r}:{r+3}], v[{32+4*ks}:{35+4*ks}], {'0' if ks == 0 else 'v[80:83]'}")
        self.exec_(M_J01)
        for e in range(4):
            self.tag(80 + e, vT, sM10)
        self.publish("s", ["buffer_store_dwordx4 v[80:83], v28, s[40:43], s72 offen sc1"], None, local=False, restore=None)
        self.stamp(10)
        if self.o.get("ack", 1):
            a("s_waitcnt vmcnt(0)")
        a("s_barrier")
        a.label(self.lab("cend"))
        self.flush_stamps(who)
        a("s_endpgm")
        a.label(self.lab("comb"))
        a("s_setprio 1")
        if "o" in self.o["pref"]:
            a(f"s_cmp_ge_u32 s{sC}, 6")
            a(f"s_cbranch_scc1 {self.lab('pre6')}")
            a("v_lshrrev_b32 v27, 5, v0")
            a("v_and_b32 v28, 31, v0")
            a("v_lshlrev_b32 v27, 14, v27")
            a("v_lshl_add_u32 v27, v28, 4, v27")
            a(f"s_sub_u32 s33, s{sC}, 4")
            a("s_lshl_b32 s33, s33, 15")
            a("s_add_u32 s33, s33, s76")
            if self.o.get("opre_at"):
                self.wait_flag(vSM, F_PROG, self.o["opre_at"], 9)
            a(f"buffer_load_dwordx4 v[32:35], v27, s[40:43], s33 offen {self.o.get('oprefl', 'sc1 nt')}")
            if self.o.get("pin") == "ld":
                a("s_waitcnt vmcnt(0)")
                a("buffer_load_dwordx4 v[32:35], v27, s[40:43], s33 offen sc1")
            elif self.o.get("pin") == "st":
                a(f"v_add_u32 v36, -1, v{vT}")
                for e in range(1, 4):
                    a(f"v_mov_b32 v{36+e}, v36")
                a("s_waitcnt vmcnt(0)")
                a("buffer_store_dwordx4 v[36:39], v27, s[40:43], s33 offen")
            a.label(self.lab("pre6"))
        a(f"s_and_b32 s72, s{sC}, 1")
        a(f"s_bfe_u32 s75, s{sC}, 0x10001")
        a(f"s_lshr_b32 s74, s{sJ}, 3")
        a(f"s_lshl_b32 s33, s{sG}, 11")
        a("s_lshl_b32 s34, s74, 9")
        a("s_add_u32 s33, s33, s34")
        a("s_lshl_b32 s34, s72, 8")
        a("s_add_u32 s33, s33, s34")
        a(f"s_add_u32 s77, s33, {MLX}")
        a(f"v_lshlrev_b32 v24, 2, v{vQ}")
        a("v_and_b32 v26, 15, v0")
        a(f"v_lshlrev_b32 v25, 7, v{vQ}")
        a("v_lshl_add_u32 v25, v26, 4, v25")
        a(f"s_lshl_b32 s33, s{sG}, 16")
        a("s_lshl_b32 s34, s74, 14")
        a("s_add_u32 s33, s33, s34")
        a("s_lshl_b32 s34, s72, 13")
        a("s_add_u32 s33, s33, s34")
        a("s_lshl_b32 s34, s75, 8")
        a("s_add_u32 s33, s33, s34")
        a(f"s_add_u32 s73, s33, {OX}")
        a("v_and_b32 v26, 3, v0")
        a("v_lshlrev_b32 v26, 4, v26")
        a("v_bfe_u32 v27, v0, 2, 1")
        a("v_lshl_add_u32 v26, v27, 3, v26")
        a("v_bfe_u32 v27, v0, 3, 1")
        a("v_lshl_add_u32 v26, v27, 6, v26")
        a("v_bfe_u32 v27, v0, 4, 1")
        a("v_lshl_add_u32 v26, v27, 2, v26")
        a("v_lshrrev_b32 v27, 5, v0")
        a("v_lshl_add_u32 v26, v27, 1, v26")
        a(f"s_mul_i32 s33, s72, {OLS}")
        a("s_lshl_b32 s34, s75, 7")
        a("s_add_u32 s33, s33, s34")
        a(f"s_add_u32 s33, s33, {SM+OL}")
        a("v_add_u32 v26, s33, v26")
        a(f"s_mov_b32 s34, {LOG2E:#x}")
        if self.o.get("mdelay"):
            self.wait_flag(vSM, F_PROG, self.o["mdelay"], 9)
        tm = list(range(48, 58))
        ml = [f"buffer_load_dwordx4 v[{64+4*t}:{67+4*t}], v24, s[40:43], s77 offen offset:{16*t} sc1" for t in range(4)]
        ol = [f"buffer_load_dwordx4 v[{32+4*t}:{35+4*t}], v25, s[40:43], s73 offen offset:{512*t} sc1" for t in range(4)]
        merged = self.o.get("merge") and not self.o.get("skip")
        if merged:
            topA, gotm = self.uniq("pa"), self.uniq("pm")
            a.label(topA)
            a(f"s_sub_u32 s{sCAP}, s{sCAP}, 16")
            a(f"s_cbranch_scc1 {self.lab('abort')}")
            a(f"ds_read_b32 v9, v{vSM} offset:{F_PROG}")
            for t in ml:
                a(t)
            a("s_waitcnt lgkmcnt(0)")
            a(f"v_cmp_le_i32 vcc, {self.o['merge']}, v9")
            a("s_nop 0")
            a("s_mov_b64 s[74:75], vcc")
            a("s_cmp_eq_u64 s[74:75], 0")
            a(f"s_cbranch_scc1 {gotm}")
            for t in ol:
                a(t)
            a.label(gotm)
            a("s_waitcnt vmcnt(0)")
            self.check(list(range(64, 80)), vT, sM10, tm)
            a(f"s_cbranch_vccnz {topA}")
        else:
            self.poll(ml, list(range(64, 80)), vT, sM10, tm, "m")
        for t in range(4):
            a(f"v_xor_b32 v{80+2*t}, v{vT}, v{64+4*t}")
        a("v_max3_f32 v8, v80, v82, v84")
        a("v_max_f32 v8, v8, v86")
        self.swap_reduce("v_max_f32", 8, 9, 16)
        self.swap_reduce("v_max_f32", 8, 9, 32)
        for t in range(4):
            a(f"v_sub_f32 v{80+2*t}, v{80+2*t}, v8")
        for t in range(4):
            a(f"v_mul_f32 v{80+2*t}, s34, v{80+2*t}")
        for t in range(4):
            a(f"v_exp_f32 v{80+2*t}, v{80+2*t}")
        a("v_mul_f32 v8, v80, v65")
        for t in range(1, 4):
            a(f"v_fmac_f32 v8, v{80+2*t}, v{65+4*t}")
        self.swap_reduce("v_add_f32", 8, 9, 16)
        self.swap_reduce("v_add_f32", 8, 9, 32)
        a("v_rcp_f32 v8, v8")
        for t in range(4):
            a(f"v_mul_f32 v{80+2*t}, v{80+2*t}, v8")
        self.stamp(8)
        self.stamp(11) if self.o.get("fine") else None
        if merged:
            topB, chk = self.uniq("pb"), self.uniq("pc")
            a("s_cmp_lg_u64 s[74:75], 0")
            a(f"s_cbranch_scc1 {chk}")
            self.wait_flag(vSM, F_PROG, self.o["merge"], 9)
            first = self.uniq("pf")
            a(f"s_branch {first}")
            a.label(topB)
            if self.o.get("osleep"):
                a(f"s_sleep {self.o['osleep']}")
            a.label(first)
            a(f"s_sub_u32 s{sCAP}, s{sCAP}, 16")
            a(f"s_cbranch_scc1 {self.lab('abort')}")
            for t in ol:
                a(t)
            a("s_waitcnt vmcnt(0)")
            a.label(chk)
            pk = [f"v_pk_mul_f32 v[{32+2*h}:{33+2*h}], v[{32+2*h}:{33+2*h}], v[80:81] op_sel_hi:[1,0]" for h in range(2)]
            for t in range(1, 4):
                for h in range(2):
                    pk.append(f"v_pk_fma_f32 v[{32+2*h}:{33+2*h}], v[{32+4*t+2*h}:{33+4*t+2*h}], v[{80+2*t}:{81+2*t}], v[{32+2*h}:{33+2*h}] op_sel_hi:[1,0,1]")
            inter = self.o.get("inter", 1)
            self.extra = pk if inter else []
            self.check(list(range(32, 48)), vT, sM10, tm)
            self.extra = []
            a(f"s_cbranch_vccnz {topB}")
        else:
            if self.o.get("odelay"):
                self.wait_flag(vSM, F_PROG, self.o["odelay"], 9)
            inter = self.o.get("inter", 1) and not self.o.get("masked") and not self.o.get("skip")
            pk = [f"v_pk_mul_f32 v[{32+2*h}:{33+2*h}], v[{32+2*h}:{33+2*h}], v[80:81] op_sel_hi:[1,0]" for h in range(2)]
            for t in range(1, 4):
                for h in range(2):
                    pk.append(f"v_pk_fma_f32 v[{32+2*h}:{33+2*h}], v[{32+4*t+2*h}:{33+4*t+2*h}], v[{80+2*t}:{81+2*t}], v[{32+2*h}:{33+2*h}] op_sel_hi:[1,0,1]")
            if self.o.get("hold"):
                top, chk = self.uniq("p"), self.uniq("pc")
                for t in ol:
                    a(t + " nt")
                self.wait_flag(vSM, F_OS, 4, 9)
                if self.o["hold"][1] > 4 and self.o.get("holdwait", 1):
                    a("s_waitcnt vmcnt(0)")
                for t in ol:
                    a(t)
                self.signal(vSM, F_OS, vOne)
                a(f"s_branch {chk}")
                a.label(top)
                a(f"s_sub_u32 s{sCAP}, s{sCAP}, 16")
                a(f"s_cbranch_scc1 {self.lab('abort')}")
                for t in ol:
                    a(t)
                a.label(chk)
                a("s_waitcnt vmcnt(0)")
                self.extra = list(pk) if inter else []
                self.check(list(range(32, 48)), vT, sM10, tm)
                a(f"s_cbranch_vccnz {top}")
            else:
                self.poll(ol, list(range(32, 48)), vT, sM10, tm, "o", extra=pk if inter else None)
            self.extra = []
        self.fine("ogot", 94)
        if not inter:
            for h in range(2):
                a(f"v_pk_mul_f32 v[{32+2*h}:{33+2*h}], v[{32+2*h}:{33+2*h}], v[80:81] op_sel_hi:[1,0]")
            for t in range(1, 4):
                for h in range(2):
                    a(f"v_pk_fma_f32 v[{32+2*h}:{33+2*h}], v[{32+4*t+2*h}:{33+4*t+2*h}], v[{80+2*t}:{81+2*t}], v[{32+2*h}:{33+2*h}] op_sel_hi:[1,0,1]")
        a("v_permlane32_swap_b32 v32, v33")
        a("v_permlane32_swap_b32 v34, v35")
        a("v_add_f32 v32, v32, v33")
        a("v_add_f32 v34, v34, v35")
        a("v_permlane16_swap_b32 v32, v34")
        a("v_add_f32 v32, v32, v34")
        a("v_cvt_pk_bf16_f32 v32, v32, v32")
        a("ds_write_b16 v26, v32")
        a("s_waitcnt lgkmcnt(0)")
        a("s_barrier")
        self.stamp(9)
        self.stamp(12) if self.o.get("fine") else None
        self.fine_flush("ogot", 94)
        self.flush_stamps(who)
        a("s_endpgm")
        self.emit_far()

    def body(self):
        a = self.a
        self.far = []
        self.prologue()
        self.loader()
        a.label(self.lab("notloader"))
        a(f"s_cmp_lg_u32 s{sW}, 1")
        a(f"s_cbranch_scc1 {self.lab('cwave')}")
        self.gwave()
        a.label(self.lab("cwave"))
        self.cwave()
        a.label(self.lab("abort"))
        a.label(self.lab("end"))
        a("s_endpgm")
        a.label(self.lab("codeend"))
        return a.text()


NOTES = """
;
; One persistent workgroup per CU (256 of them, 10 waves each); g = id & 7 is the KV head, j = id >> 3.
;   wave 0      streams this CU's 184 KiB (wq block, gate/up block, 256 keys of K and V, w_down block, wo block)
; bits (tag = word 0 of d_ws + 1, which workgroup 0 stores back at the end), so a consumer simply re-reads
; on one die keeps its hand-offs in that die's L2 (plain stores); any other placement uses write-through stores.
"""


def header():
    ref = open("recurrent_scan__sliding_block_cached__glu_gated_glu__decode.s.ref").read().split("\n")
    out = []
    for l in ref:
        if l.startswith("; @launch"):
            out.append(f"; @launch grid=(256,1,1) block=({NW*64},1,1) lds={LDS_BYTES}")
            out.extend(NOTES.strip("\n").split("\n"))
            break
        out.append(l)
    return "\n".join(out) + "\n"


def final_file(path, cls=None, **kw):
    g = (cls or Gen3)(**kw)
    body = g.body()
    s = header()
    s += f""".amdgcn_target "amdgcn-amd-amdhsa--gfx950"
.text
.globl {KNAME}
.p2align 8
.type {KNAME},@function
{KNAME}:
{body}.section .rodata,"a"
.p2align 6
.amdhsa_kernel {KNAME}
  .amdhsa_next_free_vgpr {NVGPR}
  .amdhsa_next_free_sgpr 102
  .amdhsa_accum_offset {NVGPR}
  .amdhsa_group_segment_fixed_size 0
  .amdhsa_kernarg_size 96
  .amdhsa_user_sgpr_count 2
  .amdhsa_user_sgpr_kernarg_segment_ptr 1
  .amdhsa_system_sgpr_workgroup_id_x 1
.end_amdhsa_kernel
"""
    open(path, "w").write(s)
    return g


def build_variants(out, variants, cls=None):
    from asmlib import build
    ks = []
    for n, kw in variants:
        g = (cls or Gen3)(name=n + "_kernel", **kw)
        ks.append((n + "_kernel", g.body(), NVGPR, NW * 64))
    build(out, ks)
    open(out + ".names", "w").write("".join(f"{n}_kernel:256:{NW*64}:{LDS_BYTES}\n" for n, kw in variants))


if __name__ == "__main__":
    build_variants("kern3", [("k3s", dict(N=24, stamps=True)), ("k3", dict(N=24)), ("k3nl", dict(N=24, opts=dict(nolocal=1)))])
```

```python
from asmlib import build
import gen3
def mix(out, variants):
    ks=[]
    for v in variants:
        n,mod,N,o=v[:4]; st=v[4] if len(v)>4 else False
        g=mod.Gen3(name=n+"_kernel",N=N,stamps=st,opts=o)
        ks.append((n+"_kernel",g.body(),mod.NVGPR,getattr(g,'NW',mod.NW)*64))
    build(out,ks)
    open(out+".names","w").write("".join(f"{k[0]}:256:{k[3]}:163840\n" for k in ks))
```

```python
BEST=dict(ilv=None,rot=(9,4,2),order="qgukvtdop",qdelay=68,gdelay=128,mdelay=140,odelay=168,early=2,lpf=1,pref="",ntfirst="qg",epfl="",ysplit=0,win=dict(k=24),inter=1,wsh=3,dsh=5,ppre=6,merge=160,cap=0x200000)
BESTN=32
if __name__=="__main__":
    import gen3
    from mix import mix
    gen3.final_file("cand/h_best.s",N=BESTN,opts=BEST)
    mix("soak",[("best",gen3,BESTN,dict(BEST)),("scr1",gen3,BESTN,dict(BEST,scramble=1)),("scr4",gen3,BESTN,dict(BEST,scramble=4)),("nl",gen3,BESTN,dict(BEST,nolocal=1))])
```

```python
import re
from dsl import Asm

KNAME = "recurrent_scan__sliding_block_cached__glu_gated_glu__decode_kernel"

W0, W1, W2, KB, VB, SM = 0x0000, 0x4000, 0x6000, 0x8000, 0x18000, 0x26000
XN, QL, PL, MX, LS, OL, HL, FL = 0x0000, 0x0900, 0x0E00, 0x1700, 0x1780, 0x1800, 0x1A80, 0x1C00
XNS, QLS, PLS, OLS, HLS = 1088, 320, 576, 320, 192
F_PROG, F_XN, F_CQ, F_CG, F_QR, F_MAX, F_P, F_TAG, F_MODE, F_OS = [FL + 4 * i for i in range(10)]
LDS_BYTES = 163840
QX, GX, MLX, OX, FX = 0x1000, 0x21000, 0x59000, 0x61000, 0xE1000
FXS = 64 * 128
WS_USE = 0x200000
sG, sJ, sW, sB, sS = 28, 29, 30, 31, 32
sMODE, sM10, sM8, sCAP, sHI = 64, 65, 66, 67, 63
SCALE = 0x3DB504F3
LOG2E = 0x3FB8AA3B
EPS = 0x3727C5AC
M_J01 = (0x00030003, 0x00030003)
M_J03 = (0x000F000F, 0x000F000F)
M_J4 = (0x11111111, 0x11111111)
NW = 10
NVGPR = 104
CNT = dict(q=16, g=8, u=8, k=64, v=56, t=8, o=8, p=8, d=8)
MFMA = "v_mfma_f32_16x16x32_bf16"


class Gen3:
    def __init__(self, N=24, stamps=False, name=KNAME, opts=None):
        self.a = Asm()
        self.N = N
        self.stamps = stamps
        self.name = name
        self.u = 0
        self.o = dict(order="qgukvtdop", ilv=4096, qdelay=72, gdelay=128, mdelay=0, odelay=160, pref="qgo")
        self.o.update(opts or {})
        self.TH, self.BASE = {}, {}
        self.CNT = dict(CNT)
        if "w" in self.o["order"]:
            assert "vw" in self.o["order"]
            self.CNT["v"] = self.o["vsplit"]
            self.CNT["w"] = 56 - self.o["vsplit"]
        if "j" in self.o["order"]:
            assert "kj" in self.o["order"]
            self.CNT["k"] = self.o["ksplit"]
            self.CNT["j"] = 64 - self.o["ksplit"]
        n = 0
        for p in self.o["order"]:
            self.BASE[p] = n
            n += self.CNT[p]
            self.TH[p] = n
        assert n == 184

    def lab(self, s):
        return f"L_{s}_{self.name[-24:]}" if self.name != KNAME else f"L_{s}"

    def uniq(self, s):
        self.u += 1
        return self.lab(f"{s}{self.u}")

    def srd(self, d, p, off, size):
        a = self.a
        if off is None:
            a(f"s_mov_b32 s{d}, s{p}")
            a(f"s_mov_b32 s{d+1}, s{p+1}")
        else:
            a(f"s_add_u32 s{d}, s{p}, {off}")
            a(f"s_addc_u32 s{d+1}, s{p+1}, 0")
        if self.o.get("nostream") and p in (6, 8, 10, 12, 16, 18, 20):
            size = 0
        if p in self.o.get("zero", ()):
            size = 0
        a(f"s_mov_b32 s{d+2}, {size}")
        a(f"s_mov_b32 s{d+3}, 0x20000")

    def exec_(self, m):
        a = self.a
        if isinstance(m, int):
            a(f"s_mov_b64 exec, {m}")
        else:
            a(f"s_mov_b32 exec_lo, {m[0]:#x}")
            a(f"s_mov_b32 exec_hi, {m[1]:#x}")

    def init_stamps(self, slots):
        self.myslots = slots
        if self.stamps:
            for i in range(len(slots)):
                self.a(f"s_mov_b64 s[{80+2*i}:{81+2*i}], 0")

    def stamp(self, slot):
        if self.stamps and slot in self.myslots:
            i = self.myslots.index(slot)
            self.a(f"s_memrealtime s[{80+2*i}:{81+2*i}]")
            self.a("s_waitcnt lgkmcnt(0)")

    def flush_stamps(self, who=None):
        if not self.stamps:
            return
        a = self.a
        a("s_lshl_b32 s33, s2, 7")
        a("s_add_u32 s33, s33, 0x10000000")
        self.srd(76, 26, "s33", 128)
        a("s_mov_b64 exec, 1")
        for i, slot in enumerate(self.myslots):
            sk = self.uniq("cs")
            if who is not None:
                a(f"s_cmp_eq_u32 s70, {who(slot)}")
                a(f"s_cbranch_scc0 {sk}")
            a(f"v_mov_b32 v24, s{80+2*i}")
            a(f"v_mov_b32 v25, s{81+2*i}")
            a(f"buffer_store_dwordx2 v[24:25], off, s[76:79], 0 offset:{8*slot}")
            a("s_nop 1")
            a.label(sk)

    def fine(self, name, base):
        if self.stamps and self.o.get("fine", {}).get(name) is not None:
            self.a(f"s_memrealtime s[{base}:{base+1}]")
            self.a("s_waitcnt lgkmcnt(0)")

    def fine_flush(self, name, base):
        if self.stamps and self.o.get("fine", {}).get(name) is not None:
            a = self.a
            a("s_lshl_b32 s33, s2, 7")
            a("s_add_u32 s33, s33, 0x10000000")
            self.srd(76, 26, "s33", 128)
            a("s_mov_b64 exec, 1")
            a("s_and_b32 s33, s70, 3")
            a(f"s_add_u32 s33, s33, {self.o['fine'][name]}")
            a("s_lshl_b32 s33, s33, 3")
            a(f"v_mov_b32 v24, s{base}")
            a(f"v_mov_b32 v25, s{base+1}")
            a("buffer_store_dwordx2 v[24:25], off, s[76:79], s33")
            a("s_nop 1")

    def amp(self, what):
        if not self.o.get("amp") or self.o["amp"][2] != what:
            return
        K, wg, _ = self.o["amp"]
        a = self.a
        top, done = self.uniq("amp"), self.uniq("ampd")
        a(f"s_cmp_lg_u32 s2, {wg}")
        a(f"s_cbranch_scc1 {done}")
        a("s_memrealtime s[94:95]")
        a("s_waitcnt lgkmcnt(0)")
        if self.o.get("ampskew") is not None:
            a("s_mov_b64 exec, 1")
            a(f"buffer_load_dword v4, off, s[40:43], 0 offset:{256 + 4*self.o['ampskew']} sc1")
            a("s_waitcnt vmcnt(0)")
            a("v_readfirstlane_b32 s96, v4")
            a("s_nop 3")
            a("s_sub_u32 s96, s98, s96")
            a("s_add_u32 s96, s96, 200")
        else:
            a("s_sub_u32 s96, s94, s98")
        a(f"s_mul_i32 s96, s96, {K}")
        a("s_min_u32 s96, s96, 100000")
        a.label(top)
        a("s_memrealtime s[92:93]")
        a("s_waitcnt lgkmcnt(0)")
        a("s_sub_u32 s92, s92, s94")
        a("s_cmp_lt_u32 s92, s96")
        a(f"s_cbranch_scc1 {top}")
        a.label(done)

    def wait_flag(self, vsm, flag, thr, vt, urgent=False):
        a = self.a
        slp = 0 if urgent else self.o.get("ldssleep", 0)
        top = self.uniq("w")
        a.label(top)
        a(f"s_sub_u32 s{sCAP}, s{sCAP}, 1")
        a(f"s_cbranch_scc1 {self.lab('abort')}")
        a(f"ds_read_b32 v{vt}, v{vsm} offset:{flag}")
        a("s_waitcnt lgkmcnt(0)")
        a(f"v_cmp_le_i32 vcc, {thr}, v{vt}")
        if slp:
            done = self.uniq("wd")
            a(f"s_cbranch_vccnz {done}")
            a(f"s_sleep {slp}")
            a(f"s_branch {top}")
            a.label(done)
        else:
            a(f"s_cbranch_vccz {top}")

    def signal(self, vsm, flag, vone, restore=-1):
        a = self.a
        a("s_mov_b64 exec, 1")
        a(f"ds_add_u32 v{vsm}, v{vone} offset:{flag}")
        if restore is not None:
            self.exec_(restore)

    def check(self, regs, vT, smask, tmps):
        a0 = self.a
        ex = list(getattr(self, "extra", []))

        def a(t):
            a0(t)
            if ex and not t.startswith("v_bitop3"):
                a0(ex.pop(0))
                if ex:
                    a0(ex.pop(0))
        xs = []
        for i in range(0, len(regs), 2):
            t = tmps[i // 2]
            a(f"v_bitop3_b32 v{t}, v{regs[i]}, v{regs[i+1]}, v{vT} bitop3:0x7e")
            xs.append(t)
        while len(xs) > 1:
            nx, i = [], 0
            while i < len(xs):
                if i + 2 < len(xs):
                    a(f"v_or3_b32 v{xs[i]}, v{xs[i]}, v{xs[i+1]}, v{xs[i+2]}")
                    nx.append(xs[i]); i += 3
                elif i + 1 < len(xs):
                    a(f"v_or_b32 v{xs[i]}, v{xs[i]}, v{xs[i+1]}")
                    nx.append(xs[i]); i += 2
                else:
                    nx.append(xs[i]); i += 1
            xs = nx
        a(f"v_and_b32 v{xs[0]}, s{smask}, v{xs[0]}")
        while ex:
            a0(ex.pop(0))
        a0(f"v_cmp_ne_u32 vcc, 0, v{xs[0]}")

    def poll_masked(self, loads, regs, vT, smask, tmps, base_exec):
        a = self.a
        n = len(loads)
        M = [52 + 2 * i for i in range(n)]
        assert n <= 4
        top, done = self.uniq("p"), self.uniq("pd")
        for t in loads:
            a(t)
        a("s_waitcnt vmcnt(0)")

        def checks(first):
            if first:
                for i in range(n):
                    r = regs[4 * i:4 * i + 4]
                    a(f"v_bitop3_b32 v{tmps[2*i]}, v{r[0]}, v{r[1]}, v{vT} bitop3:0x7e")
                    a(f"v_bitop3_b32 v{tmps[2*i+1]}, v{r[2]}, v{r[3]}, v{vT} bitop3:0x7e")
                self.check_tail([tmps[i] for i in range(2 * n)], smask, tmps[2 * n])
            for i in range(n):
                r = regs[4 * i:4 * i + 4]
                if not first:
                    a(f"s_mov_b64 exec, s[{M[i]}:{M[i]+1}]")
                    a(f"v_bitop3_b32 v{tmps[2*i]}, v{r[0]}, v{r[1]}, v{vT} bitop3:0x7e")
                    a(f"v_bitop3_b32 v{tmps[2*i+1]}, v{r[2]}, v{r[3]}, v{vT} bitop3:0x7e")
                a(f"v_or_b32 v{tmps[2*i]}, v{tmps[2*i]}, v{tmps[2*i+1]}")
                a(f"v_and_b32 v{tmps[2*i]}, s{smask}, v{tmps[2*i]}")
                a(f"v_cmp_ne_u32 s[{M[i]}:{M[i]+1}], 0, v{tmps[2*i]}")

        checks(True)
        a("s_nop 1")
        a.label(top)
        a(f"s_sub_u32 s{sCAP}, s{sCAP}, 16")
        a(f"s_cbranch_scc1 {self.lab('abort')}")
        for i, t in enumerate(loads):
            sk = self.uniq("pk")
            a(f"s_mov_b64 exec, s[{M[i]}:{M[i]+1}]")
            a(f"s_cbranch_execz {sk}")
            a(t)
            a.label(sk)
        a("s_waitcnt vmcnt(0)")
        checks(False)
        a("s_nop 1")
        a(f"s_mov_b64 s[60:61], s[{M[0]}:{M[0]+1}]")
        for i in range(1, n):
            a(f"s_or_b64 s[60:61], s[60:61], s[{M[i]}:{M[i]+1}]")
        a("s_cmp_lg_u64 s[60:61], 0")
        a(f"s_cbranch_scc1 {top}")
        a.label(self.pm_done)
        self.exec_(base_exec)

    def check_tail(self, xs, smask, t):
        a = self.a
        self.pm_done = self.uniq("pmd")
        cur = xs[0]
        i = 1
        first = True
        while i < len(xs):
            if i + 1 < len(xs):
                a(f"v_or3_b32 v{t}, v{cur}, v{xs[i]}, v{xs[i+1]}")
                i += 2
            else:
                a(f"v_or_b32 v{t}, v{cur}, v{xs[i]}")
                i += 1
            cur = t
        a(f"v_and_b32 v{t}, s{smask}, v{t}")
        a(f"v_cmp_ne_u32 vcc, 0, v{t}")
        a(f"s_cbranch_vccz {self.pm_done}")

    def poll(self, loads, regs, vT, smask, tmps, name, base_exec=-1, extra=None):
        a = self.a
        self.extra = list(extra or [])
        if name in self.o.get("skip", ""):
            return
        if name in self.o.get("ntfirst", ""):
            top, chk = self.uniq("p"), self.uniq("pc")
            for t in loads:
                a(t + " nt")
            a(f"s_branch {chk}")
            a.label(top)
            a(f"s_sub_u32 s{sCAP}, s{sCAP}, 16")
            a(f"s_cbranch_scc1 {self.lab('abort')}")
            for t in loads:
                a(t)
            a.label(chk)
            a("s_waitcnt vmcnt(0)")
            self.check(regs, vT, smask, tmps)
            a(f"s_cbranch_vccnz {top}")
            return
        if name in self.o.get("masked", ""):
            return self.poll_masked(loads, regs, vT, smask, tmps, base_exec)
        top = self.uniq("p")
        tr = self.stamps and self.o.get("count", {}).get(name)
        if tr and all(x in self.myslots for x in tr):
            self.stamp(tr[0])
            i = self.myslots.index(tr[1])
            a(f"s_mov_b64 s[{80+2*i}:{81+2*i}], s[98:99]")
            for t in loads:
                a(t)
            a("s_waitcnt vmcnt(0)")
            self.stamp(tr[2])
            a.label(top)
            a(f"s_add_u32 s{80+2*i}, s{80+2*i}, 1")
            a(f"s_sub_u32 s{sCAP}, s{sCAP}, 16")
            a(f"s_cbranch_scc1 {self.lab('abort')}")
            self.check(regs, vT, smask, tmps)
            done = self.uniq("pd")
            a(f"s_cbranch_vccz {done}")
            for t in loads:
                a(t)
            a("s_waitcnt vmcnt(0)")
            a(f"s_branch {top}")
            a.label(done)
            return
        a.label(top)
        a(f"s_sub_u32 s{sCAP}, s{sCAP}, 16")
        a(f"s_cbranch_scc1 {self.lab('abort')}")
        for t in loads:
            a(t)
        a("s_waitcnt vmcnt(0)")
        self.check(regs, vT, smask, tmps)
        a(f"s_cbranch_vccnz {top}")

    def tag(self, r, vT, smask, src=None):
        self.a(f"v_bfi_b32 v{r}, s{smask}, v{vT}, v{r if src is None else src}")

    def publish(self, name, stores, mask, local=True, restore=-1, precmp=False):
        a = self.a
        if name in self.o.get("nostore", ""):
            if restore is not None:
                self.exec_(restore)
            return
        if mask is not None:
            self.exec_(mask)
        if local:
            far, done = self.uniq("far"), self.uniq("pub")
            if not precmp:
                a(f"s_cmp_eq_u32 s{sMODE}, 2")
            a(f"s_cbranch_scc0 {far}")
            for t in stores:
                a(t.replace(" sc1", ""))
            self.far.append((far, stores, done))
            a.label(done)
        else:
            for t in stores:
                a(t)
        if restore is not None:
            self.exec_(restore)

    def emit_far(self):
        a = self.a
        for far, stores, done in self.far:
            a.label(far)
            for t in stores:
                a(t)
            a(f"s_branch {done}")
        self.far = []

    def rnd(self, d, src=None):
        self.a(f"v_cvt_pk_bf16_f32 v{d}, 0, v{d if src is None else src}")

    def row_reduce(self, op, regs):
        for sh in (8, 4, 2, 1):
            for r in regs:
                self.a(f"{op}_dpp v{r}, v{r}, v{r} row_ror:{sh} row_mask:0xf bank_mask:0xf")

    def swap_reduce(self, op, r, tmp, which):
        a = self.a
        a(f"v_mov_b32 v{tmp}, v{r}")
        a(f"v_permlane{which}_swap_b32 v{r}, v{tmp}")
        a(f"{op} v{r}, v{r}, v{tmp}")

    def tr_addr(self, vd, rowshift, wide, t1, t2, t3):
        a = self.a
        a(f"v_bfe_u32 v{t1}, v0, 2, 2")
        a(f"v_lshrrev_b32 v{t2}, 4, v0")
        a(f"v_lshl_add_u32 v{t1}, v{t2}, 2, v{t1}")
        if wide:
            a(f"v_and_b32 v{t2}, 7, v{t1}")
        else:
            a(f"v_bfe_u32 v{t2}, v{t1}, 1, 2")
        a(f"v_lshlrev_b32 v{t2}, 5, v{t2}")
        a(f"v_lshl_add_u32 v{vd}, v{t1}, {rowshift}, v{t2}")
        a(f"v_and_b32 v{t3}, 3, v0")
        a(f"v_lshl_add_u32 v{vd}, v{t3}, 3, v{vd}")

    def half_fold(self, r, t):
        a = self.a
        a(f"v_permlane16_swap_b32 v{r}, v{r+1}")
        a(f"v_permlane16_swap_b32 v{r+2}, v{r+3}")
        a(f"v_add_f32 v{r}, v{r}, v{r+1}")
        a(f"v_add_f32 v{r+2}, v{r+2}, v{r+3}")
        a(f"v_add_f32_dpp v{t}, v{r}, v{r} row_ror:8 row_mask:0xf bank_mask:0x3")
        a(f"v_add_f32_dpp v{t}, v{r+2}, v{r+2} row_ror:8 row_mask:0xf bank_mask:0xc")
        a(f"v_add_f32_dpp v{t}, v{t}, v{t} row_half_mirror row_mask:0xf bank_mask:0xf")
        a(f"v_add_f32_dpp v{t}, v{t}, v{t} quad_perm:[1,0,3,2] row_mask:0xf bank_mask:0xf")
        a(f"v_add_f32_dpp v{t}, v{t}, v{t} quad_perm:[2,3,0,1] row_mask:0xf bank_mask:0xf")

    def glu_ids(self, sn, sc, si):
        a = self.a
        if self.o.get("bal"):
            a(f"s_and_b32 s{sn}, s{sG}, 1")
            a(f"s_mul_i32 s{sc}, s{sn}, 3")
            a(f"s_lshr_b32 s{si}, s{sJ}, 3")
            a(f"s_add_u32 s{sc}, s{sc}, s{si}")
            a(f"s_lshl_b32 s{sn}, s{sn}, 2")
            a(f"s_and_b32 s{si}, s{sJ}, 3")
            a(f"s_add_u32 s{sn}, s{sn}, s{si}")
            a(f"s_and_b32 s{si}, s{sJ}, 7")
            a(f"s_cmp_lt_u32 s{sJ}, 24")
            a(f"s_cselect_b32 s{sc}, s{sc}, 6")
            a(f"s_cselect_b32 s{si}, s{si}, s{sn}")
            a(f"s_lshr_b32 s{sn}, s{sG}, 1")
            a(f"s_mul_i32 s{sn}, s{sn}, 7")
            a(f"s_add_u32 s{sc}, s{sc}, s{sn}")
            a(f"s_cmp_lt_u32 s{sJ}, 28")
            return
        a(f"s_min_u32 s{sn}, s{sG}, 4")
        a(f"s_mul_i32 s{sc}, s{sG}, 3")
        a(f"s_add_u32 s{sc}, s{sc}, s{sn}")
        a(f"s_lshr_b32 s{sn}, s{sJ}, 3")
        a(f"s_add_u32 s{sc}, s{sc}, s{sn}")
        a(f"s_and_b32 s{si}, s{sJ}, 7")
        a(f"s_cmp_lt_u32 s{sG}, 4")
        a(f"s_cselect_b32 s{sn}, 32, 24")
        a(f"s_cmp_lt_u32 s{sJ}, s{sn}")

    def prologue(self):
        a = self.a
        a("s_load_dwordx16 s[4:19], s[0:1], 0")
        a("s_load_dwordx8 s[20:27], s[0:1], 64")
        a("s_cmp_ge_u32 s2, 256")
        a(f"s_cbranch_scc1 {self.lab('end')}")
        if self.stamps or self.o.get("amp"):
            a("s_memrealtime s[98:99]")
        if self.o.get("scramble"):
            k = self.o["scramble"]
            a("s_and_b32 s33, s2, 63")
            a(f"s_lshl_b32 s34, s33, {k}")
            a(f"s_lshr_b32 s33, s33, {6-k}")
            a("s_or_b32 s33, s33, s34")
            a("s_and_b32 s33, s33, 63")
            a("s_andn2_b32 s2, s2, 63")
            a("s_or_b32 s2, s2, s33")
        a("v_lshrrev_b32 v1, 6, v0")
        a("v_and_b32 v0, 63, v0")
        a(f"s_and_b32 s{sG}, s2, 7")
        a(f"v_readfirstlane_b32 s{sW}, v1")
        a(f"s_lshr_b32 s{sJ}, s2, 3")
        a(f"s_and_b32 s{sB}, s{sJ}, 1")
        a(f"s_lshr_b32 s{sS}, s{sJ}, 1")
        a(f"s_mov_b32 s{sCAP}, {self.o.get('cap', 0x80000):#x}")
        a(f"s_cmp_lg_u32 s{sW}, 0")
        a(f"s_cbranch_scc1 {self.lab('notloader')}")

    def loader(self):
        a = self.a
        N = self.N
        rot, ilv = self.o.get("rot"), self.o.get("ilv")
        a.c("================= loader wave: streams this CU's share of the weights and of K / V into LDS =================")
        self.init_stamps([0, 1, 2])
        a("s_setprio 3")
        vWQ, vGU, vK, vV, vW1, vSM, vP = 2, 3, 4, 8, 10, 16, 17
        sOff, sProg = 68, 69
        npf = 0
        if self.o.get("lpf"):
            a("s_getpc_b64 s[34:35]")
            a.label(self.lab("pcref0"))
            a("v_lshlrev_b32 v22, 7, v0")
            a("v_mov_b32 v25, s35")
            a(f"v_min_u32 v23, {self.lab('codeend')}-{self.lab('pcref0')}-4, v22")
            a("v_add_u32 v22, 0x2000, v22")
            a("v_add_co_u32 v24, vcc, s34, v23")
            a("v_addc_co_u32 v25, vcc, 0, v25, vcc")
            a(f"v_min_u32 v22, {self.lab('codeend')}-{self.lab('pcref0')}-4, v22")
            a("global_load_dword v26, v[24:25], off")
            a("v_mov_b32 v23, s35")
            a("v_add_co_u32 v22, vcc, s34, v22")
            a("v_addc_co_u32 v23, vcc, 0, v23, vcc")
            a("global_load_dword v27, v[22:23], off")
        a("v_lshrrev_b32 v18, 4, v0")
        a("v_lshlrev_b32 v19, 1, v18")
        a("v_and_b32 v20, 7, v0")
        a("v_xor_b32 v20, v19, v20")
        a("v_lshlrev_b32 v20, 4, v20")
        a("v_lshrrev_b32 v21, 3, v0")
        a(f"v_lshl_add_u32 v{vWQ}, v21, 13, v20")
        a(f"s_lshr_b32 s33, s{sJ}, 3")
        a("s_lshl_b32 s33, s33, 20")
        a(f"s_lshl_b32 s34, s{sG}, 10")
        a("s_add_u32 s33, s33, s34")
        a(f"s_and_b32 s34, s{sJ}, 7")
        a("s_lshl_b32 s71, s34, 7")
        a("s_add_u32 s33, s33, s71")
        a(f"s_mov_b32 s{sOff}, 0")
        a(f"s_mov_b32 m0, {W0}")
        a(f"s_mov_b32 s{sProg}, {-N}")
        a(f"v_mov_b32 v{vSM}, {SM:#x}")
        a("s_waitcnt lgkmcnt(0)")
        self.srd(36, 10, "s33", 127 * 8192 + 128)
        if self.stamps:
            a("s_mov_b64 s[80:81], s[98:99]")

        def loop(name, vo, srd, step, end, N, quiet=False):
            top = self.uniq("ld" + name)
            kv = name in "kjvwt"
            itstep, wrap = 4096, 0xffff
            if ilv and kv:
                assert ilv == 4096
                itstep, wrap, end = 65536, 0xfffff, end * 16
            rr = rot and kv
            if rr:
                endm = dict(k=KB + self.CNT["k"] * 1024, j=KB + 65536, v=VB + self.CNT["v"] * 1024, w=VB + 57344, t=W2 + 8192)[name]
            a.label(top)
            for k in range(4):
                a(f"buffer_load_dwordx4 v{vo[k % len(vo)]}, s[{srd}:{srd+3}], s{sOff} offen offset:{k*1024} nt lds")
                if step != 1024:
                    a(f"s_add_u32 s{sOff}, s{sOff}, {step-1024}")
                a(f"s_waitcnt vmcnt({N})")
            a(f"s_add_u32 s{sProg}, s{sProg}, 4")
            if not quiet:
                a("s_mov_b64 exec, 1")
                a(f"v_mov_b32 v{vP}, s{sProg}")
                a(f"ds_write_b32 v{vSM}, v{vP} offset:{F_PROG}")
                a("s_mov_b64 exec, -1")
            a(f"s_add_u32 s{sOff}, s{sOff}, {itstep}")
            if rr:
                a(f"s_and_b32 s{sOff}, s{sOff}, {wrap:#x}")
            a("s_add_u32 m0, m0, 4096")
            a(f"s_cmp_lg_u32 m0, {endm}" if rr else f"s_cmp_lg_u32 s{sOff}, {end}")
            a(f"s_cbranch_scc1 {top}")

        assert self.o["order"][0] == "q"
        loop("q", [vWQ], 36, 65536, 16 * 65536, N)
        early = self.o.get("early", 0)
        a("s_movk_i32 s33, 3584")
        a(f"v_mad_u32_u24 v{vGU}, v21, s33, v20")
        self.glu_ids(33, 34, 35)
        a("s_cselect_b32 s72, -1, 0")
        a(f"s_mul_i32 s33, s35, {64*3584}")
        a("s_lshl_b32 s70, s34, 7")
        a("s_add_u32 s33, s33, s70")
        a("s_and_b32 s33, s33, s72")
        for d, p in ((40, 16), (44, 18)):
            self.srd(d, p, "s33", 63 * 3584 + 128)
            a(f"s_and_b32 s{d+2}, s{d+2}, s72")

        def rest():
            a(f"v_lshl_add_u32 v{vW1}, v21, 10, v20")
            a("s_lshl_b32 s33, s34, 16")
            if self.o.get("dsh"):
                a(f"s_add_u32 s35, s35, {self.o['dsh']}")
                a("s_and_b32 s35, s35, 7")
            a("s_lshl_b32 s35, s35, 7")
            a("s_add_u32 s33, s33, s35")
            a("s_and_b32 s33, s33, s72")
            self.srd(60, 20, "s33", 63 * 1024 + 128)
            a("s_and_b32 s62, s62, s72")
            a(f"s_lshl_b32 s33, s{sB}, 3")
            a(f"s_add_u32 s33, s33, s{sG}")
            a("s_lshl_b32 s33, s33, 23")
            a(f"s_lshl_b32 s34, s{sS}, {12 if ilv else 16}")
            a("s_add_u32 s33, s33, s34")
            a(f"s_add_u32 s33, s33, {28672*256}")
            kvsize = 65536 if not ilv else (1048576 - 15 * ilv)
            self.srd(48, 6, "s33", kvsize)
            self.srd(52, 8, "s33", kvsize)
            a("v_and_b32 v19, 15, v0")
            a("v_xor_b32 v20, v18, v19")
            a("v_lshlrev_b32 v20, 4, v20")
            a(f"v_lshl_add_u32 v{vK}, v18, 8, v20")
            for k in range(1, 4):
                a(f"v_xor_b32 v{vK+k}, {k << 6:#x}, v{vK}")
            a("v_lshlrev_b32 v20, 1, v18")
            a("v_xor_b32 v20, v20, v19")
            a("v_lshlrev_b32 v20, 4, v20")
            a(f"v_lshl_add_u32 v{vV}, v18, 8, v20")
            a(f"v_xor_b32 v{vV+1}, 0x80, v{vV}")
            a(f"s_lshl_b32 s33, s{sG}, 2")
            a(f"s_lshr_b32 s34, s{sJ}, 3")
            a("s_add_u32 s33, s33, s34")
            a("s_lshl_b32 s33, s33, 17")
            if self.o.get("wsh"):
                a(f"s_add_u32 s71, s{sJ}, {self.o['wsh']}")
                a("s_and_b32 s71, s71, 7")
                a("s_lshl_b32 s71, s71, 7")
            a("s_add_u32 s33, s33, s71")
            self.srd(56, 12, "s33", 127 * 1024 + 128)
            if rot:
                r3 = rot if len(rot) == 3 else (2 * rot[0], rot[0], rot[1])
                a(f"s_mul_i32 s73, s{sS}, {r3[0]}")
                a(f"s_mul_i32 s33, s{sB}, {r3[1]}")
                a("s_add_u32 s73, s73, s33")
                a(f"s_mul_i32 s33, s{sG}, {r3[2]}")
                a("s_add_u32 s73, s73, s33")
                a(f"s_lshl_b32 s73, s73, {16 if ilv else 12}")
                a(f"s_and_b32 s73, s73, {0xfffff if ilv else 0xffff:#x}")
            a("s_barrier")

        if not early:
            rest()
        spec = dict(g=([vGU], 40, 28672, 0, 8 * 28672, W1), u=([vGU], 44, 28672, 0, 8 * 28672, W2),
                    k=([vK, vK + 1, vK + 2, vK + 3], 48, 1024, 0, self.CNT["k"] * 1024, KB), v=([vV, vV + 1], 52, 1024, 0, self.CNT["v"] * 1024, VB),
                    j=([vK, vK + 1, vK + 2, vK + 3], 48, 1024, 0, 65536, KB + self.CNT["k"] * 1024),
                    w=([vV, vV + 1], 52, 1024, 0, 57344, VB + self.CNT["v"] * 1024),
                    t=([vV, vV + 1], 52, 1024, 57344, 65536, W2), o=([vW1], 56, 8192, 0, 8 * 8192, W0),
                    p=([vW1], 56, 8192, 8 * 8192, 16 * 8192, W0 + 8192),
                    d=([vW1], 60, 8192, 0, 8 * 8192, W1))
        early_ph = self.o["order"][1:1 + early]
        nwin0 = self.o.get("win", {})
        state = dict(m0=W0 + 16384, prev="q", N=N)

        def phases(lst, nwin, st):
            waited = set()
            for p in lst:
                vo, srd, step, start, end, lds = spec[p]
                if not self.o.get("bare"):
                    if p in "op" and "q" not in waited:
                        self.wait_flag(vSM, F_CQ, 4, 22)
                        waited.add("q")
                    if p in "td" and "g" not in waited:
                        self.wait_flag(vSM, F_CG, 1, 22)
                        waited.add("g")
                if self.o.get("hold") and p == self.o["hold"][0] and not self.o.get("bare"):
                    issued = self.BASE[p]
                    a("s_mov_b64 exec, 1")
                    for n in range((st["N"] - 1) // 4 * 4, issued - self.TH["t"] - 1, -4):
                        a(f"v_mov_b32 v{vP}, {issued - n}")
                        a(f"s_waitcnt vmcnt({n})")
                        a(f"ds_write_b32 v{vSM}, v{vP} offset:{F_PROG}")
                    a("s_mov_b64 exec, -1")
                    self.wait_flag(vSM, F_OS, self.o["hold"][1], 22)
                    a(f"s_mov_b32 s{sProg}, {issued - st['N']}")
                    st["held"] = True
                if p in nwin and nwin[p] != st["N"]:
                    a(f"s_add_u32 s{sProg}, s{sProg}, {st['N'] - nwin[p]}")
                    st["N"] = nwin[p]
                if (p, st["prev"]) in (("t", "v"), ("t", "w"), ("w", "v"), ("j", "k"), ("p", "o")):
                    pass
                elif rot and p in "kv":
                    a(f"s_mov_b32 s{sOff}, s73")
                elif rot and p == "t":
                    a(f"s_add_u32 s{sOff}, s73, {57344 * (16 if ilv else 1)}")
                    a(f"s_and_b32 s{sOff}, s{sOff}, {0xfffff if ilv else 0xffff:#x}")
                else:
                    a(f"s_mov_b32 s{sOff}, {start * (16 if ilv and p == 't' else 1)}")
                if st["m0"] != lds:
                    a(f"s_mov_b32 m0, {lds}")
                loop(p, vo, srd, step, end, st["N"], st.get("held", False))
                st["m0"], st["prev"] = lds + self.CNT[p] * 1024, p

        assert all(p in "gu" for p in early_ph)
        phases(early_ph, nwin0, state)
        if early:
            rest()
        classes = list(self.o.get("classes", [])) + [(None, nwin0)]
        for cls, win in classes:
            nxt = self.uniq("cls")
            if cls == "heavy":
                a(f"s_cmp_lt_u32 s{sG}, 4")
                a(f"s_cbranch_scc0 {nxt}")
            elif cls == "noglu":
                a("s_cmp_eq_u32 s72, 0")
                a(f"s_cbranch_scc0 {nxt}")
            elif cls is not None:
                a(f"s_and_b32 s33, s{sJ}, 7")
                a(f"s_cmp_eq_u32 s33, {cls}")
                a(f"s_cbranch_scc0 {nxt}")
            st = dict(state)
            phases(self.o["order"][1 + early:], win, st)
            self.stamp(1)
            a("s_mov_b64 exec, 1")
            nmax = (st["N"] - 1) // 4 * 4
            if st.get("held"):
                nmax = min(nmax, 184 - self.TH["t"] - 4)
            for n in range(nmax, -1, -4):
                a(f"v_mov_b32 v{vP}, {184 - n}")
                a(f"s_waitcnt vmcnt({n})")
                a(f"ds_write_b32 v{vSM}, v{vP} offset:{F_PROG}")
            self.stamp(2)
            self.amp("stream")
            self.flush_stamps()
            a("s_endpgm")
            a.label(nxt)

    def gwave(self):
        a = self.a
        TH = self.TH
        a.c("================= G wave: layernorm, GLU branch, final reduction =================")
        self.init_stamps(self.o.get("gslots", [3, 15, 11, 12, 13, 14]))
        vSM, vT, vOne, vXF, vOO, vHI, vF = 2, 3, 60, 61, 62, 56, 57
        a("s_getreg_b32 s70, hwreg(HW_REG_XCC_ID, 0, 4)")
        a(f"v_mov_b32 v{vSM}, {SM:#x}")
        a(f"v_lshl_add_u32 v1, v0, 2, v{vSM}")
        a("v_mov_b32 v4, 0")
        a(f"ds_write_b32 v1, v4 offset:{FL}")
        a("s_add_u32 s70, s70, 1")
        a(f"v_mov_b32 v{vHI}, s70")
        a("v_lshlrev_b32 v12, 5, v0")
        a("v_bfe_u32 v13, v0, 3, 1")
        a("v_bfe_u32 v14, v0, 4, 1")
        a("v_lshl_add_u32 v13, v13, 1, v14")
        a(f"s_lshl_b32 s33, s{sG}, 7")
        a(f"s_lshr_b32 s34, s{sJ}, 3")
        a("s_lshl_b32 s34, s34, 5")
        a("s_add_u32 s33, s33, s34")
        a(f"s_and_b32 s34, s{sJ}, 3")
        a("s_lshl_b32 s34, s34, 3")
        a("s_add_u32 s33, s33, s34")
        a(f"s_bfe_u32 s34, s{sJ}, 0x10002")
        a("s_lshl_b32 s34, s34, 10")
        a("s_add_u32 s33, s33, s34")
        a(f"v_lshl_add_u32 v{vOO}, v13, 1, s33")
        a(f"v_mov_b32 v{vOne}, 1")
        a(f"s_movk_i32 s{sM10}, 0x3ff")
        a(f"s_mov_b32 s{sHI}, 0xffff0000")
        a(f"s_lshl_b32 s71, s{sG}, 5")
        a(f"s_add_u32 s72, s71, s{sJ}")
        a("v_and_b32 v57, 31, v0")
        a("s_waitcnt lgkmcnt(0)")
        self.srd(48, 24, None, 256)
        self.srd(36, 4, None, 2048)
        a("s_mov_b64 exec, 1")
        a(f"buffer_store_byte v{vHI}, off, s[48:51], s72")
        a("s_mov_b64 exec, -1")
        self.srd(40, 26, None, WS_USE)
        a("buffer_load_dwordx4 v[4:7], v12, s[36:39], 0 offen")
        a("buffer_load_dwordx4 v[8:11], v12, s[36:39], 0 offen offset:16")
        a(f"buffer_load_dword v{vT}, off, s[40:43], 0 sc1")
        a(f"buffer_load_ushort v{vXF}, v{vOO}, s[36:39], 0 offen")
        if self.o.get("ampskew") is not None:
            a("s_lshl_b32 s33, s2, 2")
            a("s_add_u32 s33, s33, 256")
            a("v_mov_b32 v13, s98")
            a("s_mov_b64 exec, 1")
            a("buffer_store_dword v13, off, s[40:43], s33 sc1")
            a("s_mov_b64 exec, -1")
        self.srd(44, 22, None, 2048)
        a("s_barrier")
        if self.o.get("bare"):
            a("s_endpgm")
        a("v_lshrrev_b32 v13, 5, v0")
        a(f"v_mul_u32_u24 v13, {XNS}, v13")
        a("v_bfe_u32 v14, v0, 1, 4")
        a("v_lshl_add_u32 v13, v14, 6, v13")
        a("v_and_b32 v14, 1, v0")
        a("v_lshl_add_u32 v13, v14, 3, v13")
        a(f"v_add_u32 v13, v{vSM}, v13")
        a("s_waitcnt vmcnt(0)")
        a("buffer_load_ubyte v58, v57, s[48:51], s71 offen sc1")
        X = 16
        for i in range(8):
            a(f"v_lshlrev_b32 v{X+2*i}, 16, v{4+i}")
            a(f"v_and_b32 v{X+2*i+1}, s{sHI}, v{4+i}")
        a(f"v_add_u32 v{vT}, 1, v{vT}")
        for i in range(4):
            a(f"v_add_f32 v{4+i}, v{X+i}, v{X+4+i}")
        for i in range(4):
            a(f"v_add_f32 v{4+i}, v{4+i}, v{X+8+i}")
        for i in range(4):
            a(f"v_add_f32 v{4+i}, v{4+i}, v{X+12+i}")
        a("v_add_f32 v4, v4, v5")
        a("v_add_f32 v6, v6, v7")
        a("v_add_f32 v4, v4, v6")
        self.row_reduce("v_add_f32", [4])
        self.swap_reduce("v_add_f32", 4, 5, 16)
        a("v_mul_f32 v4, 0x3b000000, v4")
        for i in range(16):
            a(f"v_sub_f32 v{32+i}, v{X+i}, v4")
        a("v_mul_f32 v5, v32, v32")
        a("v_mul_f32 v6, v33, v33")
        for i in range(2, 16, 2):
            a(f"v_fmac_f32 v5, v{32+i}, v{32+i}")
            a(f"v_fmac_f32 v6, v{33+i}, v{33+i}")
        a("v_add_f32 v5, v5, v6")
        self.row_reduce("v_add_f32", [5])
        self.swap_reduce("v_add_f32", 5, 6, 16)
        a("v_mul_f32 v5, 0x3b000000, v5")
        a("v_cvt_pk_bf16_f32 v4, v4, v5")
        a(f"v_and_b32 v5, s{sHI}, v4")
        a("v_lshlrev_b32 v4, 16, v4")
        a(f"v_add_f32 v5, {EPS:#x}, v5")
        a("v_cvt_pk_bf16_f32 v5, v5, v5")
        a(f"v_and_b32 v5, s{sHI}, v5")
        a("v_sqrt_f32 v5, v5")
        a("v_cvt_pk_bf16_f32 v5, v5, v5")
        a(f"v_and_b32 v5, s{sHI}, v5")
        a("v_rcp_f32 v5, v5")
        for i in range(16):
            a(f"v_sub_f32 v{X+i}, v{X+i}, v4")
        for i in range(8):
            a(f"v_cvt_pk_bf16_f32 v{32+i}, v{X+2*i}, v{X+2*i+1}")
        for i in range(8):
            a(f"v_lshlrev_b32 v{X+2*i}, 16, v{32+i}")
            a(f"v_and_b32 v{X+2*i+1}, s{sHI}, v{32+i}")
        for i in range(16):
            a(f"v_mul_f32 v{X+i}, v{X+i}, v5")
        for i in range(8):
            a(f"v_cvt_pk_bf16_f32 v{32+i}, v{X+2*i}, v{X+2*i+1}")
        for gq in range(4):
            a(f"ds_write_b64 v13, v[{32+2*gq}:{33+2*gq}] offset:{XN+16*gq}")
        a("s_mov_b64 exec, 1")
        a(f"ds_write_b32 v{vSM}, v{vT} offset:{F_TAG}")
        a(f"ds_write_b32 v{vSM}, v{vOne} offset:{F_XN}")
        a("s_mov_b64 exec, -1")
        self.stamp(3)
        a(f"v_mov_b32 v1, v{vT}")
        a(f"v_and_b32 v{vT}, s{sM10}, v{vT}")
        if self.o.get("nolocal"):
            a("s_waitcnt vmcnt(0)")
            a(f"s_mov_b32 s{sMODE}, 1")
        else:
            top, got = self.uniq("hello"), self.uniq("hellod")
            a("s_mov_b32 s73, 10")
            a.label(top)
            a("s_waitcnt vmcnt(0)")
            a("v_cmp_eq_u32 vcc, 0, v58")
            a(f"s_cbranch_vccz {got}")
            a(f"v_cmp_ne_u32 s[74:75], v58, v{vHI}")
            a("s_andn2_b64 s[74:75], s[74:75], vcc")
            a(f"s_cbranch_scc1 {got}")
            a("s_sub_u32 s73, s73, 1")
            a(f"s_cbranch_scc1 {got}")
            a("buffer_load_ubyte v58, v57, s[48:51], s71 offen sc1")
            a(f"s_branch {top}")
            a.label(got)
            a(f"v_cmp_ne_u32 vcc, v58, v{vHI}")
            a("s_nop 3")
            a("s_cmp_eq_u64 vcc, 0")
            a(f"s_cselect_b32 s{sMODE}, 2, 1")
        a("s_mov_b64 exec, 1")
        a(f"v_mov_b32 v4, s{sMODE}")
        a(f"ds_write_b32 v{vSM}, v4 offset:{F_MODE}")
        a("s_mov_b64 exec, -1")
        a(f"s_lshl_b32 s33, s{sG}, 2")
        a(f"s_lshr_b32 s34, s{sJ}, 3")
        a("s_add_u32 s33, s33, s34")
        a("s_lshl_b32 s33, s33, 13")
        a(f"s_and_b32 s34, s{sJ}, 7")
        a("s_lshl_b32 s34, s34, 4")
        a("s_add_u32 s33, s33, s34")
        a(f"s_add_u32 s76, s33, {FX}")
        a(f"v_lshlrev_b32 v{vF}, 7, v0")
        a(f"v_lshlrev_b32 v{vXF}, 16, v{vXF}")
        self.glu_ids(70, 71, 72)
        a(f"s_cbranch_scc1 {self.lab('hasglu')}")
        self.signal(vSM, F_CG, vOne)
        a(f"s_branch {self.lab('final')}")
        a.label(self.lab("hasglu"))
        a("v_lshrrev_b32 v4, 4, v0")
        a("v_and_b32 v5, 1, v0")
        a(f"v_mul_u32_u24 v6, {XNS}, v5")
        a("v_lshl_add_u32 v6, v4, 4, v6")
        a("s_lshl_b32 s33, s72, 7")
        a(f"s_add_u32 s33, s33, {SM+XN}")
        a("v_add_u32 v6, s33, v6")
        a("ds_read_b128 v[8:11], v6")
        a("ds_read_b128 v[12:15], v6 offset:64")
        a("v_lshlrev_b32 v63, 4, v4")
        a("v_lshl_add_u32 v63, v5, 9, v63")
        self.tr_addr(16, 7, False, 17, 18, 19)
        for ct in range(1, 4):
            a(f"v_xor_b32 v{16+ct}, {ct << 5:#x}, v16")
        a("s_lshl_b32 s33, s71, 13")
        a(f"s_add_u32 s74, s33, {GX}")
        a("s_lshl_b32 s34, s72, 10")
        a("s_add_u32 s73, s74, s34")
        a("s_add_u32 s75, s74, 4096")
        self.wait_flag(vSM, F_PROG, max(TH["g"], TH["u"]), 20)
        AB, ACC = 64, 24
        for mat in range(2):
            for ct in range(4):
                for ks in range(2):
                    for t in range(2):
                        r = AB + (ct * 2 + ks) * 4 + t * 2
                        a(f"ds_read_b64_tr_b16 v[{r}:{r+1}], v{16+ct} offset:{W1 + mat*8192 + ks*4096 + t*2048}")
            a("s_waitcnt lgkmcnt(0)")
            if mat == 1:
                self.signal(vSM, F_CG, vOne)
            for ks in range(2):
                for ct in range(4):
                    d = ACC + (mat * 4 + ct) * 4
                    r = AB + ct * 8 + 4 * ks
                    a(f"{MFMA} v[{d}:{d+3}], v[{r}:{r+3}], v[{8+4*ks}:{11+4*ks}], {'0' if ks == 0 else f'v[{d}:{d+3}]'}")
            if mat == 0:
                a("s_nop 3")
        for r in range(ACC, ACC + 32):
            self.tag(r, vT, sM10)
        if self.o.get("bal"):
            a(f"s_cmp_lt_u32 s{sJ}, 24")
            a(f"s_cselect_b32 s{sMODE}, s{sMODE}, 1")
        self.publish("g", [f"buffer_store_dwordx4 v[{ACC+4*tile}:{ACC+4*tile+3}], v63, s[40:43], s73 offen offset:{(tile >> 2)*256 + (tile & 3)*64} sc1" for tile in range(8)], M_J01)
        a("v_lshlrev_b32 v6, 4, v0")
        gl = [f"buffer_load_dwordx4 v[{64+4*t}:{67+4*t}], v6, s[40:43], s{74 + (t >> 2)} offen offset:{1024*(t & 3)} sc1" for t in range(8)]
        if "g" in self.o["pref"]:
            for t in gl:
                a(t + self.o.get("gprefl", " nt"))
            if self.o.get("ping"):
                a("s_waitcnt vmcnt(0)")
                for t in gl:
                    a(t)
        a("v_lshrrev_b32 v7, 5, v0")
        a(f"v_mul_u32_u24 v7, {HLS}, v7")
        a("v_and_b32 v8, 3, v0")
        a("v_lshl_add_u32 v7, v8, 4, v7")
        a("v_bfe_u32 v8, v0, 2, 1")
        a("v_lshl_add_u32 v7, v8, 3, v7")
        a("v_bfe_u32 v8, v0, 3, 1")
        a("v_lshl_add_u32 v7, v8, 6, v7")
        a(f"v_add_u32 v7, v{vSM}, v7")
        a(f"v_mul_u32_u24 v59, {HLS}, v5")
        a("v_lshl_add_u32 v59, v4, 4, v59")
        a(f"v_add_u32 v59, v{vSM}, v59")
        if self.o.get("gdelay"):
            self.wait_flag(vSM, F_PROG, self.o["gdelay"], 10)
        self.poll(gl, list(range(64, 96)), vT, sM10, list(range(24, 40)), "g")
        if self.o.get("pin2") and "g" in self.o["pin2"]:
            for t in gl:
                a(re.sub(r"v\[\d+:\d+\]", "v[96:99]", t, count=1))
        for h in (16, 8, 4):
            for e in range(h):
                a(f"v_add_f32 v{64+e}, v{64+e}, v{64+h+e}")
        a("v_cvt_pk_bf16_f32 v64, v64, v65")
        a("v_cvt_pk_bf16_f32 v66, v66, v67")
        a("v_mov_b32 v68, v64")
        a("v_mov_b32 v70, v66")
        a("v_permlane16_swap_b32 v64, v68")
        a("v_permlane16_swap_b32 v66, v70")
        for base in (64, 68):
            a(f"v_and_b32 v{base+3}, s{sHI}, v{base+2}")
            a(f"v_lshlrev_b32 v{base+2}, 16, v{base+2}")
            a(f"v_and_b32 v{base+1}, s{sHI}, v{base}")
            a(f"v_lshlrev_b32 v{base}, 16, v{base}")
        for e in range(4):
            a(f"v_mul_f32 v{64+e}, {LOG2E ^ 0x80000000:#x}, v{64+e}")
        for e in range(4):
            a(f"v_exp_f32 v{64+e}, v{64+e}")
        for e in range(4):
            a(f"v_add_f32 v{64+e}, 1.0, v{64+e}")
        for e in range(4):
            a(f"v_rcp_f32 v{64+e}, v{64+e}")
        a("v_cvt_pk_bf16_f32 v64, v64, v65")
        a("v_cvt_pk_bf16_f32 v66, v66, v67")
        a(f"v_and_b32 v67, s{sHI}, v66")
        a("v_lshlrev_b32 v66, 16, v66")
        a(f"v_and_b32 v65, s{sHI}, v64")
        a("v_lshlrev_b32 v64, 16, v64")
        for e in range(4):
            a(f"v_mul_f32 v{64+e}, v{64+e}, v{68+e}")
        a("v_cvt_pk_bf16_f32 v64, v64, v65")
        a("v_cvt_pk_bf16_f32 v65, v66, v67")
        self.exec_((0x0000FFFF, 0x0000FFFF))
        a(f"ds_write_b64 v7, v[64:65] offset:{HL}")
        self.exec_(-1)
        a(f"ds_read_b128 v[8:11], v59 offset:{HL}")
        a(f"ds_read_b128 v[12:15], v59 offset:{HL+64}")
        a("v_lshlrev_b32 v63, 4, v4")
        a("v_lshl_add_u32 v63, v5, 6, v63")
        a("s_lshl_b32 s33, s71, 7")
        if self.o.get("dsh"):
            a(f"s_add_u32 s72, s72, {self.o['dsh']}")
            a("s_and_b32 s72, s72, 7")
        a("s_lshl_b32 s34, s72, 15")
        a("s_add_u32 s73, s33, s34")
        a(f"s_add_u32 s72, s73, {FX + 32*128}")
        for ct in range(1, 4):
            a(f"s_add_u32 s{72+ct}, s{71+ct}, {FXS}")
        self.stamp(15)
        self.wait_flag(vSM, F_PROG, TH["d"], 20)
        for ct in range(4):
            for ks in range(2):
                for t in range(2):
                    r = AB + (ct * 2 + ks) * 4 + t * 2
                    a(f"ds_read_b64_tr_b16 v[{r}:{r+1}], v{16+ct} offset:{W1 + ks*4096 + t*2048}")
        for ks in range(2):
            for ct in range(4):
                if ks == 0:
                    a(f"s_waitcnt lgkmcnt({12-4*ct})")
                d = ACC + ct * 4
                r = AB + (ct * 2 + ks) * 4
                a(f"{MFMA} v[{d}:{d+3}], v[{r}:{r+3}], v[{8+4*ks}:{11+4*ks}], {'0' if ks == 0 else f'v[{d}:{d+3}]'}")
        for r in range(ACC, ACC + 16):
            self.tag(r, vT, sM10)
        self.publish("y", [f"buffer_store_dwordx4 v[{ACC+4*ct}:{ACC+4*ct+3}], v63, s[40:43], s{72 + ct} offen sc1" for ct in range(4)], M_J01, local=False)
        self.stamp(11)
        a.label(self.lab("final"))
        for e in range(4):
            a(f"v_mov_b32 v{8+e}, 0")
        a("s_barrier")
        a("s_setprio 2")
        ld = f"buffer_load_dwordx4 v[8:11], v{vF}, s[40:43], s76 offen sc1"
        if self.o.get("ysplit", 1):
            a("s_waitcnt vmcnt(0)")
            self.exec_((0, 0x0FFFFFFF))
            self.poll([ld], [8, 9, 10, 11], vT, sM10, [12, 13, 16], "y", (0, 0x0FFFFFFF))
            self.exec_(-1)
            self.half_fold(8, 14)
            a("v_cvt_pk_bf16_f32 v14, v14, v14")
            a(f"v_and_b32 v14, s{sHI}, v14")
            a("v_mov_b32 v15, v14")
            a("v_permlane32_swap_b32 v15, v14")
            a(f"v_mul_f32 v9, {LOG2E ^ 0x80000000:#x}, v14")
            a("v_exp_f32 v9, v9")
            a("v_add_f32 v9, 1.0, v9")
            a("v_rcp_f32 v9, v9")
            a("v_mul_f32 v14, v14, v9")
            a("v_cvt_pk_bf16_f32 v14, v14, v14")
            a(f"v_and_b32 v14, s{sHI}, v14")
            self.exec_((0xFFFFFFFF, 0))
            self.stamp(12)
            a("s_barrier")
            self.poll([ld], [8, 9, 10, 11], vT, sM10, [12, 13, 16], "s", (0xFFFFFFFF, 0))
            self.stamp(13)
            self.half_fold(8, 12)
            a("v_cvt_pk_bf16_f32 v12, v12, v12")
            a(f"v_and_b32 v12, s{sHI}, v12")
        else:
            self.exec_((0xFFFFFFFF, 0x0FFFFFFF))
            self.stamp(12)
            a("s_barrier")
            if self.o.get("fsleep"):
                a(f"s_sleep {self.o['fsleep']}")
            if self.o.get("sfl"):
                ld = ld.replace(" sc1", " " + self.o["sfl"])
            self.poll([ld], [8, 9, 10, 11], vT, sM10, [12, 13], "s")
            self.stamp(13)
            self.exec_(-1)
            self.half_fold(8, 12)
            self.rnd(14, 12)
            self.rnd(12)
            a("s_mov_b32 s34, 0x01010101")
            a("v_permlane32_swap_b32 v12, v14")
            a(f"v_mul_f32 v9, {LOG2E ^ 0x80000000:#x}, v14")
            a("v_exp_f32 v9, v9")
            a("s_mov_b32 exec_lo, s34")
            a("v_add_f32 v9, 1.0, v9")
            a("v_rcp_f32 v9, v9")
            a("s_mov_b32 exec_hi, 0")
            a("v_mul_f32 v14, v14, v9")
            self.rnd(14)
        a("v_mul_f32 v12, v12, v14")
        self.rnd(12)
        a(f"v_add_f32 v12, v12, v{vXF}")
        a("v_cvt_pk_bf16_f32 v12, v12, v12")
        if self.o.get("ysplit", 1):
            self.exec_((0x01010101, 0))
        a(f"buffer_store_short v12, v{vOO}, s[44:47], 0 offen{self.o.get('outfl', '')}")
        a("s_cmp_lg_u32 s2, 0")
        a(f"s_cbranch_scc1 {self.lab('noepoch')}")
        a("s_mov_b64 exec, 1")
        a(f"buffer_store_dword v1, off, s[40:43], 0{self.o.get('epfl', ' sc1')}")
        a.label(self.lab("noepoch"))
        self.stamp(14)
        self.amp("end")
        self.flush_stamps()
        a("s_endpgm")
        self.emit_far()

    def cwave(self):
        a = self.a
        TH, BASE = self.TH, self.BASE
        a.c("================= compute waves =================")
        cs = self.o.get("cslots")
        self.init_stamps(cs[0] if cs else [4, 5, 6, 7, 8, 9, 10])
        who = lambda slot: (6 if slot in cs[1] else 0) if cs else (6 if slot in (8, 9) else 0)
        sC = 70
        vSM, vT, vT8, vOne, vQ, vH = 2, 3, 4, 5, 6, 7
        a(f"s_sub_u32 s{sC}, s{sW}, 2")
        a(f"v_mov_b32 v{vSM}, {SM:#x}")
        a(f"v_mov_b32 v{vOne}, 1")
        a(f"s_movk_i32 s{sM10}, 0x3ff")
        a(f"s_movk_i32 s{sM8}, 0xff")
        a(f"s_mov_b32 s{sHI}, 0xffff0000")
        if not self.o.get("noprefetch") and not self.o.get("lpf"):
            a(f"s_cmp_lg_u32 s{sC}, 7")
            a(f"s_cbranch_scc1 {self.lab('nopf')}")
            a("s_getpc_b64 s[34:35]")
            a.label(self.lab("pcref"))
            a(f"s_sub_u32 s34, s34, {self.lab('pcref')}-{self.name}")
            a("s_subb_u32 s35, s35, 0")
            a("v_lshlrev_b32 v8, 7, v0")
            a(f"v_min_u32 v9, {self.lab('codeend')}-{self.name}-4, v8")
            a("global_load_dword v9, v9, s[34:35]")
            a("v_add_u32 v8, 0x2000, v8")
            a(f"v_min_u32 v8, {self.lab('codeend')}-{self.name}-4, v8")
            a("global_load_dword v10, v8, s[34:35]")
            a.label(self.lab("nopf"))
        a(f"v_lshrrev_b32 v{vQ}, 4, v0")
        a(f"v_lshlrev_b32 v{vQ}, 4, v{vQ}")
        a(f"v_bfe_u32 v{vH}, v0, 2, 2")
        vKA, vQB, vMW, vMR, vPW, vPR, vVA, vVT, vPub = 12, 16, 17, 18, 19, 20, 21, 22, 23
        a("v_and_b32 v8, 15, v0")
        a("v_lshrrev_b32 v11, 4, v0")
        a("v_xor_b32 v11, v8, v11")
        a("v_lshlrev_b32 v11, 4, v11")
        a("v_lshl_add_u32 v11, v8, 8, v11")
        a(f"s_lshl_b32 s33, s{sC}, 13")
        a(f"s_add_u32 s33, s33, {KB}")
        a(f"v_add_u32 v{vKA}, s33, v11")
        for ks in range(1, 4):
            a(f"v_xor_b32 v{vKA+ks}, {ks << 6:#x}, v{vKA}")
        a(f"v_mul_u32_u24 v{vQB}, {QLS}, v{vH}")
        a(f"v_add3_u32 v{vQB}, v{vQB}, v{vQ}, v{vSM}")
        a(f"v_lshl_add_u32 v{vMR}, v{vH}, 5, v{vSM}")
        a(f"s_lshl_b32 s33, s{sC}, 2")
        a(f"v_add_u32 v{vMW}, s33, v{vMR}")
        a(f"v_mul_u32_u24 v{vPR}, {PLS}, v{vH}")
        a(f"v_add3_u32 v{vPR}, v{vPR}, v{vQ}, v{vSM}")
        a(f"s_lshl_b32 s33, s{sC}, 6")
        a(f"v_add_u32 v{vPW}, s33, v{vPR}")
        self.tr_addr(24, 8, True, 25, 26, 27)
        a(f"s_lshl_b32 s33, s{sC}, 6")
        a("s_and_b32 s33, s33, 0xc0")
        a("v_xor_b32 v24, s33, v24")
        a(f"v_add_u32 v{vVA}, {VB:#x}, v24")
        a(f"v_add_u32 v{vVT}, {W2:#x}, v24")
        a(f"v_lshl_add_u32 v{vPub}, v{vH}, 14, v{vQ}")
        a("v_and_b32 v25, 1, v0")
        a(f"v_lshl_add_u32 v{vPub}, v25, 6, v{vPub}")
        a(f"s_lshl_b32 s33, s{sG}, 16")
        a(f"s_lshl_b32 s34, s{sB}, 13")
        a("s_add_u32 s33, s33, s34")
        a(f"s_lshl_b32 s34, s{sS}, 9")
        a("s_add_u32 s33, s33, s34")
        a(f"s_add_u32 s76, s33, {OX}")
        a(f"s_lshl_b32 s34, s{sC}, 7")
        a("s_add_u32 s71, s76, s34")
        a(f"s_lshl_b32 s33, s{sG}, 11")
        a(f"s_lshl_b32 s34, s{sB}, 8")
        a("s_add_u32 s33, s33, s34")
        a(f"s_lshl_b32 s34, s{sS}, 4")
        a("s_add_u32 s33, s33, s34")
        a(f"s_add_u32 s77, s33, {MLX}")
        if self.o.get("touch"):
            a(f"s_cmp_lg_u32 s{sC}, 6")
            a(f"s_cbranch_scc1 {self.lab('notouch')}")
            a("s_waitcnt lgkmcnt(0)")
            a(f"s_lshl_b32 s33, s{sB}, 3")
            a(f"s_add_u32 s33, s33, s{sG}")
            a("s_lshl_b32 s33, s33, 23")
            a(f"s_add_u32 s33, s33, {28672*256}")
            a(f"s_lshl_b32 s34, s{sG}, 19")
            a("v_mov_b32 v30, 0")
            for p_, o_ in ((16, None), (18, None), (6, "s33"), (8, "s33"), (20, None), (12, "s34")):
                if o_:
                    a(f"s_add_u32 s44, s{p_}, {o_}")
                    a(f"s_addc_u32 s45, s{p_+1}, 0")
                    a("s_mov_b64 exec, 1")
                    a(f"global_load_dword v31, v30, s[44:45]{self.o['touch']}")
                else:
                    a("s_mov_b64 exec, 1")
                    a(f"global_load_dword v31, v30, s[{p_}:{p_+1}]{self.o['touch']}")
            a("s_mov_b64 exec, -1")
            a.label(self.lab("notouch"))
        self.tr_addr(11, 7, False, 25, 26, 27)
        a(f"s_lshl_b32 s33, s{sC}, 5")
        a("v_xor_b32 v11, s33, v11")
        a("s_waitcnt lgkmcnt(0)")
        self.srd(40, 26, None, WS_USE)
        a("s_barrier")
        if self.o.get("bare"):
            if self.o.get("spin"):
                a(f"s_cmp_ge_u32 s{sC}, {self.o['spin']}")
                a(f"s_cbranch_scc1 {self.lab('end')}")
                self.wait_flag(vSM, F_PROG, 184, 8)
            if self.o.get("mon"):
                a(f"s_cmp_lg_u32 s{sC}, 0")
                a(f"s_cbranch_scc1 {self.lab('end')}")
                self.init_stamps([3, 4, 5, 6, 7, 8, 9, 10][:len(self.o["mon"])])
                for i, th in enumerate(self.o["mon"]):
                    self.wait_flag(vSM, F_PROG, th, 8)
                    self.stamp(3 + i)
                self.flush_stamps()
            a("s_endpgm")
        self.wait_flag(vSM, F_XN, 1, 8)
        a(f"ds_read_b32 v{vT}, v{vSM} offset:{F_TAG}")
        a(f"s_cmp_ge_u32 s{sC}, 4")
        a(f"s_cbranch_scc1 {self.lab('noq')}")
        a("v_and_b32 v26, 1, v0")
        a(f"v_mul_u32_u24 v25, {XNS}, v26")
        a(f"v_add_u32 v25, v25, v{vQ}")
        a(f"s_lshr_b32 s34, s{sJ}, 3")
        a("s_lshl_b32 s33, s34, 8")
        a(f"s_add_u32 s33, s33, {SM+XN}")
        a("v_add_u32 v25, s33, v25")
        for ks in range(4):
            a(f"ds_read_b128 v[{32+4*ks}:{35+4*ks}], v25 offset:{64*ks}")
        a(f"v_lshl_add_u32 v26, v26, 13, v{vQ}")
        a(f"s_lshl_b32 s33, s{sG}, 14")
        a("s_lshl_b32 s34, s34, 11")
        a("s_add_u32 s72, s33, s34")
        a(f"s_and_b32 s34, s{sJ}, 7")
        a("s_lshl_b32 s34, s34, 8")
        a("s_add_u32 s72, s72, s34")
        a(f"s_lshl_b32 s34, s{sC}, 6")
        a("s_add_u32 s72, s72, s34")
        a(f"s_add_u32 s72, s72, {QX}")
        a(f"s_lshl_b32 s34, s{sB}, 13")
        a("s_add_u32 s33, s33, s34")
        a(f"s_lshl_b32 s34, s{sC}, 9")
        a("s_add_u32 s33, s33, s34")
        a(f"s_add_u32 s73, s33, {QX}")
        a("s_add_u32 s74, s73, 4096")
        a("v_lshrrev_b32 v27, 5, v0")
        a("v_and_b32 v28, 31, v0")
        a("v_lshlrev_b32 v27, 11, v27")
        a("v_lshl_add_u32 v27, v28, 4, v27")
        a(f"s_mul_i32 s33, s{sC}, {QLS}")
        a(f"s_add_u32 s33, s33, {SM+QL}")
        a("v_lshl_add_u32 v28, v28, 3, s33")
        self.wait_flag(vSM, F_PROG, TH["q"], 8)
        for ks in range(4):
            for t in range(2):
                r = 48 + ks * 4 + t * 2
                a(f"ds_read_b64_tr_b16 v[{r}:{r+1}], v11 offset:{W0 + ks*4096 + t*2048}")
        a(f"v_and_b32 v{vT8}, s{sM8}, v{vT}")
        for ks in range(4):
            a(f"s_waitcnt lgkmcnt({6-2*ks})")
            r = 48 + ks * 4
            a(f"{MFMA} v[64:67], v[{r}:{r+3}], v[{32+4*ks}:{35+4*ks}], {'0' if ks == 0 else 'v[64:67]'}")
        self.signal(vSM, F_CQ, vOne)
        for e in range(4):
            a(f"v_add_u32 v{64+e}, 0x80, v{64+e}")
        for e in range(4):
            self.tag(64 + e, vT8, sM8)
        self.wait_flag(vSM, F_MODE, 1, 8)
        a(f"v_readfirstlane_b32 s{sMODE}, v8")
        self.publish("q", ["buffer_store_dwordx4 v[64:67], v26, s[40:43], s72 offen sc1"], M_J01)
        self.stamp(4)
        ql = ["buffer_load_dwordx4 v[32:35], v27, s[40:43], s73 offen sc1", "buffer_load_dwordx4 v[36:39], v27, s[40:43], s74 offen sc1"]
        if "q" in self.o["pref"]:
            for t in ql:
                a(t + self.o.get("qprefl", " nt"))
            if self.o.get("pinq"):
                a("s_waitcnt vmcnt(0)")
                for t in ql:
                    a(t)
        if self.o.get("qdelay"):
            self.wait_flag(vSM, F_PROG, self.o["qdelay"], 8)
        self.poll(ql, list(range(32, 40)), vT8, sM8, [40, 41, 42, 43, 44], "q")
        if self.o.get("pin2") and "q" in self.o["pin2"]:
            for t in ql:
                a(re.sub(r"v\[\d+:\d+\]", "v[92:95]", t, count=1))
        for e in range(8):
            a(f"v_xor_b32 v{32+e}, v{vT8}, v{32+e}")
        for e in range(4):
            a(f"v_add_f32 v{32+e}, v{32+e}, v{36+e}")
        a("v_permlane32_swap_b32 v32, v33")
        a("v_permlane32_swap_b32 v34, v35")
        a("v_add_f32 v32, v32, v33")
        a("v_add_f32 v34, v34, v35")
        a("v_mov_b32 v33, v32")
        a("v_mov_b32 v35, v34")
        a("v_permlane32_swap_b32 v32, v33")
        a("v_permlane32_swap_b32 v34, v35")
        a("v_cvt_pk_bf16_f32 v32, v32, v33")
        a("v_cvt_pk_bf16_f32 v33, v34, v35")
        self.exec_((0xFFFFFFFF, 0))
        a("ds_write_b64 v28, v[32:33]")
        self.signal(vSM, F_QR, vOne)
        self.stamp(5)
        a(f"s_branch {self.lab('scores')}")
        a.label(self.lab("noq"))
        self.wait_flag(vSM, F_MODE, 1, 8)
        a(f"v_readfirstlane_b32 s{sMODE}, v8")
        a.label(self.lab("scores"))
        a("s_waitcnt lgkmcnt(0)" if self.o.get("lpf") else "s_waitcnt vmcnt(0) lgkmcnt(0)")
        a(f"v_and_b32 v{vT}, s{sM10}, v{vT}")
        a(f"s_lshl_b32 s34, s{sC}, 3")
        a(f"s_add_u32 s34, s34, {BASE['k'] + 8}")
        self.wait_flag(vSM, F_PROG, "s34", 8)
        KA, S = 48, 80
        for tt in range(2):
            for ks in range(4):
                r = KA + (tt * 4 + ks) * 4
                a(f"ds_read_b128 v[{r}:{r+3}], v{vKA+ks} offset:{4096*tt}")
        self.wait_flag(vSM, F_QR, 4, 8)
        for ks in range(4):
            a(f"ds_read_b128 v[{32+4*ks}:{35+4*ks}], v{vQB} offset:{QL + 64*ks}")
        for ks in range(4):
            a(f"s_waitcnt lgkmcnt({3-ks})")
            for tt in range(2):
                r = KA + (tt * 4 + ks) * 4
                d = S + 4 * tt
                a(f"{MFMA} v[{d}:{d+3}], v[{r}:{r+3}], v[{32+4*ks}:{35+4*ks}], {'0' if ks == 0 else f'v[{d}:{d+3}]'}")
        for i in range(8):
            self.rnd(S + i)
        for i in range(8):
            a(f"v_mul_f32 v{S+i}, {SCALE:#x}, v{S+i}")
        for i in range(8):
            self.rnd(S + i)
        a(f"v_max3_f32 v32, v{S}, v{S+1}, v{S+2}")
        a(f"v_max3_f32 v33, v{S+3}, v{S+4}, v{S+5}")
        a(f"v_max3_f32 v32, v32, v{S+6}, v{S+7}")
        a("v_max_f32 v32, v32, v33")
        self.swap_reduce("v_max_f32", 32, 33, 16)
        self.swap_reduce("v_max_f32", 32, 33, 32)
        self.exec_(0x1111)
        a(f"ds_write_b32 v{vMW}, v32 offset:{MX}")
        self.signal(vSM, F_MAX, vOne)
        a(f"s_mov_b32 s34, {LOG2E:#x}")
        self.wait_flag(vSM, F_MAX, 8, 8)
        a(f"ds_read_b128 v[32:35], v{vMR} offset:{MX}")
        a(f"ds_read_b128 v[36:39], v{vMR} offset:{MX+16}")
        a("s_waitcnt lgkmcnt(0)")
        a("v_max3_f32 v32, v32, v33, v34")
        a("v_max3_f32 v35, v35, v36, v37")
        a("v_max3_f32 v32, v32, v38, v39")
        vM = 8
        a(f"v_max_f32 v{vM}, v32, v35")
        for i in range(8):
            a(f"v_sub_f32 v{S+i}, v{S+i}, v{vM}")
        for i in range(8):
            a(f"v_mul_f32 v{S+i}, s34, v{S+i}")
        for i in range(8):
            a(f"v_exp_f32 v{S+i}, v{S+i}")
        for i in range(4):
            a(f"v_cvt_pk_bf16_f32 v{32+i}, v{S+2*i}, v{S+2*i+1}")
        self.exec_(M_J4)
        a(f"ds_write_b128 v{vPW}, v[32:35] offset:{PL}")
        self.exec_(-1)
        for i in range(4):
            a(f"v_add_f32 v{S+i}, v{S+i}, v{S+4+i}")
        a(f"v_add_f32 v{S}, v{S}, v{S+1}")
        a(f"v_add_f32 v{S+2}, v{S+2}, v{S+3}")
        a(f"v_add_f32 v{S}, v{S}, v{S+2}")
        self.swap_reduce("v_add_f32", S, S + 1, 16)
        self.swap_reduce("v_add_f32", S, S + 1, 32)
        self.exec_(0x1111)
        a(f"ds_write_b32 v{vMW}, v{S} offset:{LS}")
        self.signal(vSM, F_P, vOne)
        a(f"s_cmp_ge_u32 s{sC}, 4")
        a(f"s_cbranch_scc1 {self.lab('comb')}")
        a("s_setprio 2")
        self.wait_flag(vSM, F_P, 8, 9)
        PB = 32
        for ks in range(8):
            a(f"ds_read_b128 v[{PB+4*ks}:{PB+4*ks+3}], v{vPR} offset:{PL + 64*ks}")
        self.stamp(6)
        a(f"s_cmp_lg_u32 s{sC}, 0")
        a(f"s_cbranch_scc1 {self.lab('noml')}")
        a(f"ds_read_b128 v[64:67], v{vMR} offset:{LS}")
        a(f"ds_read_b128 v[68:71], v{vMR} offset:{LS+16}")
        a(f"v_lshlrev_b32 v72, 9, v{vH}")
        a("s_waitcnt lgkmcnt(0)")
        for e in range(4):
            a(f"v_add_f32 v{64+e}, v{64+e}, v{68+e}")
        a("v_add_f32 v64, v64, v65")
        a("v_add_f32 v66, v66, v67")
        a("v_add_f32 v65, v64, v66")
        self.tag(64, vT, sM10, vM)
        self.tag(65, vT, sM10)
        a("v_mov_b32 v66, v64")
        a("v_mov_b32 v67, v65")
        self.publish("m", ["buffer_store_dwordx4 v[64:67], v72, s[40:43], s77 offen sc1"], 0x1111)
        a.label(self.lab("noml"))
        O = 96
        a(f"v_xor_b32 v24, 32, v{vVA}")
        a(f"v_xor_b32 v25, 32, v{vVT}")
        a("v_and_b32 v28, 1, v0")
        a(f"v_mul_u32_u24 v29, {OLS}, v28")
        a(f"v_add3_u32 v29, v29, v{vQ}, v{vSM}")
        a(f"v_lshl_add_u32 v28, v28, 6, v{vQ}")
        if self.o.get("wsh"):
            a(f"s_add_u32 s33, s{sJ}, {self.o['wsh']}")
            a("s_and_b32 s33, s33, 7")
        else:
            a(f"s_and_b32 s33, s{sJ}, 7")
        a("s_lshl_b32 s33, s33, 2")
        a(f"s_add_u32 s33, s33, s{sC}")
        a("s_lshl_b32 s33, s33, 13")
        a(f"s_lshl_b32 s34, s{sG}, 2")
        a(f"s_lshr_b32 s72, s{sJ}, 3")
        a("s_add_u32 s34, s34, s72")
        a("s_lshl_b32 s34, s34, 7")
        a("s_add_u32 s33, s33, s34")
        a(f"s_add_u32 s72, s33, {FX}")

        def pv(grp, thr):
            self.wait_flag(vSM, F_PROG, thr, 9)
            for n, ks in enumerate(grp):
                for u in range(2):
                    for t in range(2):
                        r = 64 + n * 8 + u * 4 + t * 2
                        if ks < 7:
                            a(f"ds_read_b64_tr_b16 v[{r}:{r+1}], v{24 if u else vVA} offset:{ks*8192 + t*4096}")
                        else:
                            a(f"ds_read_b64_tr_b16 v[{r}:{r+1}], v{25 if u else vVT} offset:{t*4096}")
            for n, ks in enumerate(grp):
                for u in range(2):
                    a(f"s_waitcnt lgkmcnt({4*(len(grp)-1-n) + 2*(1-u)})")
                    r = 64 + n * 8 + u * 4
                    d = O + 4 * u
                    a(f"{MFMA} v[{d}:{d+3}], v[{r}:{r+3}], v[{PB+4*ks}:{PB+4*ks+3}], {'0' if ks == 0 else f'v[{d}:{d+3}]'}")

        bv = BASE["v"]

        def ppre(k):
            if self.o.get("ppre") == k:
                self.exec_((0x33333333, 0x33333333))
                a(f"buffer_load_dwordx4 v[88:91], v{vPub}, s[40:43], s71 offen sc1 nt")
                self.exec_(-1)

        ppre(0)
        pv((0, 1, 2), bv + 24)
        ppre(3)
        pv((3,), bv + 32)
        ppre(4)
        pv((4,), bv + 40)
        ppre(5)
        pv((5,), bv + 48)
        ppre(6)
        pv((6,), bv + 56)
        ppre(7)
        a("s_mov_b32 s34, 0x22222222")
        a("s_mov_b32 s35, 0x22222222")
        pv((7,), TH["t"])
        self.exec_((0x33333333, 0x33333333))
        a(f"s_cmp_eq_u32 s{sMODE}, 2")
        for e in range(4):
            a(f"v_cndmask_b32 v{O+e}, v{O+e}, v{O+4+e}, s[34:35]")
        for e in range(4):
            self.tag(O + e, vT, sM10)
        self.publish("o", [f"buffer_store_dwordx4 v[{O}:{O+3}], v{vPub}, s[40:43], s71 offen sc1"], None, precmp=True)
        if self.o.get("hold"):
            self.signal(vSM, F_OS, vOne)
        self.stamp(7)
        self.fine("opub", 94)
        self.fine_flush("opub", 94)
        if self.o.get("spre"):
            a(f"v_add_u32 v84, -1, v{vT}")
            for e in range(1, 4):
                a(f"v_mov_b32 v{84+e}, v84")
            if self.o["spre"] > 1:
                self.wait_flag(vSM, F_PROG, self.o["spre"], 9)
            self.exec_(M_J01)
            a("buffer_store_dwordx4 v[84:87], v28, s[40:43], s72 offen sc1")
            self.exec_(-1)
        self.wait_flag(vSM, F_PROG, max(TH["o"], TH["p"]), 9)
        for ks in range(4):
            for t in range(2):
                r = 48 + ks * 4 + t * 2
                a(f"ds_read_b64_tr_b16 v[{r}:{r+1}], v11 offset:{W0 + ks*4096 + t*2048}")
        a("s_waitcnt lgkmcnt(0)")
        a("s_barrier")
        for ks in range(4):
            a(f"ds_read_b128 v[{32+4*ks}:{35+4*ks}], v29 offset:{OL + 64*ks}")
        for ks in range(4):
            a(f"s_waitcnt lgkmcnt({3-ks})")
            r = 48 + ks * 4
            a(f"{MFMA} v[80:83], v[{r}:{r+3}], v[{32+4*ks}:{35+4*ks}], {'0' if ks == 0 else 'v[80:83]'}")
        self.exec_(M_J01)
        for e in range(4):
            self.tag(80 + e, vT, sM10)
        self.publish("s", ["buffer_store_dwordx4 v[80:83], v28, s[40:43], s72 offen sc1"], None, local=False, restore=None)
        self.stamp(10)
        if self.o.get("ack", 1):
            a("s_waitcnt vmcnt(0)")
        a("s_barrier")
        a.label(self.lab("cend"))
        self.flush_stamps(who)
        a("s_endpgm")
        a.label(self.lab("comb"))
        a("s_setprio 1")
        if "o" in self.o["pref"]:
            a(f"s_cmp_ge_u32 s{sC}, 6")
            a(f"s_cbranch_scc1 {self.lab('pre6')}")
            a("v_lshrrev_b32 v27, 5, v0")
            a("v_and_b32 v28, 31, v0")
            a("v_lshlrev_b32 v27, 14, v27")
            a("v_lshl_add_u32 v27, v28, 4, v27")
            a(f"s_sub_u32 s33, s{sC}, 4")
            a("s_lshl_b32 s33, s33, 15")
            a("s_add_u32 s33, s33, s76")
            if self.o.get("opre_at"):
                self.wait_flag(vSM, F_PROG, self.o["opre_at"], 9)
            a(f"buffer_load_dwordx4 v[32:35], v27, s[40:43], s33 offen {self.o.get('oprefl', 'sc1 nt')}")
            if self.o.get("pin") == "ld":
                a("s_waitcnt vmcnt(0)")
                a("buffer_load_dwordx4 v[32:35], v27, s[40:43], s33 offen sc1")
            elif self.o.get("pin") == "st":
                a(f"v_add_u32 v36, -1, v{vT}")
                for e in range(1, 4):
                    a(f"v_mov_b32 v{36+e}, v36")
                a("s_waitcnt vmcnt(0)")
                a("buffer_store_dwordx4 v[36:39], v27, s[40:43], s33 offen")
            a.label(self.lab("pre6"))
        a(f"s_and_b32 s72, s{sC}, 1")
        a(f"s_bfe_u32 s75, s{sC}, 0x10001")
        a(f"s_lshr_b32 s74, s{sJ}, 3")
        a(f"s_lshl_b32 s33, s{sG}, 11")
        a("s_lshl_b32 s34, s74, 9")
        a("s_add_u32 s33, s33, s34")
        a("s_lshl_b32 s34, s72, 8")
        a("s_add_u32 s33, s33, s34")
        a(f"s_add_u32 s77, s33, {MLX}")
        a(f"v_lshlrev_b32 v24, 2, v{vQ}")
        a("v_and_b32 v26, 15, v0")
        a(f"v_lshlrev_b32 v25, 7, v{vQ}")
        a("v_lshl_add_u32 v25, v26, 4, v25")
        a(f"s_lshl_b32 s33, s{sG}, 16")
        a("s_lshl_b32 s34, s74, 14")
        a("s_add_u32 s33, s33, s34")
        a("s_lshl_b32 s34, s72, 13")
        a("s_add_u32 s33, s33, s34")
        a("s_lshl_b32 s34, s75, 8")
        a("s_add_u32 s33, s33, s34")
        a(f"s_add_u32 s73, s33, {OX}")
        a("v_and_b32 v26, 3, v0")
        a("v_lshlrev_b32 v26, 4, v26")
        a("v_bfe_u32 v27, v0, 2, 1")
        a("v_lshl_add_u32 v26, v27, 3, v26")
        a("v_bfe_u32 v27, v0, 3, 1")
        a("v_lshl_add_u32 v26, v27, 6, v26")
        a("v_bfe_u32 v27, v0, 4, 1")
        a("v_lshl_add_u32 v26, v27, 2, v26")
        a("v_lshrrev_b32 v27, 5, v0")
        a("v_lshl_add_u32 v26, v27, 1, v26")
        a(f"s_mul_i32 s33, s72, {OLS}")
        a("s_lshl_b32 s34, s75, 7")
        a("s_add_u32 s33, s33, s34")
        a(f"s_add_u32 s33, s33, {SM+OL}")
        a("v_add_u32 v26, s33, v26")
        a(f"s_mov_b32 s34, {LOG2E:#x}")
        if self.o.get("mdelay"):
            self.wait_flag(vSM, F_PROG, self.o["mdelay"], 9)
        tm = list(range(48, 58))
        ml = [f"buffer_load_dwordx4 v[{64+4*t}:{67+4*t}], v24, s[40:43], s77 offen offset:{16*t} sc1" for t in range(4)]
        ol = [f"buffer_load_dwordx4 v[{32+4*t}:{35+4*t}], v25, s[40:43], s73 offen offset:{512*t} sc1" for t in range(4)]
        merged = self.o.get("merge") and not self.o.get("skip")
        if merged:
            topA, gotm = self.uniq("pa"), self.uniq("pm")
            a.label(topA)
            a(f"s_sub_u32 s{sCAP}, s{sCAP}, 16")
            a(f"s_cbranch_scc1 {self.lab('abort')}")
            a(f"ds_read_b32 v9, v{vSM} offset:{F_PROG}")
            for t in ml:
                a(t)
            a("s_waitcnt lgkmcnt(0)")
            a(f"v_cmp_le_i32 vcc, {self.o['merge']}, v9")
            a("s_nop 0")
            a("s_mov_b64 s[74:75], vcc")
            a("s_cmp_eq_u64 s[74:75], 0")
            a(f"s_cbranch_scc1 {gotm}")
            for t in ol:
                a(t)
            a.label(gotm)
            a("s_waitcnt vmcnt(0)")
            self.check(list(range(64, 80)), vT, sM10, tm)
            a(f"s_cbranch_vccnz {topA}")
        else:
            self.poll(ml, list(range(64, 80)), vT, sM10, tm, "m")
        for t in range(4):
            a(f"v_xor_b32 v{80+2*t}, v{vT}, v{64+4*t}")
        a("v_max3_f32 v8, v80, v82, v84")
        a("v_max_f32 v8, v8, v86")
        self.swap_reduce("v_max_f32", 8, 9, 16)
        self.swap_reduce("v_max_f32", 8, 9, 32)
        for t in range(4):
            a(f"v_sub_f32 v{80+2*t}, v{80+2*t}, v8")
        for t in range(4):
            a(f"v_mul_f32 v{80+2*t}, s34, v{80+2*t}")
        for t in range(4):
            a(f"v_exp_f32 v{80+2*t}, v{80+2*t}")
        a("v_mul_f32 v8, v80, v65")
        for t in range(1, 4):
            a(f"v_fmac_f32 v8, v{80+2*t}, v{65+4*t}")
        self.swap_reduce("v_add_f32", 8, 9, 16)
        self.swap_reduce("v_add_f32", 8, 9, 32)
        a("v_rcp_f32 v8, v8")
        for t in range(4):
            a(f"v_mul_f32 v{80+2*t}, v{80+2*t}, v8")
        self.stamp(8)
        self.stamp(11) if self.o.get("fine") else None
        if merged:
            topB, chk = self.uniq("pb"), self.uniq("pc")
            a("s_cmp_lg_u64 s[74:75], 0")
            a(f"s_cbranch_scc1 {chk}")
            self.wait_flag(vSM, F_PROG, self.o["merge"], 9)
            ACCR = 60 if self.o.get("opipe") else 32

            def pkops(base):
                pk = [f"v_pk_mul_f32 v[{ACCR+2*h}:{ACCR+1+2*h}], v[{base+2*h}:{base+1+2*h}], v[80:81] op_sel_hi:[1,0]" for h in range(2)]
                for t in range(1, 4):
                    for h in range(2):
                        pk.append(f"v_pk_fma_f32 v[{ACCR+2*h}:{ACCR+1+2*h}], v[{base+4*t+2*h}:{base+1+4*t+2*h}], v[{80+2*t}:{81+2*t}], v[{ACCR+2*h}:{ACCR+1+2*h}] op_sel_hi:[1,0,1]")
                return pk
            inter = self.o.get("inter", 1)
            if self.o.get("opipe"):
                olB = [f"buffer_load_dwordx4 v[{64+4*t}:{67+4*t}], v25, s[40:43], s73 offen offset:{512*t} sc1" for t in range(4)]
                done = self.uniq("pz")
                for t in ol:
                    a(t)
                a.label(topB)
                a(f"s_sub_u32 s{sCAP}, s{sCAP}, 16")
                a(f"s_cbranch_scc1 {self.lab('abort')}")
                for t in olB:
                    a(t)
                a("s_waitcnt vmcnt(4)")
                self.extra = pkops(32)
                self.check(list(range(32, 48)), vT, sM10, tm)
                a(f"s_cbranch_vccz {done}")
                for t in ol:
                    a(t)
                a("s_waitcnt vmcnt(4)")
                self.extra = pkops(64)
                self.check(list(range(64, 80)), vT, sM10, tm)
                a(f"s_cbranch_vccnz {topB}")
                a(f"s_branch {done}")
                a.label(chk)
                self.extra = pkops(32)
                self.check(list(range(32, 48)), vT, sM10, tm)
                self.extra = []
                a(f"s_cbranch_vccz {done}")
                for t in ol:
                    a(t)
                a(f"s_branch {topB}")
                a.label(done)
            else:
                first = self.uniq("pf")
                a(f"s_branch {first}")
                a.label(topB)
                if self.o.get("osleep"):
                    a(f"s_sleep {self.o['osleep']}")
                a.label(first)
                a(f"s_sub_u32 s{sCAP}, s{sCAP}, 16")
                a(f"s_cbranch_scc1 {self.lab('abort')}")
                for t in ol:
                    a(t)
                a("s_waitcnt vmcnt(0)")
                a.label(chk)
                self.extra = pkops(32) if inter else []
                self.check(list(range(32, 48)), vT, sM10, tm)
                self.extra = []
                a(f"s_cbranch_vccnz {topB}")
        else:
            if self.o.get("odelay"):
                self.wait_flag(vSM, F_PROG, self.o["odelay"], 9)
            inter = self.o.get("inter", 1) and not self.o.get("masked") and not self.o.get("skip")
            pk = [f"v_pk_mul_f32 v[{32+2*h}:{33+2*h}], v[{32+2*h}:{33+2*h}], v[80:81] op_sel_hi:[1,0]" for h in range(2)]
            for t in range(1, 4):
                for h in range(2):
                    pk.append(f"v_pk_fma_f32 v[{32+2*h}:{33+2*h}], v[{32+4*t+2*h}:{33+4*t+2*h}], v[{80+2*t}:{81+2*t}], v[{32+2*h}:{33+2*h}] op_sel_hi:[1,0,1]")
            if self.o.get("hold"):
                top, chk = self.uniq("p"), self.uniq("pc")
                for t in ol:
                    a(t + " nt")
                self.wait_flag(vSM, F_OS, 4, 9)
                if self.o["hold"][1] > 4 and self.o.get("holdwait", 1):
                    a("s_waitcnt vmcnt(0)")
                for t in ol:
                    a(t)
                self.signal(vSM, F_OS, vOne)
                a(f"s_branch {chk}")
                a.label(top)
                a(f"s_sub_u32 s{sCAP}, s{sCAP}, 16")
                a(f"s_cbranch_scc1 {self.lab('abort')}")
                for t in ol:
                    a(t)
                a.label(chk)
                a("s_waitcnt vmcnt(0)")
                self.extra = list(pk) if inter else []
                self.check(list(range(32, 48)), vT, sM10, tm)
                a(f"s_cbranch_vccnz {top}")
            else:
                self.poll(ol, list(range(32, 48)), vT, sM10, tm, "o", extra=pk if inter else None)
            self.extra = []
        self.fine("ogot", 94)
        if not inter:
            for h in range(2):
                a(f"v_pk_mul_f32 v[{32+2*h}:{33+2*h}], v[{32+2*h}:{33+2*h}], v[80:81] op_sel_hi:[1,0]")
            for t in range(1, 4):
                for h in range(2):
                    a(f"v_pk_fma_f32 v[{32+2*h}:{33+2*h}], v[{32+4*t+2*h}:{33+4*t+2*h}], v[{80+2*t}:{81+2*t}], v[{32+2*h}:{33+2*h}] op_sel_hi:[1,0,1]")
        R = 60 if (merged and self.o.get("opipe")) else 32
        if R == 60:
            a("s_nop 0")
        a(f"v_permlane32_swap_b32 v{R}, v{R+1}")
        a(f"v_permlane32_swap_b32 v{R+2}, v{R+3}")
        a(f"v_add_f32 v{R}, v{R}, v{R+1}")
        a(f"v_add_f32 v{R+2}, v{R+2}, v{R+3}")
        a(f"v_permlane16_swap_b32 v{R}, v{R+2}")
        a(f"v_add_f32 v{R}, v{R}, v{R+2}")
        a(f"v_cvt_pk_bf16_f32 v{R}, v{R}, v{R}")
        a(f"ds_write_b16 v26, v{R}")
        a("s_waitcnt lgkmcnt(0)")
        a("s_barrier")
        self.stamp(9)
        self.stamp(12) if self.o.get("fine") else None
        self.fine_flush("ogot", 94)
        self.flush_stamps(who)
        a("s_endpgm")
        self.emit_far()

    def body(self):
        a = self.a
        self.far = []
        self.prologue()
        self.loader()
        a.label(self.lab("notloader"))
        a(f"s_cmp_lg_u32 s{sW}, 1")
        a(f"s_cbranch_scc1 {self.lab('cwave')}")
        self.gwave()
        a.label(self.lab("cwave"))
        self.cwave()
        a.label(self.lab("abort"))
        a.label(self.lab("end"))
        a("s_endpgm")
        a.label(self.lab("codeend"))
        return a.text()


NOTES = """
;
; One persistent workgroup per CU (256 of them, 10 waves each); g = id & 7 is the KV head, j = id >> 3.
;   wave 0      streams this CU's 184 KiB (wq block, gate/up block, 256 keys of K and V, w_down block, wo block)
; bits (tag = word 0 of d_ws + 1, which workgroup 0 stores back at the end), so a consumer simply re-reads
; on one die keeps its hand-offs in that die's L2 (plain stores); any other placement uses write-through stores.
"""


def header():
    ref = open("recurrent_scan__sliding_block_cached__glu_gated_glu__decode.s.ref").read().split("\n")
    out = []
    for l in ref:
        if l.startswith("; @launch"):
            out.append(f"; @launch grid=(256,1,1) block=({NW*64},1,1) lds={LDS_BYTES}")
            out.extend(NOTES.strip("\n").split("\n"))
            break
        out.append(l)
    return "\n".join(out) + "\n"


def final_file(path, cls=None, **kw):
    g = (cls or Gen3)(**kw)
    body = g.body()
    s = header()
    s += f""".amdgcn_target "amdgcn-amd-amdhsa--gfx950"
.text
.globl {KNAME}
.p2align 8
.type {KNAME},@function
{KNAME}:
{body}.section .rodata,"a"
.p2align 6
.amdhsa_kernel {KNAME}
  .amdhsa_next_free_vgpr {NVGPR}
  .amdhsa_next_free_sgpr 102
  .amdhsa_accum_offset {NVGPR}
  .amdhsa_group_segment_fixed_size 0
  .amdhsa_kernarg_size 96
  .amdhsa_user_sgpr_count 2
  .amdhsa_user_sgpr_kernarg_segment_ptr 1
  .amdhsa_system_sgpr_workgroup_id_x 1
.end_amdhsa_kernel
"""
    open(path, "w").write(s)
    return g


def build_variants(out, variants, cls=None):
    from asmlib import build
    ks = []
    for n, kw in variants:
        g = (cls or Gen3)(name=n + "_kernel", **kw)
        ks.append((n + "_kernel", g.body(), NVGPR, NW * 64))
    build(out, ks)
    open(out + ".names", "w").write("".join(f"{n}_kernel:256:{NW*64}:{LDS_BYTES}\n" for n, kw in variants))


if __name__ == "__main__":
    build_variants("kern3", [("k3s", dict(N=24, stamps=True)), ("k3", dict(N=24)), ("k3nl", dict(N=24, opts=dict(nolocal=1)))])
```

```python
import re
from dsl import Asm

KNAME = "recurrent_scan__sliding_block_cached__glu_gated_glu__decode_kernel"

W0, W1, W2, KB, VB, SM = 0x0000, 0x4000, 0x6000, 0x8000, 0x18000, 0x26000
XN, QL, PL, MX, LS, OL, HL, FL = 0x0000, 0x0900, 0x0E00, 0x1700, 0x1780, 0x1800, 0x1A80, 0x1C00
XNS, QLS, PLS, OLS, HLS = 1088, 320, 576, 320, 192
F_PROG, F_XN, F_CQ, F_CG, F_QR, F_MAX, F_P, F_TAG, F_MODE, F_OS = [FL + 4 * i for i in range(10)]
LDS_BYTES = 163840
QX, GX, MLX, OX, FX = 0x1000, 0x21000, 0x59000, 0x61000, 0xE1000
FXS = 64 * 128
WS_USE = 0x200000
sG, sJ, sW, sB, sS = 28, 29, 30, 31, 32
sMODE, sM10, sM8, sCAP, sHI = 64, 65, 66, 67, 63
SCALE = 0x3DB504F3
LOG2E = 0x3FB8AA3B
EPS = 0x3727C5AC
M_J01 = (0x00030003, 0x00030003)
M_J03 = (0x000F000F, 0x000F000F)
M_J4 = (0x11111111, 0x11111111)
NW = 10
NVGPR = 104
CNT = dict(q=16, g=8, u=8, k=64, v=56, t=8, o=8, p=8, d=8)
MFMA = "v_mfma_f32_16x16x32_bf16"


class Gen3:
    def __init__(self, N=24, stamps=False, name=KNAME, opts=None):
        self.a = Asm()
        self.N = N
        self.stamps = stamps
        self.name = name
        self.u = 0
        self.o = dict(order="qgukvtdop", ilv=4096, qdelay=72, gdelay=128, mdelay=0, odelay=160, pref="qgo")
        self.o.update(opts or {})
        self.TH, self.BASE = {}, {}
        self.CNT = dict(CNT)
        if "w" in self.o["order"]:
            assert "vw" in self.o["order"]
            self.CNT["v"] = self.o["vsplit"]
            self.CNT["w"] = 56 - self.o["vsplit"]
        if "j" in self.o["order"]:
            assert "kj" in self.o["order"]
            self.CNT["k"] = self.o["ksplit"]
            self.CNT["j"] = 64 - self.o["ksplit"]
        n = 0
        for p in self.o["order"]:
            self.BASE[p] = n
            n += self.CNT[p]
            self.TH[p] = n
        assert n == 184

    def lab(self, s):
        return f"L_{s}_{self.name[-24:]}" if self.name != KNAME else f"L_{s}"

    def uniq(self, s):
        self.u += 1
        return self.lab(f"{s}{self.u}")

    def srd(self, d, p, off, size):
        a = self.a
        if off is None:
            a(f"s_mov_b32 s{d}, s{p}")
            a(f"s_mov_b32 s{d+1}, s{p+1}")
        else:
            a(f"s_add_u32 s{d}, s{p}, {off}")
            a(f"s_addc_u32 s{d+1}, s{p+1}, 0")
        if self.o.get("nostream") and p in (6, 8, 10, 12, 16, 18, 20):
            size = 0
        if p in self.o.get("zero", ()):
            size = 0
        a(f"s_mov_b32 s{d+2}, {size}")
        a(f"s_mov_b32 s{d+3}, 0x20000")

    def exec_(self, m):
        a = self.a
        if isinstance(m, int):
            a(f"s_mov_b64 exec, {m}")
        else:
            a(f"s_mov_b32 exec_lo, {m[0]:#x}")
            a(f"s_mov_b32 exec_hi, {m[1]:#x}")

    def init_stamps(self, slots):
        self.myslots = slots
        if self.stamps:
            for i in range(len(slots)):
                self.a(f"s_mov_b64 s[{80+2*i}:{81+2*i}], 0")

    def stamp(self, slot):
        if self.stamps and slot in self.myslots:
            i = self.myslots.index(slot)
            self.a(f"s_memrealtime s[{80+2*i}:{81+2*i}]")
            self.a("s_waitcnt lgkmcnt(0)")

    def flush_stamps(self, who=None):
        if not self.stamps:
            return
        a = self.a
        a("s_lshl_b32 s33, s2, 7")
        a("s_add_u32 s33, s33, 0x10000000")
        self.srd(76, 26, "s33", 128)
        a("s_mov_b64 exec, 1")
        for i, slot in enumerate(self.myslots):
            sk = self.uniq("cs")
            if who is not None:
                a(f"s_cmp_eq_u32 s70, {who(slot)}")
                a(f"s_cbranch_scc0 {sk}")
            a(f"v_mov_b32 v24, s{80+2*i}")
            a(f"v_mov_b32 v25, s{81+2*i}")
            a(f"buffer_store_dwordx2 v[24:25], off, s[76:79], 0 offset:{8*slot}")
            a("s_nop 1")
            a.label(sk)

    def fine(self, name, base):
        if self.stamps and self.o.get("fine", {}).get(name) is not None:
            self.a(f"s_memrealtime s[{base}:{base+1}]")
            self.a("s_waitcnt lgkmcnt(0)")

    def fine_flush(self, name, base):
        if self.stamps and self.o.get("fine", {}).get(name) is not None:
            a = self.a
            a("s_lshl_b32 s33, s2, 7")
            a("s_add_u32 s33, s33, 0x10000000")
            self.srd(76, 26, "s33", 128)
            a("s_mov_b64 exec, 1")
            a("s_and_b32 s33, s70, 3")
            a(f"s_add_u32 s33, s33, {self.o['fine'][name]}")
            a("s_lshl_b32 s33, s33, 3")
            a(f"v_mov_b32 v24, s{base}")
            a(f"v_mov_b32 v25, s{base+1}")
            a("buffer_store_dwordx2 v[24:25], off, s[76:79], s33")
            a("s_nop 1")

    def amp(self, what):
        if not self.o.get("amp") or self.o["amp"][2] != what:
            return
        K, wg, _ = self.o["amp"]
        a = self.a
        top, done = self.uniq("amp"), self.uniq("ampd")
        a(f"s_cmp_lg_u32 s2, {wg}")
        a(f"s_cbranch_scc1 {done}")
        a("s_memrealtime s[94:95]")
        a("s_waitcnt lgkmcnt(0)")
        if self.o.get("ampskew") is not None:
            a("s_mov_b64 exec, 1")
            a(f"buffer_load_dword v4, off, s[40:43], 0 offset:{256 + 4*self.o['ampskew']} sc1")
            a("s_waitcnt vmcnt(0)")
            a("v_readfirstlane_b32 s96, v4")
            a("s_nop 3")
            a("s_sub_u32 s96, s98, s96")
            a("s_add_u32 s96, s96, 200")
        else:
            a("s_sub_u32 s96, s94, s98")
        a(f"s_mul_i32 s96, s96, {K}")
        a("s_min_u32 s96, s96, 100000")
        a.label(top)
        a("s_memrealtime s[92:93]")
        a("s_waitcnt lgkmcnt(0)")
        a("s_sub_u32 s92, s92, s94")
        a("s_cmp_lt_u32 s92, s96")
        a(f"s_cbranch_scc1 {top}")
        a.label(done)

    def wait_flag(self, vsm, flag, thr, vt, urgent=False):
        a = self.a
        slp = 0 if urgent else self.o.get("ldssleep", 0)
        top = self.uniq("w")
        a.label(top)
        a(f"s_sub_u32 s{sCAP}, s{sCAP}, 1")
        a(f"s_cbranch_scc1 {self.lab('abort')}")
        a(f"ds_read_b32 v{vt}, v{vsm} offset:{flag}")
        a("s_waitcnt lgkmcnt(0)")
        a(f"v_cmp_le_i32 vcc, {thr}, v{vt}")
        if slp:
            done = self.uniq("wd")
            a(f"s_cbranch_vccnz {done}")
            a(f"s_sleep {slp}")
            a(f"s_branch {top}")
            a.label(done)
        else:
            a(f"s_cbranch_vccz {top}")

    def signal(self, vsm, flag, vone, restore=-1):
        a = self.a
        a("s_mov_b64 exec, 1")
        a(f"ds_add_u32 v{vsm}, v{vone} offset:{flag}")
        if restore is not None:
            self.exec_(restore)

    def check(self, regs, vT, smask, tmps):
        a0 = self.a
        ex = list(getattr(self, "extra", []))

        def a(t):
            a0(t)
            if ex and not t.startswith("v_bitop3"):
                a0(ex.pop(0))
                if ex:
                    a0(ex.pop(0))
        xs = []
        for i in range(0, len(regs), 2):
            t = tmps[i // 2]
            a(f"v_bitop3_b32 v{t}, v{regs[i]}, v{regs[i+1]}, v{vT} bitop3:0x7e")
            xs.append(t)
        while len(xs) > 1:
            nx, i = [], 0
            while i < len(xs):
                if i + 2 < len(xs):
                    a(f"v_or3_b32 v{xs[i]}, v{xs[i]}, v{xs[i+1]}, v{xs[i+2]}")
                    nx.append(xs[i]); i += 3
                elif i + 1 < len(xs):
                    a(f"v_or_b32 v{xs[i]}, v{xs[i]}, v{xs[i+1]}")
                    nx.append(xs[i]); i += 2
                else:
                    nx.append(xs[i]); i += 1
            xs = nx
        a(f"v_and_b32 v{xs[0]}, s{smask}, v{xs[0]}")
        while ex:
            a0(ex.pop(0))
        a0(f"v_cmp_ne_u32 vcc, 0, v{xs[0]}")

    def poll_masked(self, loads, regs, vT, smask, tmps, base_exec):
        a = self.a
        n = len(loads)
        M = [52 + 2 * i for i in range(n)]
        assert n <= 4
        top, done = self.uniq("p"), self.uniq("pd")
        for t in loads:
            a(t)
        a("s_waitcnt vmcnt(0)")

        def checks(first):
            if first:
                for i in range(n):
                    r = regs[4 * i:4 * i + 4]
                    a(f"v_bitop3_b32 v{tmps[2*i]}, v{r[0]}, v{r[1]}, v{vT} bitop3:0x7e")
                    a(f"v_bitop3_b32 v{tmps[2*i+1]}, v{r[2]}, v{r[3]}, v{vT} bitop3:0x7e")
                self.check_tail([tmps[i] for i in range(2 * n)], smask, tmps[2 * n])
            for i in range(n):
                r = regs[4 * i:4 * i + 4]
                if not first:
                    a(f"s_mov_b64 exec, s[{M[i]}:{M[i]+1}]")
                    a(f"v_bitop3_b32 v{tmps[2*i]}, v{r[0]}, v{r[1]}, v{vT} bitop3:0x7e")
                    a(f"v_bitop3_b32 v{tmps[2*i+1]}, v{r[2]}, v{r[3]}, v{vT} bitop3:0x7e")
                a(f"v_or_b32 v{tmps[2*i]}, v{tmps[2*i]}, v{tmps[2*i+1]}")
                a(f"v_and_b32 v{tmps[2*i]}, s{smask}, v{tmps[2*i]}")
                a(f"v_cmp_ne_u32 s[{M[i]}:{M[i]+1}], 0, v{tmps[2*i]}")

        checks(True)
        a("s_nop 1")
        a.label(top)
        a(f"s_sub_u32 s{sCAP}, s{sCAP}, 16")
        a(f"s_cbranch_scc1 {self.lab('abort')}")
        for i, t in enumerate(loads):
            sk = self.uniq("pk")
            a(f"s_mov_b64 exec, s[{M[i]}:{M[i]+1}]")
            a(f"s_cbranch_execz {sk}")
            a(t)
            a.label(sk)
        a("s_waitcnt vmcnt(0)")
        checks(False)
        a("s_nop 1")
        a(f"s_mov_b64 s[60:61], s[{M[0]}:{M[0]+1}]")
        for i in range(1, n):
            a(f"s_or_b64 s[60:61], s[60:61], s[{M[i]}:{M[i]+1}]")
        a("s_cmp_lg_u64 s[60:61], 0")
        a(f"s_cbranch_scc1 {top}")
        a.label(self.pm_done)
        self.exec_(base_exec)

    def check_tail(self, xs, smask, t):
        a = self.a
        self.pm_done = self.uniq("pmd")
        cur = xs[0]
        i = 1
        first = True
        while i < len(xs):
            if i + 1 < len(xs):
                a(f"v_or3_b32 v{t}, v{cur}, v{xs[i]}, v{xs[i+1]}")
                i += 2
            else:
                a(f"v_or_b32 v{t}, v{cur}, v{xs[i]}")
                i += 1
            cur = t
        a(f"v_and_b32 v{t}, s{smask}, v{t}")
        a(f"v_cmp_ne_u32 vcc, 0, v{t}")
        a(f"s_cbranch_vccz {self.pm_done}")

    def poll(self, loads, regs, vT, smask, tmps, name, base_exec=-1, extra=None):
        a = self.a
        self.extra = list(extra or [])
        if name in self.o.get("skip", ""):
            return
        if name in self.o.get("ntfirst", ""):
            top, chk = self.uniq("p"), self.uniq("pc")
            for t in loads:
                a(t + " nt")
            a(f"s_branch {chk}")
            a.label(top)
            a(f"s_sub_u32 s{sCAP}, s{sCAP}, 16")
            a(f"s_cbranch_scc1 {self.lab('abort')}")
            for t in loads:
                a(t)
            a.label(chk)
            a("s_waitcnt vmcnt(0)")
            self.check(regs, vT, smask, tmps)
            a(f"s_cbranch_vccnz {top}")
            return
        if name in self.o.get("masked", ""):
            return self.poll_masked(loads, regs, vT, smask, tmps, base_exec)
        top = self.uniq("p")
        tr = self.stamps and self.o.get("count", {}).get(name)
        if tr and all(x in self.myslots for x in tr):
            self.stamp(tr[0])
            i = self.myslots.index(tr[1])
            a(f"s_mov_b64 s[{80+2*i}:{81+2*i}], s[98:99]")
            for t in loads:
                a(t)
            a("s_waitcnt vmcnt(0)")
            self.stamp(tr[2])
            a.label(top)
            a(f"s_add_u32 s{80+2*i}, s{80+2*i}, 1")
            a(f"s_sub_u32 s{sCAP}, s{sCAP}, 16")
            a(f"s_cbranch_scc1 {self.lab('abort')}")
            self.check(regs, vT, smask, tmps)
            done = self.uniq("pd")
            a(f"s_cbranch_vccz {done}")
            for t in loads:
                a(t)
            a("s_waitcnt vmcnt(0)")
            a(f"s_branch {top}")
            a.label(done)
            return
        a.label(top)
        a(f"s_sub_u32 s{sCAP}, s{sCAP}, 16")
        a(f"s_cbranch_scc1 {self.lab('abort')}")
        for t in loads:
            a(t)
        a("s_waitcnt vmcnt(0)")
        self.check(regs, vT, smask, tmps)
        a(f"s_cbranch_vccnz {top}")

    def tag(self, r, vT, smask, src=None):
        self.a(f"v_bfi_b32 v{r}, s{smask}, v{vT}, v{r if src is None else src}")

    def publish(self, name, stores, mask, local=True, restore=-1, precmp=False):
        a = self.a
        if name in self.o.get("nostore", ""):
            if restore is not None:
                self.exec_(restore)
            return
        if mask is not None:
            self.exec_(mask)
        if local:
            far, done = self.uniq("far"), self.uniq("pub")
            if not precmp:
                a(f"s_cmp_eq_u32 s{sMODE}, 2")
            a(f"s_cbranch_scc0 {far}")
            for t in stores:
                a(t.replace(" sc1", ""))
            self.far.append((far, stores, done))
            a.label(done)
        else:
            for t in stores:
                a(t)
        if restore is not None:
            self.exec_(restore)

    def emit_far(self):
        a = self.a
        for far, stores, done in self.far:
            a.label(far)
            for t in stores:
                a(t)
            a(f"s_branch {done}")
        self.far = []

    def rnd(self, d, src=None):
        self.a(f"v_cvt_pk_bf16_f32 v{d}, 0, v{d if src is None else src}")

    def row_reduce(self, op, regs):
        for sh in (8, 4, 2, 1):
            for r in regs:
                self.a(f"{op}_dpp v{r}, v{r}, v{r} row_ror:{sh} row_mask:0xf bank_mask:0xf")

    def swap_reduce(self, op, r, tmp, which):
        a = self.a
        a(f"v_mov_b32 v{tmp}, v{r}")
        a(f"v_permlane{which}_swap_b32 v{r}, v{tmp}")
        a(f"{op} v{r}, v{r}, v{tmp}")

    def tr_addr(self, vd, rowshift, wide, t1, t2, t3):
        a = self.a
        a(f"v_bfe_u32 v{t1}, v0, 2, 2")
        a(f"v_lshrrev_b32 v{t2}, 4, v0")
        a(f"v_lshl_add_u32 v{t1}, v{t2}, 2, v{t1}")
        if wide:
            a(f"v_and_b32 v{t2}, 7, v{t1}")
        else:
            a(f"v_bfe_u32 v{t2}, v{t1}, 1, 2")
        a(f"v_lshlrev_b32 v{t2}, 5, v{t2}")
        a(f"v_lshl_add_u32 v{vd}, v{t1}, {rowshift}, v{t2}")
        a(f"v_and_b32 v{t3}, 3, v0")
        a(f"v_lshl_add_u32 v{vd}, v{t3}, 3, v{vd}")

    def half_fold(self, r, t):
        a = self.a
        a(f"v_permlane16_swap_b32 v{r}, v{r+1}")
        a(f"v_permlane16_swap_b32 v{r+2}, v{r+3}")
        a(f"v_add_f32 v{r}, v{r}, v{r+1}")
        a(f"v_add_f32 v{r+2}, v{r+2}, v{r+3}")
        a(f"v_add_f32_dpp v{t}, v{r}, v{r} row_ror:8 row_mask:0xf bank_mask:0x3")
        a(f"v_add_f32_dpp v{t}, v{r+2}, v{r+2} row_ror:8 row_mask:0xf bank_mask:0xc")
        a(f"v_add_f32_dpp v{t}, v{t}, v{t} row_half_mirror row_mask:0xf bank_mask:0xf")
        a(f"v_add_f32_dpp v{t}, v{t}, v{t} quad_perm:[1,0,3,2] row_mask:0xf bank_mask:0xf")
        a(f"v_add_f32_dpp v{t}, v{t}, v{t} quad_perm:[2,3,0,1] row_mask:0xf bank_mask:0xf")

    def glu_ids(self, sn, sc, si):
        a = self.a
        if self.o.get("bal"):
            a(f"s_and_b32 s{sn}, s{sG}, 1")
            a(f"s_mul_i32 s{sc}, s{sn}, 3")
            a(f"s_lshr_b32 s{si}, s{sJ}, 3")
            a(f"s_add_u32 s{sc}, s{sc}, s{si}")
            a(f"s_lshl_b32 s{sn}, s{sn}, 2")
            a(f"s_and_b32 s{si}, s{sJ}, 3")
            a(f"s_add_u32 s{sn}, s{sn}, s{si}")
            a(f"s_and_b32 s{si}, s{sJ}, 7")
            a(f"s_cmp_lt_u32 s{sJ}, 24")
            a(f"s_cselect_b32 s{sc}, s{sc}, 6")
            a(f"s_cselect_b32 s{si}, s{si}, s{sn}")
            a(f"s_lshr_b32 s{sn}, s{sG}, 1")
            a(f"s_mul_i32 s{sn}, s{sn}, 7")
            a(f"s_add_u32 s{sc}, s{sc}, s{sn}")
            a(f"s_cmp_lt_u32 s{sJ}, 28")
            return
        a(f"s_min_u32 s{sn}, s{sG}, 4")
        a(f"s_mul_i32 s{sc}, s{sG}, 3")
        a(f"s_add_u32 s{sc}, s{sc}, s{sn}")
        a(f"s_lshr_b32 s{sn}, s{sJ}, 3")
        a(f"s_add_u32 s{sc}, s{sc}, s{sn}")
        a(f"s_and_b32 s{si}, s{sJ}, 7")
        a(f"s_cmp_lt_u32 s{sG}, 4")
        a(f"s_cselect_b32 s{sn}, 32, 24")
        a(f"s_cmp_lt_u32 s{sJ}, s{sn}")

    def prologue(self):
        a = self.a
        a("s_load_dwordx16 s[4:19], s[0:1], 0")
        a("s_load_dwordx8 s[20:27], s[0:1], 64")
        a("s_cmp_ge_u32 s2, 256")
        a(f"s_cbranch_scc1 {self.lab('end')}")
        if self.stamps or self.o.get("amp"):
            a("s_memrealtime s[98:99]")
        if self.o.get("scramble"):
            k = self.o["scramble"]
            a("s_and_b32 s33, s2, 63")
            a(f"s_lshl_b32 s34, s33, {k}")
            a(f"s_lshr_b32 s33, s33, {6-k}")
            a("s_or_b32 s33, s33, s34")
            a("s_and_b32 s33, s33, 63")
            a("s_andn2_b32 s2, s2, 63")
            a("s_or_b32 s2, s2, s33")
        a("v_lshrrev_b32 v1, 6, v0")
        a("v_and_b32 v0, 63, v0")
        a(f"s_and_b32 s{sG}, s2, 7")
        a(f"v_readfirstlane_b32 s{sW}, v1")
        a(f"s_lshr_b32 s{sJ}, s2, 3")
        a(f"s_and_b32 s{sB}, s{sJ}, 1")
        a(f"s_lshr_b32 s{sS}, s{sJ}, 1")
        a(f"s_mov_b32 s{sCAP}, {self.o.get('cap', 0x80000):#x}")
        a(f"s_cmp_lg_u32 s{sW}, 0")
        a(f"s_cbranch_scc1 {self.lab('notloader')}")

    def loader(self):
        a = self.a
        N = self.N
        rot, ilv = self.o.get("rot"), self.o.get("ilv")
        a.c("================= loader wave: streams this CU's share of the weights and of K / V into LDS =================")
        self.init_stamps([0, 1, 2])
        a("s_setprio 3")
        vWQ, vGU, vK, vV, vW1, vSM, vP = 2, 3, 4, 8, 10, 16, 17
        sOff, sProg = 68, 69
        npf = 0
        if self.o.get("lpf"):
            a("s_getpc_b64 s[34:35]")
            a.label(self.lab("pcref0"))
            a("v_lshlrev_b32 v22, 7, v0")
            a("v_mov_b32 v25, s35")
            a(f"v_min_u32 v23, {self.lab('codeend')}-{self.lab('pcref0')}-4, v22")
            a("v_add_u32 v22, 0x2000, v22")
            a("v_add_co_u32 v24, vcc, s34, v23")
            a("v_addc_co_u32 v25, vcc, 0, v25, vcc")
            a(f"v_min_u32 v22, {self.lab('codeend')}-{self.lab('pcref0')}-4, v22")
            a("global_load_dword v26, v[24:25], off")
            a("v_mov_b32 v23, s35")
            a("v_add_co_u32 v22, vcc, s34, v22")
            a("v_addc_co_u32 v23, vcc, 0, v23, vcc")
            a("global_load_dword v27, v[22:23], off")
        a("v_lshrrev_b32 v18, 4, v0")
        a("v_lshlrev_b32 v19, 1, v18")
        a("v_and_b32 v20, 7, v0")
        a("v_xor_b32 v20, v19, v20")
        a("v_lshlrev_b32 v20, 4, v20")
        a("v_lshrrev_b32 v21, 3, v0")
        a(f"v_lshl_add_u32 v{vWQ}, v21, 13, v20")
        a(f"s_lshr_b32 s33, s{sJ}, 3")
        a("s_lshl_b32 s33, s33, 20")
        a(f"s_lshl_b32 s34, s{sG}, 10")
        a("s_add_u32 s33, s33, s34")
        a(f"s_and_b32 s34, s{sJ}, 7")
        a("s_lshl_b32 s71, s34, 7")
        a("s_add_u32 s33, s33, s71")
        a(f"s_mov_b32 s{sOff}, 0")
        a(f"s_mov_b32 m0, {W0}")
        a(f"s_mov_b32 s{sProg}, {-N}")
        a(f"v_mov_b32 v{vSM}, {SM:#x}")
        a("s_waitcnt lgkmcnt(0)")
        self.srd(36, 10, "s33", 127 * 8192 + 128)
        if self.stamps:
            a("s_mov_b64 s[80:81], s[98:99]")

        def loop(name, vo, srd, step, end, N, quiet=False):
            top = self.uniq("ld" + name)
            kv = name in "kjvwt"
            itstep, wrap = 4096, 0xffff
            if ilv and kv:
                assert ilv == 4096
                itstep, wrap, end = 65536, 0xfffff, end * 16
            rr = rot and kv
            if rr:
                endm = dict(k=KB + self.CNT["k"] * 1024, j=KB + 65536, v=VB + self.CNT["v"] * 1024, w=VB + 57344, t=W2 + 8192)[name]
            a.label(top)
            for k in range(4):
                a(f"buffer_load_dwordx4 v{vo[k % len(vo)]}, s[{srd}:{srd+3}], s{sOff} offen offset:{k*1024} {self.o.get('stfl', 'nt')} lds")
                if step != 1024:
                    a(f"s_add_u32 s{sOff}, s{sOff}, {step-1024}")
                if k == 3 or (k == 1 and self.o.get("burst") == 2) or not self.o.get("burst"):
                    a(f"s_waitcnt vmcnt({N})")
            a(f"s_add_u32 s{sProg}, s{sProg}, 4")
            if not quiet:
                a("s_mov_b64 exec, 1")
                a(f"v_mov_b32 v{vP}, s{sProg}")
                a(f"ds_write_b32 v{vSM}, v{vP} offset:{F_PROG}")
                a("s_mov_b64 exec, -1")
            ilg = self.o.get("ilg")
            if ilg is not None and kv:
                a("s_add_u32 s75, s75, 1")
                a("s_and_b32 s75, s75, 15")
                a(f"s_lshr_b32 s33, s75, {ilg}")
                a(f"s_lshl_b32 s33, s33, {16 + ilg}")
                a(f"s_and_b32 s{sOff}, s75, {(1 << ilg) - 1}")
                a(f"s_lshl_b32 s{sOff}, s{sOff}, 12")
                a(f"s_add_u32 s{sOff}, s{sOff}, s33")
            else:
                a(f"s_add_u32 s{sOff}, s{sOff}, {itstep}")
                if rr:
                    a(f"s_and_b32 s{sOff}, s{sOff}, {wrap:#x}")
            a("s_add_u32 m0, m0, 4096")
            a(f"s_cmp_lg_u32 m0, {endm}" if rr else f"s_cmp_lg_u32 s{sOff}, {end}")
            a(f"s_cbranch_scc1 {top}")

        assert self.o["order"][0] == "q"
        loop("q", [vWQ], 36, 65536, 16 * 65536, N)
        early = self.o.get("early", 0)
        a("s_movk_i32 s33, 3584")
        a(f"v_mad_u32_u24 v{vGU}, v21, s33, v20")
        self.glu_ids(33, 34, 35)
        a("s_cselect_b32 s72, -1, 0")
        a(f"s_mul_i32 s33, s35, {64*3584}")
        a("s_lshl_b32 s70, s34, 7")
        a("s_add_u32 s33, s33, s70")
        a("s_and_b32 s33, s33, s72")
        for d, p in ((40, 16), (44, 18)):
            self.srd(d, p, "s33", 63 * 3584 + 128)
            a(f"s_and_b32 s{d+2}, s{d+2}, s72")

        def rest():
            a(f"v_lshl_add_u32 v{vW1}, v21, 10, v20")
            a("s_lshl_b32 s33, s34, 16")
            if self.o.get("dsh"):
                a(f"s_add_u32 s35, s35, {self.o['dsh']}")
                a("s_and_b32 s35, s35, 7")
            a("s_lshl_b32 s35, s35, 7")
            a("s_add_u32 s33, s33, s35")
            a("s_and_b32 s33, s33, s72")
            self.srd(60, 20, "s33", 63 * 1024 + 128)
            a("s_and_b32 s62, s62, s72")
            a(f"s_lshl_b32 s33, s{sB}, 3")
            a(f"s_add_u32 s33, s33, s{sG}")
            a("s_lshl_b32 s33, s33, 23")
            ilg = self.o.get("ilg")
            a(f"s_lshl_b32 s34, s{sS}, {(12 if ilv else 16) if ilg is None else 12 + ilg}")
            a("s_add_u32 s33, s33, s34")
            a(f"s_add_u32 s33, s33, {28672*256}")
            kvsize = 65536 if not ilv else (1048576 - 15 * ilv)
            if ilg is not None:
                kvsize = 1048576 - 15 * (4096 << ilg)
            self.srd(48, 6, "s33", kvsize)
            self.srd(52, 8, "s33", kvsize)
            a("v_and_b32 v19, 15, v0")
            a("v_xor_b32 v20, v18, v19")
            a("v_lshlrev_b32 v20, 4, v20")
            a(f"v_lshl_add_u32 v{vK}, v18, 8, v20")
            for k in range(1, 4):
                a(f"v_xor_b32 v{vK+k}, {k << 6:#x}, v{vK}")
            a("v_lshlrev_b32 v20, 1, v18")
            a("v_xor_b32 v20, v20, v19")
            a("v_lshlrev_b32 v20, 4, v20")
            a(f"v_lshl_add_u32 v{vV}, v18, 8, v20")
            a(f"v_xor_b32 v{vV+1}, 0x80, v{vV}")
            a(f"s_lshl_b32 s33, s{sG}, 2")
            a(f"s_lshr_b32 s34, s{sJ}, 3")
            a("s_add_u32 s33, s33, s34")
            a("s_lshl_b32 s33, s33, 17")
            if self.o.get("wsh"):
                a(f"s_add_u32 s71, s{sJ}, {self.o['wsh']}")
                a("s_and_b32 s71, s71, 7")
                a("s_lshl_b32 s71, s71, 7")
            a("s_add_u32 s33, s33, s71")
            self.srd(56, 12, "s33", 127 * 1024 + 128)
            if rot:
                r3 = rot if len(rot) == 3 else (2 * rot[0], rot[0], rot[1])
                a(f"s_mul_i32 s73, s{sS}, {r3[0]}")
                a(f"s_mul_i32 s33, s{sB}, {r3[1]}")
                a("s_add_u32 s73, s73, s33")
                a(f"s_mul_i32 s33, s{sG}, {r3[2]}")
                a("s_add_u32 s73, s73, s33")
                a(f"s_lshl_b32 s73, s73, {16 if ilv else 12}")
                a(f"s_and_b32 s73, s73, {0xfffff if ilv else 0xffff:#x}")
            a("s_barrier")

        if not early:
            rest()
        spec = dict(g=([vGU], 40, 28672, 0, 8 * 28672, W1), u=([vGU], 44, 28672, 0, 8 * 28672, W2),
                    k=([vK, vK + 1, vK + 2, vK + 3], 48, 1024, 0, self.CNT["k"] * 1024, KB), v=([vV, vV + 1], 52, 1024, 0, self.CNT["v"] * 1024, VB),
                    j=([vK, vK + 1, vK + 2, vK + 3], 48, 1024, 0, 65536, KB + self.CNT["k"] * 1024),
                    w=([vV, vV + 1], 52, 1024, 0, 57344, VB + self.CNT["v"] * 1024),
                    t=([vV, vV + 1], 52, 1024, 57344, 65536, W2), o=([vW1], 56, 8192, 0, 8 * 8192, W0),
                    p=([vW1], 56, 8192, 8 * 8192, 16 * 8192, W0 + 8192),
                    d=([vW1], 60, 8192, 0, 8 * 8192, W1))
        early_ph = self.o["order"][1:1 + early]
        nwin0 = self.o.get("win", {})
        state = dict(m0=W0 + 16384, prev="q", N=N)

        def phases(lst, nwin, st):
            waited = set()
            for p in lst:
                vo, srd, step, start, end, lds = spec[p]
                if not self.o.get("bare"):
                    if p in "op" and "q" not in waited:
                        self.wait_flag(vSM, F_CQ, 4, 22)
                        waited.add("q")
                    if p in "td" and "g" not in waited:
                        self.wait_flag(vSM, F_CG, 1, 22)
                        waited.add("g")
                if self.o.get("hold") and p == self.o["hold"][0] and not self.o.get("bare"):
                    issued = self.BASE[p]
                    a("s_mov_b64 exec, 1")
                    for n in range((st["N"] - 1) // 4 * 4, issued - self.TH["t"] - 1, -4):
                        a(f"v_mov_b32 v{vP}, {issued - n}")
                        a(f"s_waitcnt vmcnt({n})")
                        a(f"ds_write_b32 v{vSM}, v{vP} offset:{F_PROG}")
                    a("s_mov_b64 exec, -1")
                    self.wait_flag(vSM, F_OS, self.o["hold"][1], 22)
                    a(f"s_mov_b32 s{sProg}, {issued - st['N']}")
                    st["held"] = True
                if p in nwin and nwin[p] != st["N"]:
                    a(f"s_add_u32 s{sProg}, s{sProg}, {st['N'] - nwin[p]}")
                    st["N"] = nwin[p]
                if (p, st["prev"]) in (("t", "v"), ("t", "w"), ("w", "v"), ("j", "k"), ("p", "o")):
                    pass
                elif rot and p in "kv" and self.o.get("ilg") is not None:
                    ilg = self.o["ilg"]
                    a("s_lshr_b32 s75, s73, 12")
                    a(f"s_lshr_b32 s33, s75, {ilg}")
                    a(f"s_lshl_b32 s33, s33, {16 + ilg}")
                    a(f"s_and_b32 s{sOff}, s75, {(1 << ilg) - 1}")
                    a(f"s_lshl_b32 s{sOff}, s{sOff}, 12")
                    a(f"s_add_u32 s{sOff}, s{sOff}, s33")
                elif rot and p in "kv":
                    a(f"s_mov_b32 s{sOff}, s73")
                elif rot and p == "t":
                    a(f"s_add_u32 s{sOff}, s73, {57344 * (16 if ilv else 1)}")
                    a(f"s_and_b32 s{sOff}, s{sOff}, {0xfffff if ilv else 0xffff:#x}")
                else:
                    a(f"s_mov_b32 s{sOff}, {start * (16 if ilv and p == 't' else 1)}")
                if st["m0"] != lds:
                    a(f"s_mov_b32 m0, {lds}")
                loop(p, vo, srd, step, end, st["N"], st.get("held", False))
                st["m0"], st["prev"] = lds + self.CNT[p] * 1024, p

        assert all(p in "gu" for p in early_ph)
        phases(early_ph, nwin0, state)
        if early:
            rest()
        classes = list(self.o.get("classes", [])) + [(None, nwin0)]
        for cls, win in classes:
            nxt = self.uniq("cls")
            if cls == "heavy":
                a(f"s_cmp_lt_u32 s{sG}, 4")
                a(f"s_cbranch_scc0 {nxt}")
            elif cls == "noglu":
                a("s_cmp_eq_u32 s72, 0")
                a(f"s_cbranch_scc0 {nxt}")
            elif cls is not None:
                a(f"s_and_b32 s33, s{sJ}, 7")
                a(f"s_cmp_eq_u32 s33, {cls}")
                a(f"s_cbranch_scc0 {nxt}")
            st = dict(state)
            phases(self.o["order"][1 + early:], win, st)
            self.stamp(1)
            a("s_mov_b64 exec, 1")
            nmax = (st["N"] - 1) // 4 * 4
            if st.get("held"):
                nmax = min(nmax, 184 - self.TH["t"] - 4)
            for n in range(nmax, -1, -4):
                a(f"v_mov_b32 v{vP}, {184 - n}")
                a(f"s_waitcnt vmcnt({n})")
                a(f"ds_write_b32 v{vSM}, v{vP} offset:{F_PROG}")
            self.stamp(2)
            self.amp("stream")
            self.flush_stamps()
            a("s_endpgm")
            a.label(nxt)

    def gwave(self):
        a = self.a
        TH = self.TH
        a.c("================= G wave: layernorm, GLU branch, final reduction =================")
        self.init_stamps(self.o.get("gslots", [3, 15, 11, 12, 13, 14]))
        vSM, vT, vOne, vXF, vOO, vHI, vF = 2, 3, 60, 61, 62, 56, 57
        a("s_getreg_b32 s70, hwreg(HW_REG_XCC_ID, 0, 4)")
        a(f"v_mov_b32 v{vSM}, {SM:#x}")
        a(f"v_lshl_add_u32 v1, v0, 2, v{vSM}")
        a("v_mov_b32 v4, 0")
        a(f"ds_write_b32 v1, v4 offset:{FL}")
        a("s_add_u32 s70, s70, 1")
        a(f"v_mov_b32 v{vHI}, s70")
        a("v_lshlrev_b32 v12, 5, v0")
        a("v_bfe_u32 v13, v0, 3, 1")
        a("v_bfe_u32 v14, v0, 4, 1")
        a("v_lshl_add_u32 v13, v13, 1, v14")
        a(f"s_lshl_b32 s33, s{sG}, 7")
        a(f"s_lshr_b32 s34, s{sJ}, 3")
        a("s_lshl_b32 s34, s34, 5")
        a("s_add_u32 s33, s33, s34")
        a(f"s_and_b32 s34, s{sJ}, 3")
        a("s_lshl_b32 s34, s34, 3")
        a("s_add_u32 s33, s33, s34")
        a(f"s_bfe_u32 s34, s{sJ}, 0x10002")
        a("s_lshl_b32 s34, s34, 10")
        a("s_add_u32 s33, s33, s34")
        a(f"v_lshl_add_u32 v{vOO}, v13, 1, s33")
        a(f"v_mov_b32 v{vOne}, 1")
        a(f"s_movk_i32 s{sM10}, 0x3ff")
        a(f"s_mov_b32 s{sHI}, 0xffff0000")
        a(f"s_lshl_b32 s71, s{sG}, 5")
        a(f"s_add_u32 s72, s71, s{sJ}")
        a("v_and_b32 v57, 31, v0")
        a("s_waitcnt lgkmcnt(0)")
        self.srd(48, 24, None, 256)
        self.srd(36, 4, None, 2048)
        a("s_mov_b64 exec, 1")
        a(f"buffer_store_byte v{vHI}, off, s[48:51], s72")
        a("s_mov_b64 exec, -1")
        self.srd(40, 26, None, WS_USE)
        a("buffer_load_dwordx4 v[4:7], v12, s[36:39], 0 offen")
        a("buffer_load_dwordx4 v[8:11], v12, s[36:39], 0 offen offset:16")
        a(f"buffer_load_dword v{vT}, off, s[40:43], 0 sc1")
        a(f"buffer_load_ushort v{vXF}, v{vOO}, s[36:39], 0 offen")
        if self.o.get("ampskew") is not None:
            a("s_lshl_b32 s33, s2, 2")
            a("s_add_u32 s33, s33, 256")
            a("v_mov_b32 v13, s98")
            a("s_mov_b64 exec, 1")
            a("buffer_store_dword v13, off, s[40:43], s33 sc1")
            a("s_mov_b64 exec, -1")
        self.srd(44, 22, None, 2048)
        a("s_barrier")
        if self.o.get("bare"):
            a("s_endpgm")
        a("v_lshrrev_b32 v13, 5, v0")
        a(f"v_mul_u32_u24 v13, {XNS}, v13")
        a("v_bfe_u32 v14, v0, 1, 4")
        a("v_lshl_add_u32 v13, v14, 6, v13")
        a("v_and_b32 v14, 1, v0")
        a("v_lshl_add_u32 v13, v14, 3, v13")
        a(f"v_add_u32 v13, v{vSM}, v13")
        a("s_waitcnt vmcnt(0)")
        a("buffer_load_ubyte v58, v57, s[48:51], s71 offen sc1")
        X = 16
        for i in range(8):
            a(f"v_lshlrev_b32 v{X+2*i}, 16, v{4+i}")
            a(f"v_and_b32 v{X+2*i+1}, s{sHI}, v{4+i}")
        a(f"v_add_u32 v{vT}, 1, v{vT}")
        for i in range(4):
            a(f"v_add_f32 v{4+i}, v{X+i}, v{X+4+i}")
        for i in range(4):
            a(f"v_add_f32 v{4+i}, v{4+i}, v{X+8+i}")
        for i in range(4):
            a(f"v_add_f32 v{4+i}, v{4+i}, v{X+12+i}")
        a("v_add_f32 v4, v4, v5")
        a("v_add_f32 v6, v6, v7")
        a("v_add_f32 v4, v4, v6")
        self.row_reduce("v_add_f32", [4])
        self.swap_reduce("v_add_f32", 4, 5, 16)
        a("v_mul_f32 v4, 0x3b000000, v4")
        for i in range(16):
            a(f"v_sub_f32 v{32+i}, v{X+i}, v4")
        a("v_mul_f32 v5, v32, v32")
        a("v_mul_f32 v6, v33, v33")
        for i in range(2, 16, 2):
            a(f"v_fmac_f32 v5, v{32+i}, v{32+i}")
            a(f"v_fmac_f32 v6, v{33+i}, v{33+i}")
        a("v_add_f32 v5, v5, v6")
        self.row_reduce("v_add_f32", [5])
        self.swap_reduce("v_add_f32", 5, 6, 16)
        a("v_mul_f32 v5, 0x3b000000, v5")
        a("v_cvt_pk_bf16_f32 v4, v4, v5")
        a(f"v_and_b32 v5, s{sHI}, v4")
        a("v_lshlrev_b32 v4, 16, v4")
        a(f"v_add_f32 v5, {EPS:#x}, v5")
        a("v_cvt_pk_bf16_f32 v5, v5, v5")
        a(f"v_and_b32 v5, s{sHI}, v5")
        a("v_sqrt_f32 v5, v5")
        a("v_cvt_pk_bf16_f32 v5, v5, v5")
        a(f"v_and_b32 v5, s{sHI}, v5")
        a("v_rcp_f32 v5, v5")
        for i in range(16):
            a(f"v_sub_f32 v{X+i}, v{X+i}, v4")
        for i in range(8):
            a(f"v_cvt_pk_bf16_f32 v{32+i}, v{X+2*i}, v{X+2*i+1}")
        for i in range(8):
            a(f"v_lshlrev_b32 v{X+2*i}, 16, v{32+i}")
            a(f"v_and_b32 v{X+2*i+1}, s{sHI}, v{32+i}")
        for i in range(16):
            a(f"v_mul_f32 v{X+i}, v{X+i}, v5")
        for i in range(8):
            a(f"v_cvt_pk_bf16_f32 v{32+i}, v{X+2*i}, v{X+2*i+1}")
        for gq in range(4):
            a(f"ds_write_b64 v13, v[{32+2*gq}:{33+2*gq}] offset:{XN+16*gq}")
        a("s_mov_b64 exec, 1")
        a(f"ds_write_b32 v{vSM}, v{vT} offset:{F_TAG}")
        a(f"ds_write_b32 v{vSM}, v{vOne} offset:{F_XN}")
        a("s_mov_b64 exec, -1")
        self.stamp(3)
        a(f"v_mov_b32 v1, v{vT}")
        a(f"v_and_b32 v{vT}, s{sM10}, v{vT}")
        if self.o.get("nolocal"):
            a("s_waitcnt vmcnt(0)")
            a(f"s_mov_b32 s{sMODE}, 1")
        else:
            top, got = self.uniq("hello"), self.uniq("hellod")
            a("s_mov_b32 s73, 10")
            a.label(top)
            a("s_waitcnt vmcnt(0)")
            a("v_cmp_eq_u32 vcc, 0, v58")
            a(f"s_cbranch_vccz {got}")
            a(f"v_cmp_ne_u32 s[74:75], v58, v{vHI}")
            a("s_andn2_b64 s[74:75], s[74:75], vcc")
            a(f"s_cbranch_scc1 {got}")
            a("s_sub_u32 s73, s73, 1")
            a(f"s_cbranch_scc1 {got}")
            a("buffer_load_ubyte v58, v57, s[48:51], s71 offen sc1")
            a(f"s_branch {top}")
            a.label(got)
            a(f"v_cmp_ne_u32 vcc, v58, v{vHI}")
            a("s_nop 3")
            a("s_cmp_eq_u64 vcc, 0")
            a(f"s_cselect_b32 s{sMODE}, 2, 1")
        a("s_mov_b64 exec, 1")
        a(f"v_mov_b32 v4, s{sMODE}")
        a(f"ds_write_b32 v{vSM}, v4 offset:{F_MODE}")
        a("s_mov_b64 exec, -1")
        a(f"s_lshl_b32 s33, s{sG}, 2")
        a(f"s_lshr_b32 s34, s{sJ}, 3")
        a("s_add_u32 s33, s33, s34")
        a("s_lshl_b32 s33, s33, 13")
        a(f"s_and_b32 s34, s{sJ}, 7")
        a("s_lshl_b32 s34, s34, 4")
        a("s_add_u32 s33, s33, s34")
        a(f"s_add_u32 s76, s33, {FX}")
        a(f"v_lshlrev_b32 v{vF}, 7, v0")
        a(f"v_lshlrev_b32 v{vXF}, 16, v{vXF}")
        self.glu_ids(70, 71, 72)
        a(f"s_cbranch_scc1 {self.lab('hasglu')}")
        self.signal(vSM, F_CG, vOne)
        a(f"s_branch {self.lab('final')}")
        a.label(self.lab("hasglu"))
        a("v_lshrrev_b32 v4, 4, v0")
        a("v_and_b32 v5, 1, v0")
        a(f"v_mul_u32_u24 v6, {XNS}, v5")
        a("v_lshl_add_u32 v6, v4, 4, v6")
        a("s_lshl_b32 s33, s72, 7")
        a(f"s_add_u32 s33, s33, {SM+XN}")
        a("v_add_u32 v6, s33, v6")
        a("ds_read_b128 v[8:11], v6")
        a("ds_read_b128 v[12:15], v6 offset:64")
        a("v_lshlrev_b32 v63, 4, v4")
        a("v_lshl_add_u32 v63, v5, 9, v63")
        self.tr_addr(16, 7, False, 17, 18, 19)
        for ct in range(1, 4):
            a(f"v_xor_b32 v{16+ct}, {ct << 5:#x}, v16")
        a("s_lshl_b32 s33, s71, 13")
        a(f"s_add_u32 s74, s33, {GX}")
        a("s_lshl_b32 s34, s72, 10")
        a("s_add_u32 s73, s74, s34")
        a("s_add_u32 s75, s74, 4096")
        self.wait_flag(vSM, F_PROG, max(TH["g"], TH["u"]), 20)
        AB, ACC = 64, 24
        for mat in range(2):
            for ct in range(4):
                for ks in range(2):
                    for t in range(2):
                        r = AB + (ct * 2 + ks) * 4 + t * 2
                        a(f"ds_read_b64_tr_b16 v[{r}:{r+1}], v{16+ct} offset:{W1 + mat*8192 + ks*4096 + t*2048}")
            a("s_waitcnt lgkmcnt(0)")
            if mat == 1:
                self.signal(vSM, F_CG, vOne)
            for ks in range(2):
                for ct in range(4):
                    d = ACC + (mat * 4 + ct) * 4
                    r = AB + ct * 8 + 4 * ks
                    a(f"{MFMA} v[{d}:{d+3}], v[{r}:{r+3}], v[{8+4*ks}:{11+4*ks}], {'0' if ks == 0 else f'v[{d}:{d+3}]'}")
            if mat == 0:
                a("s_nop 3")
        for r in range(ACC, ACC + 32):
            self.tag(r, vT, sM10)
        if self.o.get("bal"):
            a(f"s_cmp_lt_u32 s{sJ}, 24")
            a(f"s_cselect_b32 s{sMODE}, s{sMODE}, 1")
        self.publish("g", [f"buffer_store_dwordx4 v[{ACC+4*tile}:{ACC+4*tile+3}], v63, s[40:43], s73 offen offset:{(tile >> 2)*256 + (tile & 3)*64} sc1" for tile in range(8)], M_J01)
        a("v_lshlrev_b32 v6, 4, v0")
        gl = [f"buffer_load_dwordx4 v[{64+4*t}:{67+4*t}], v6, s[40:43], s{74 + (t >> 2)} offen offset:{1024*(t & 3)} sc1" for t in range(8)]
        if "g" in self.o["pref"]:
            for t in gl:
                a(t + self.o.get("gprefl", " nt"))
            if self.o.get("ping"):
                a("s_waitcnt vmcnt(0)")
                for t in gl:
                    a(t)
        a("v_lshrrev_b32 v7, 5, v0")
        a(f"v_mul_u32_u24 v7, {HLS}, v7")
        a("v_and_b32 v8, 3, v0")
        a("v_lshl_add_u32 v7, v8, 4, v7")
        a("v_bfe_u32 v8, v0, 2, 1")
        a("v_lshl_add_u32 v7, v8, 3, v7")
        a("v_bfe_u32 v8, v0, 3, 1")
        a("v_lshl_add_u32 v7, v8, 6, v7")
        a(f"v_add_u32 v7, v{vSM}, v7")
        a(f"v_mul_u32_u24 v59, {HLS}, v5")
        a("v_lshl_add_u32 v59, v4, 4, v59")
        a(f"v_add_u32 v59, v{vSM}, v59")
        if self.o.get("gdelay"):
            self.wait_flag(vSM, F_PROG, self.o["gdelay"], 10)
        self.poll(gl, list(range(64, 96)), vT, sM10, list(range(24, 40)), "g")
        if self.o.get("pin2") and "g" in self.o["pin2"]:
            for t in gl:
                a(re.sub(r"v\[\d+:\d+\]", "v[96:99]", t, count=1))
        for h in (16, 8, 4):
            for e in range(h):
                a(f"v_add_f32 v{64+e}, v{64+e}, v{64+h+e}")
        a("v_cvt_pk_bf16_f32 v64, v64, v65")
        a("v_cvt_pk_bf16_f32 v66, v66, v67")
        a("v_mov_b32 v68, v64")
        a("v_mov_b32 v70, v66")
        a("v_permlane16_swap_b32 v64, v68")
        a("v_permlane16_swap_b32 v66, v70")
        for base in (64, 68):
            a(f"v_and_b32 v{base+3}, s{sHI}, v{base+2}")
            a(f"v_lshlrev_b32 v{base+2}, 16, v{base+2}")
            a(f"v_and_b32 v{base+1}, s{sHI}, v{base}")
            a(f"v_lshlrev_b32 v{base}, 16, v{base}")
        for e in range(4):
            a(f"v_mul_f32 v{64+e}, {LOG2E ^ 0x80000000:#x}, v{64+e}")
        for e in range(4):
            a(f"v_exp_f32 v{64+e}, v{64+e}")
        for e in range(4):
            a(f"v_add_f32 v{64+e}, 1.0, v{64+e}")
        for e in range(4):
            a(f"v_rcp_f32 v{64+e}, v{64+e}")
        a("v_cvt_pk_bf16_f32 v64, v64, v65")
        a("v_cvt_pk_bf16_f32 v66, v66, v67")
        a(f"v_and_b32 v67, s{sHI}, v66")
        a("v_lshlrev_b32 v66, 16, v66")
        a(f"v_and_b32 v65, s{sHI}, v64")
        a("v_lshlrev_b32 v64, 16, v64")
        for e in range(4):
            a(f"v_mul_f32 v{64+e}, v{64+e}, v{68+e}")
        a("v_cvt_pk_bf16_f32 v64, v64, v65")
        a("v_cvt_pk_bf16_f32 v65, v66, v67")
        self.exec_((0x0000FFFF, 0x0000FFFF))
        a(f"ds_write_b64 v7, v[64:65] offset:{HL}")
        self.exec_(-1)
        a(f"ds_read_b128 v[8:11], v59 offset:{HL}")
        a(f"ds_read_b128 v[12:15], v59 offset:{HL+64}")
        a("v_lshlrev_b32 v63, 4, v4")
        a("v_lshl_add_u32 v63, v5, 6, v63")
        a("s_lshl_b32 s33, s71, 7")
        if self.o.get("dsh"):
            a(f"s_add_u32 s72, s72, {self.o['dsh']}")
            a("s_and_b32 s72, s72, 7")
        a("s_lshl_b32 s34, s72, 15")
        a("s_add_u32 s73, s33, s34")
        a(f"s_add_u32 s72, s73, {FX + 32*128}")
        for ct in range(1, 4):
            a(f"s_add_u32 s{72+ct}, s{71+ct}, {FXS}")
        self.stamp(15)
        self.wait_flag(vSM, F_PROG, TH["d"], 20)
        for ct in range(4):
            for ks in range(2):
                for t in range(2):
                    r = AB + (ct * 2 + ks) * 4 + t * 2
                    a(f"ds_read_b64_tr_b16 v[{r}:{r+1}], v{16+ct} offset:{W1 + ks*4096 + t*2048}")
        for ks in range(2):
            for ct in range(4):
                if ks == 0:
                    a(f"s_waitcnt lgkmcnt({12-4*ct})")
                d = ACC + ct * 4
                r = AB + (ct * 2 + ks) * 4
                a(f"{MFMA} v[{d}:{d+3}], v[{r}:{r+3}], v[{8+4*ks}:{11+4*ks}], {'0' if ks == 0 else f'v[{d}:{d+3}]'}")
        for r in range(ACC, ACC + 16):
            self.tag(r, vT, sM10)
        self.publish("y", [f"buffer_store_dwordx4 v[{ACC+4*ct}:{ACC+4*ct+3}], v63, s[40:43], s{72 + ct} offen sc1" for ct in range(4)], M_J01, local=False)
        self.stamp(11)
        a.label(self.lab("final"))
        for e in range(4):
            a(f"v_mov_b32 v{8+e}, 0")
        a("s_barrier")
        a("s_setprio 2")
        ld = f"buffer_load_dwordx4 v[8:11], v{vF}, s[40:43], s76 offen sc1"
        if self.o.get("ysplit", 1):
            a("s_waitcnt vmcnt(0)")
            self.exec_((0, 0x0FFFFFFF))
            self.poll([ld], [8, 9, 10, 11], vT, sM10, [12, 13, 16], "y", (0, 0x0FFFFFFF))
            self.exec_(-1)
            self.half_fold(8, 14)
            a("v_cvt_pk_bf16_f32 v14, v14, v14")
            a(f"v_and_b32 v14, s{sHI}, v14")
            a("v_mov_b32 v15, v14")
            a("v_permlane32_swap_b32 v15, v14")
            a(f"v_mul_f32 v9, {LOG2E ^ 0x80000000:#x}, v14")
            a("v_exp_f32 v9, v9")
            a("v_add_f32 v9, 1.0, v9")
            a("v_rcp_f32 v9, v9")
            a("v_mul_f32 v14, v14, v9")
            a("v_cvt_pk_bf16_f32 v14, v14, v14")
            a(f"v_and_b32 v14, s{sHI}, v14")
            self.exec_((0xFFFFFFFF, 0))
            self.stamp(12)
            a("s_barrier")
            self.poll([ld], [8, 9, 10, 11], vT, sM10, [12, 13, 16], "s", (0xFFFFFFFF, 0))
            self.stamp(13)
            self.half_fold(8, 12)
            a("v_cvt_pk_bf16_f32 v12, v12, v12")
            a(f"v_and_b32 v12, s{sHI}, v12")
        else:
            self.exec_((0xFFFFFFFF, 0x0FFFFFFF))
            self.stamp(12)
            a("s_barrier")
            if self.o.get("fsleep"):
                a(f"s_sleep {self.o['fsleep']}")
            if self.o.get("sfl"):
                ld = ld.replace(" sc1", " " + self.o["sfl"])
            self.poll([ld], [8, 9, 10, 11], vT, sM10, [12, 13], "s")
            self.stamp(13)
            self.exec_(-1)
            self.half_fold(8, 12)
            self.rnd(14, 12)
            self.rnd(12)
            a("s_mov_b32 s34, 0x01010101")
            a("v_permlane32_swap_b32 v12, v14")
            a(f"v_mul_f32 v9, {LOG2E ^ 0x80000000:#x}, v14")
            a("v_exp_f32 v9, v9")
            a("s_mov_b32 exec_lo, s34")
            a("v_add_f32 v9, 1.0, v9")
            a("v_rcp_f32 v9, v9")
            a("s_mov_b32 exec_hi, 0")
            a("v_mul_f32 v14, v14, v9")
            self.rnd(14)
        a("v_mul_f32 v12, v12, v14")
        self.rnd(12)
        a(f"v_add_f32 v12, v12, v{vXF}")
        a("v_cvt_pk_bf16_f32 v12, v12, v12")
        if self.o.get("ysplit", 1):
            self.exec_((0x01010101, 0))
        a(f"buffer_store_short v12, v{vOO}, s[44:47], 0 offen{self.o.get('outfl', '')}")
        a("s_cmp_lg_u32 s2, 0")
        a(f"s_cbranch_scc1 {self.lab('noepoch')}")
        a("s_mov_b64 exec, 1")
        a(f"buffer_store_dword v1, off, s[40:43], 0{self.o.get('epfl', ' sc1')}")
        a.label(self.lab("noepoch"))
        self.stamp(14)
        self.amp("end")
        self.flush_stamps()
        a("s_endpgm")
        self.emit_far()

    def cwave(self):
        a = self.a
        TH, BASE = self.TH, self.BASE
        a.c("================= compute waves =================")
        cs = self.o.get("cslots")
        self.init_stamps(cs[0] if cs else [4, 5, 6, 7, 8, 9, 10])
        who = lambda slot: (6 if slot in cs[1] else 0) if cs else (6 if slot in (8, 9) else 0)
        sC = 70
        vSM, vT, vT8, vOne, vQ, vH = 2, 3, 4, 5, 6, 7
        a(f"s_sub_u32 s{sC}, s{sW}, 2")
        a(f"v_mov_b32 v{vSM}, {SM:#x}")
        a(f"v_mov_b32 v{vOne}, 1")
        a(f"s_movk_i32 s{sM10}, 0x3ff")
        a(f"s_movk_i32 s{sM8}, 0xff")
        a(f"s_mov_b32 s{sHI}, 0xffff0000")
        if not self.o.get("noprefetch") and not self.o.get("lpf"):
            a(f"s_cmp_lg_u32 s{sC}, 7")
            a(f"s_cbranch_scc1 {self.lab('nopf')}")
            a("s_getpc_b64 s[34:35]")
            a.label(self.lab("pcref"))
            a(f"s_sub_u32 s34, s34, {self.lab('pcref')}-{self.name}")
            a("s_subb_u32 s35, s35, 0")
            a("v_lshlrev_b32 v8, 7, v0")
            a(f"v_min_u32 v9, {self.lab('codeend')}-{self.name}-4, v8")
            a("global_load_dword v9, v9, s[34:35]")
            a("v_add_u32 v8, 0x2000, v8")
            a(f"v_min_u32 v8, {self.lab('codeend')}-{self.name}-4, v8")
            a("global_load_dword v10, v8, s[34:35]")
            a.label(self.lab("nopf"))
        a(f"v_lshrrev_b32 v{vQ}, 4, v0")
        a(f"v_lshlrev_b32 v{vQ}, 4, v{vQ}")
        a(f"v_bfe_u32 v{vH}, v0, 2, 2")
        vKA, vQB, vMW, vMR, vPW, vPR, vVA, vVT, vPub = 12, 16, 17, 18, 19, 20, 21, 22, 23
        a("v_and_b32 v8, 15, v0")
        a("v_lshrrev_b32 v11, 4, v0")
        a("v_xor_b32 v11, v8, v11")
        a("v_lshlrev_b32 v11, 4, v11")
        a("v_lshl_add_u32 v11, v8, 8, v11")
        a(f"s_lshl_b32 s33, s{sC}, 13")
        a(f"s_add_u32 s33, s33, {KB}")
        a(f"v_add_u32 v{vKA}, s33, v11")
        for ks in range(1, 4):
            a(f"v_xor_b32 v{vKA+ks}, {ks << 6:#x}, v{vKA}")
        a(f"v_mul_u32_u24 v{vQB}, {QLS}, v{vH}")
        a(f"v_add3_u32 v{vQB}, v{vQB}, v{vQ}, v{vSM}")
        a(f"v_lshl_add_u32 v{vMR}, v{vH}, 5, v{vSM}")
        a(f"s_lshl_b32 s33, s{sC}, 2")
        a(f"v_add_u32 v{vMW}, s33, v{vMR}")
        a(f"v_mul_u32_u24 v{vPR}, {PLS}, v{vH}")
        a(f"v_add3_u32 v{vPR}, v{vPR}, v{vQ}, v{vSM}")
        a(f"s_lshl_b32 s33, s{sC}, 6")
        a(f"v_add_u32 v{vPW}, s33, v{vPR}")
        self.tr_addr(24, 8, True, 25, 26, 27)
        a(f"s_lshl_b32 s33, s{sC}, 6")
        a("s_and_b32 s33, s33, 0xc0")
        a("v_xor_b32 v24, s33, v24")
        a(f"v_add_u32 v{vVA}, {VB:#x}, v24")
        a(f"v_add_u32 v{vVT}, {W2:#x}, v24")
        a(f"v_lshl_add_u32 v{vPub}, v{vH}, 14, v{vQ}")
        a("v_and_b32 v25, 1, v0")
        a(f"v_lshl_add_u32 v{vPub}, v25, 6, v{vPub}")
        a(f"s_lshl_b32 s33, s{sG}, 16")
        a(f"s_lshl_b32 s34, s{sB}, 13")
        a("s_add_u32 s33, s33, s34")
        a(f"s_lshl_b32 s34, s{sS}, 9")
        a("s_add_u32 s33, s33, s34")
        a(f"s_add_u32 s76, s33, {OX}")
        a(f"s_lshl_b32 s34, s{sC}, 7")
        a("s_add_u32 s71, s76, s34")
        a(f"s_lshl_b32 s33, s{sG}, 11")
        a(f"s_lshl_b32 s34, s{sB}, 8")
        a("s_add_u32 s33, s33, s34")
        a(f"s_lshl_b32 s34, s{sS}, 4")
        a("s_add_u32 s33, s33, s34")
        a(f"s_add_u32 s77, s33, {MLX}")
        if self.o.get("touch"):
            a(f"s_cmp_lg_u32 s{sC}, 6")
            a(f"s_cbranch_scc1 {self.lab('notouch')}")
            a("s_waitcnt lgkmcnt(0)")
            a(f"s_lshl_b32 s33, s{sB}, 3")
            a(f"s_add_u32 s33, s33, s{sG}")
            a("s_lshl_b32 s33, s33, 23")
            a(f"s_add_u32 s33, s33, {28672*256}")
            a(f"s_lshl_b32 s34, s{sG}, 19")
            a("v_mov_b32 v30, 0")
            for p_, o_ in ((16, None), (18, None), (6, "s33"), (8, "s33"), (20, None), (12, "s34")):
                if o_:
                    a(f"s_add_u32 s44, s{p_}, {o_}")
                    a(f"s_addc_u32 s45, s{p_+1}, 0")
                    a("s_mov_b64 exec, 1")
                    a(f"global_load_dword v31, v30, s[44:45]{self.o['touch']}")
                else:
                    a("s_mov_b64 exec, 1")
                    a(f"global_load_dword v31, v30, s[{p_}:{p_+1}]{self.o['touch']}")
            a("s_mov_b64 exec, -1")
            a.label(self.lab("notouch"))
        self.tr_addr(11, 7, False, 25, 26, 27)
        a(f"s_lshl_b32 s33, s{sC}, 5")
        a("v_xor_b32 v11, s33, v11")
        a("s_waitcnt lgkmcnt(0)")
        self.srd(40, 26, None, WS_USE)
        a("s_barrier")
        if self.o.get("bare"):
            if self.o.get("spin"):
                a(f"s_cmp_ge_u32 s{sC}, {self.o['spin']}")
                a(f"s_cbranch_scc1 {self.lab('end')}")
                self.wait_flag(vSM, F_PROG, 184, 8)
            if self.o.get("mon"):
                a(f"s_cmp_lg_u32 s{sC}, 0")
                a(f"s_cbranch_scc1 {self.lab('end')}")
                self.init_stamps([3, 4, 5, 6, 7, 8, 9, 10][:len(self.o["mon"])])
                for i, th in enumerate(self.o["mon"]):
                    self.wait_flag(vSM, F_PROG, th, 8)
                    self.stamp(3 + i)
                self.flush_stamps()
            a("s_endpgm")
        self.wait_flag(vSM, F_XN, 1, 8)
        a(f"ds_read_b32 v{vT}, v{vSM} offset:{F_TAG}")
        a(f"s_cmp_ge_u32 s{sC}, 4")
        a(f"s_cbranch_scc1 {self.lab('noq')}")
        a("v_and_b32 v26, 1, v0")
        a(f"v_mul_u32_u24 v25, {XNS}, v26")
        a(f"v_add_u32 v25, v25, v{vQ}")
        a(f"s_lshr_b32 s34, s{sJ}, 3")
        a("s_lshl_b32 s33, s34, 8")
        a(f"s_add_u32 s33, s33, {SM+XN}")
        a("v_add_u32 v25, s33, v25")
        for ks in range(4):
            a(f"ds_read_b128 v[{32+4*ks}:{35+4*ks}], v25 offset:{64*ks}")
        a(f"v_lshl_add_u32 v26, v26, 13, v{vQ}")
        a(f"s_lshl_b32 s33, s{sG}, 14")
        a("s_lshl_b32 s34, s34, 11")
        a("s_add_u32 s72, s33, s34")
        a(f"s_and_b32 s34, s{sJ}, 7")
        a("s_lshl_b32 s34, s34, 8")
        a("s_add_u32 s72, s72, s34")
        a(f"s_lshl_b32 s34, s{sC}, 6")
        a("s_add_u32 s72, s72, s34")
        a(f"s_add_u32 s72, s72, {QX}")
        a(f"s_lshl_b32 s34, s{sB}, 13")
        a("s_add_u32 s33, s33, s34")
        a(f"s_lshl_b32 s34, s{sC}, 9")
        a("s_add_u32 s33, s33, s34")
        a(f"s_add_u32 s73, s33, {QX}")
        a("s_add_u32 s74, s73, 4096")
        a("v_lshrrev_b32 v27, 5, v0")
        a("v_and_b32 v28, 31, v0")
        a("v_lshlrev_b32 v27, 11, v27")
        a("v_lshl_add_u32 v27, v28, 4, v27")
        a(f"s_mul_i32 s33, s{sC}, {QLS}")
        a(f"s_add_u32 s33, s33, {SM+QL}")
        a("v_lshl_add_u32 v28, v28, 3, s33")
        self.wait_flag(vSM, F_PROG, TH["q"], 8)
        for ks in range(4):
            for t in range(2):
                r = 48 + ks * 4 + t * 2
                a(f"ds_read_b64_tr_b16 v[{r}:{r+1}], v11 offset:{W0 + ks*4096 + t*2048}")
        a(f"v_and_b32 v{vT8}, s{sM8}, v{vT}")
        for ks in range(4):
            a(f"s_waitcnt lgkmcnt({6-2*ks})")
            r = 48 + ks * 4
            a(f"{MFMA} v[64:67], v[{r}:{r+3}], v[{32+4*ks}:{35+4*ks}], {'0' if ks == 0 else 'v[64:67]'}")
        self.signal(vSM, F_CQ, vOne)
        for e in range(4):
            a(f"v_add_u32 v{64+e}, 0x80, v{64+e}")
        for e in range(4):
            self.tag(64 + e, vT8, sM8)
        self.wait_flag(vSM, F_MODE, 1, 8)
        a(f"v_readfirstlane_b32 s{sMODE}, v8")
        self.publish("q", ["buffer_store_dwordx4 v[64:67], v26, s[40:43], s72 offen sc1"], M_J01)
        self.stamp(4)
        ql = ["buffer_load_dwordx4 v[32:35], v27, s[40:43], s73 offen sc1", "buffer_load_dwordx4 v[36:39], v27, s[40:43], s74 offen sc1"]
        if "q" in self.o["pref"]:
            for t in ql:
                a(t + self.o.get("qprefl", " nt"))
            if self.o.get("pinq"):
                a("s_waitcnt vmcnt(0)")
                for t in ql:
                    a(t)
        if self.o.get("qdelay"):
            self.wait_flag(vSM, F_PROG, self.o["qdelay"], 8)
        self.poll(ql, list(range(32, 40)), vT8, sM8, [40, 41, 42, 43, 44], "q")
        if self.o.get("pin2") and "q" in self.o["pin2"]:
            for t in ql:
                a(re.sub(r"v\[\d+:\d+\]", "v[92:95]", t, count=1))
        for e in range(8):
            a(f"v_xor_b32 v{32+e}, v{vT8}, v{32+e}")
        for e in range(4):
            a(f"v_add_f32 v{32+e}, v{32+e}, v{36+e}")
        a("v_permlane32_swap_b32 v32, v33")
        a("v_permlane32_swap_b32 v34, v35")
        a("v_add_f32 v32, v32, v33")
        a("v_add_f32 v34, v34, v35")
        a("v_mov_b32 v33, v32")
        a("v_mov_b32 v35, v34")
        a("v_permlane32_swap_b32 v32, v33")
        a("v_permlane32_swap_b32 v34, v35")
        a("v_cvt_pk_bf16_f32 v32, v32, v33")
        a("v_cvt_pk_bf16_f32 v33, v34, v35")
        self.exec_((0xFFFFFFFF, 0))
        a("ds_write_b64 v28, v[32:33]")
        self.signal(vSM, F_QR, vOne)
        self.stamp(5)
        a(f"s_branch {self.lab('scores')}")
        a.label(self.lab("noq"))
        self.wait_flag(vSM, F_MODE, 1, 8)
        a(f"v_readfirstlane_b32 s{sMODE}, v8")
        a.label(self.lab("scores"))
        a("s_waitcnt lgkmcnt(0)" if self.o.get("lpf") else "s_waitcnt vmcnt(0) lgkmcnt(0)")
        a(f"v_and_b32 v{vT}, s{sM10}, v{vT}")
        a(f"s_lshl_b32 s34, s{sC}, 3")
        a(f"s_add_u32 s34, s34, {BASE['k'] + 8}")
        self.wait_flag(vSM, F_PROG, "s34", 8)
        KA, S = 48, 80
        for tt in range(2):
            for ks in range(4):
                r = KA + (tt * 4 + ks) * 4
                a(f"ds_read_b128 v[{r}:{r+3}], v{vKA+ks} offset:{4096*tt}")
        self.wait_flag(vSM, F_QR, 4, 8)
        for ks in range(4):
            a(f"ds_read_b128 v[{32+4*ks}:{35+4*ks}], v{vQB} offset:{QL + 64*ks}")
        for ks in range(4):
            a(f"s_waitcnt lgkmcnt({3-ks})")
            for tt in range(2):
                r = KA + (tt * 4 + ks) * 4
                d = S + 4 * tt
                a(f"{MFMA} v[{d}:{d+3}], v[{r}:{r+3}], v[{32+4*ks}:{35+4*ks}], {'0' if ks == 0 else f'v[{d}:{d+3}]'}")
        for i in range(8):
            self.rnd(S + i)
        for i in range(8):
            a(f"v_mul_f32 v{S+i}, {SCALE:#x}, v{S+i}")
        for i in range(8):
            self.rnd(S + i)
        a(f"v_max3_f32 v32, v{S}, v{S+1}, v{S+2}")
        a(f"v_max3_f32 v33, v{S+3}, v{S+4}, v{S+5}")
        a(f"v_max3_f32 v32, v32, v{S+6}, v{S+7}")
        a("v_max_f32 v32, v32, v33")
        self.swap_reduce("v_max_f32", 32, 33, 16)
        self.swap_reduce("v_max_f32", 32, 33, 32)
        self.exec_(0x1111)
        a(f"ds_write_b32 v{vMW}, v32 offset:{MX}")
        self.signal(vSM, F_MAX, vOne)
        a(f"s_mov_b32 s34, {LOG2E:#x}")
        self.wait_flag(vSM, F_MAX, 8, 8)
        a(f"ds_read_b128 v[32:35], v{vMR} offset:{MX}")
        a(f"ds_read_b128 v[36:39], v{vMR} offset:{MX+16}")
        a("s_waitcnt lgkmcnt(0)")
        a("v_max3_f32 v32, v32, v33, v34")
        a("v_max3_f32 v35, v35, v36, v37")
        a("v_max3_f32 v32, v32, v38, v39")
        vM = 8
        a(f"v_max_f32 v{vM}, v32, v35")
        for i in range(8):
            a(f"v_sub_f32 v{S+i}, v{S+i}, v{vM}")
        for i in range(8):
            a(f"v_mul_f32 v{S+i}, s34, v{S+i}")
        for i in range(8):
            a(f"v_exp_f32 v{S+i}, v{S+i}")
        for i in range(4):
            a(f"v_cvt_pk_bf16_f32 v{32+i}, v{S+2*i}, v{S+2*i+1}")
        self.exec_(M_J4)
        a(f"ds_write_b128 v{vPW}, v[32:35] offset:{PL}")
        self.exec_(-1)
        for i in range(4):
            a(f"v_add_f32 v{S+i}, v{S+i}, v{S+4+i}")
        a(f"v_add_f32 v{S}, v{S}, v{S+1}")
        a(f"v_add_f32 v{S+2}, v{S+2}, v{S+3}")
        a(f"v_add_f32 v{S}, v{S}, v{S+2}")
        self.swap_reduce("v_add_f32", S, S + 1, 16)
        self.swap_reduce("v_add_f32", S, S + 1, 32)
        self.exec_(0x1111)
        a(f"ds_write_b32 v{vMW}, v{S} offset:{LS}")
        self.signal(vSM, F_P, vOne)
        a(f"s_cmp_ge_u32 s{sC}, 4")
        a(f"s_cbranch_scc1 {self.lab('comb')}")
        a("s_setprio 2")
        self.wait_flag(vSM, F_P, 8, 9)
        PB = 32
        for ks in range(8):
            a(f"ds_read_b128 v[{PB+4*ks}:{PB+4*ks+3}], v{vPR} offset:{PL + 64*ks}")
        self.stamp(6)
        a(f"s_cmp_lg_u32 s{sC}, 0")
        a(f"s_cbranch_scc1 {self.lab('noml')}")
        a(f"ds_read_b128 v[64:67], v{vMR} offset:{LS}")
        a(f"ds_read_b128 v[68:71], v{vMR} offset:{LS+16}")
        a(f"v_lshlrev_b32 v72, 9, v{vH}")
        a("s_waitcnt lgkmcnt(0)")
        for e in range(4):
            a(f"v_add_f32 v{64+e}, v{64+e}, v{68+e}")
        a("v_add_f32 v64, v64, v65")
        a("v_add_f32 v66, v66, v67")
        a("v_add_f32 v65, v64, v66")
        self.tag(64, vT, sM10, vM)
        self.tag(65, vT, sM10)
        a("v_mov_b32 v66, v64")
        a("v_mov_b32 v67, v65")
        self.publish("m", ["buffer_store_dwordx4 v[64:67], v72, s[40:43], s77 offen sc1"], 0x1111)
        a.label(self.lab("noml"))
        O = 96
        a(f"v_xor_b32 v24, 32, v{vVA}")
        a(f"v_xor_b32 v25, 32, v{vVT}")
        a("v_and_b32 v28, 1, v0")
        a(f"v_mul_u32_u24 v29, {OLS}, v28")
        a(f"v_add3_u32 v29, v29, v{vQ}, v{vSM}")
        a(f"v_lshl_add_u32 v28, v28, 6, v{vQ}")
        if self.o.get("wsh"):
            a(f"s_add_u32 s33, s{sJ}, {self.o['wsh']}")
            a("s_and_b32 s33, s33, 7")
        else:
            a(f"s_and_b32 s33, s{sJ}, 7")
        a("s_lshl_b32 s33, s33, 2")
        a(f"s_add_u32 s33, s33, s{sC}")
        a("s_lshl_b32 s33, s33, 13")
        a(f"s_lshl_b32 s34, s{sG}, 2")
        a(f"s_lshr_b32 s72, s{sJ}, 3")
        a("s_add_u32 s34, s34, s72")
        a("s_lshl_b32 s34, s34, 7")
        a("s_add_u32 s33, s33, s34")
        a(f"s_add_u32 s72, s33, {FX}")

        def pv(grp, thr):
            self.wait_flag(vSM, F_PROG, thr, 9)
            for n, ks in enumerate(grp):
                for u in range(2):
                    for t in range(2):
                        r = 64 + n * 8 + u * 4 + t * 2
                        if ks < 7:
                            a(f"ds_read_b64_tr_b16 v[{r}:{r+1}], v{24 if u else vVA} offset:{ks*8192 + t*4096}")
                        else:
                            a(f"ds_read_b64_tr_b16 v[{r}:{r+1}], v{25 if u else vVT} offset:{t*4096}")
            for n, ks in enumerate(grp):
                for u in range(2):
                    a(f"s_waitcnt lgkmcnt({4*(len(grp)-1-n) + 2*(1-u)})")
                    r = 64 + n * 8 + u * 4
                    d = O + 4 * u
                    a(f"{MFMA} v[{d}:{d+3}], v[{r}:{r+3}], v[{PB+4*ks}:{PB+4*ks+3}], {'0' if ks == 0 else f'v[{d}:{d+3}]'}")

        bv = BASE["v"]

        def ppre(k):
            if self.o.get("ppre") == k:
                self.exec_((0x33333333, 0x33333333))
                a(f"buffer_load_dwordx4 v[88:91], v{vPub}, s[40:43], s71 offen sc1 nt")
                self.exec_(-1)

        ppre(0)
        pv((0, 1, 2), bv + 24)
        ppre(3)
        pv((3,), bv + 32)
        ppre(4)
        pv((4,), bv + 40)
        ppre(5)
        pv((5,), bv + 48)
        ppre(6)
        pv((6,), bv + 56)
        ppre(7)
        a("s_mov_b32 s34, 0x22222222")
        a("s_mov_b32 s35, 0x22222222")
        pv((7,), TH["t"])
        self.exec_((0x33333333, 0x33333333))
        a(f"s_cmp_eq_u32 s{sMODE}, 2")
        for e in range(4):
            a(f"v_cndmask_b32 v{O+e}, v{O+e}, v{O+4+e}, s[34:35]")
        for e in range(4):
            self.tag(O + e, vT, sM10)
        self.publish("o", [f"buffer_store_dwordx4 v[{O}:{O+3}], v{vPub}, s[40:43], s71 offen sc1"], None, precmp=True)
        if self.o.get("hold"):
            self.signal(vSM, F_OS, vOne)
        self.stamp(7)
        self.fine("opub", 94)
        self.fine_flush("opub", 94)
        if self.o.get("spre"):
            a(f"v_add_u32 v84, -1, v{vT}")
            for e in range(1, 4):
                a(f"v_mov_b32 v{84+e}, v84")
            if self.o["spre"] > 1:
                self.wait_flag(vSM, F_PROG, self.o["spre"], 9)
            self.exec_(M_J01)
            a("buffer_store_dwordx4 v[84:87], v28, s[40:43], s72 offen sc1")
            self.exec_(-1)
        self.wait_flag(vSM, F_PROG, max(TH["o"], TH["p"]), 9)
        for ks in range(4):
            for t in range(2):
                r = 48 + ks * 4 + t * 2
                a(f"ds_read_b64_tr_b16 v[{r}:{r+1}], v11 offset:{W0 + ks*4096 + t*2048}")
        a("s_waitcnt lgkmcnt(0)")
        a("s_barrier")
        for ks in range(4):
            a(f"ds_read_b128 v[{32+4*ks}:{35+4*ks}], v29 offset:{OL + 64*ks}")
        for ks in range(4):
            a(f"s_waitcnt lgkmcnt({3-ks})")
            r = 48 + ks * 4
            a(f"{MFMA} v[80:83], v[{r}:{r+3}], v[{32+4*ks}:{35+4*ks}], {'0' if ks == 0 else 'v[80:83]'}")
        self.exec_(M_J01)
        for e in range(4):
            self.tag(80 + e, vT, sM10)
        self.publish("s", ["buffer_store_dwordx4 v[80:83], v28, s[40:43], s72 offen sc1"], None, local=False, restore=None)
        self.stamp(10)
        if self.o.get("ack", 1):
            a("s_waitcnt vmcnt(0)")
        a("s_barrier")
        a.label(self.lab("cend"))
        self.flush_stamps(who)
        a("s_endpgm")
        a.label(self.lab("comb"))
        a("s_setprio 1")
        if "o" in self.o["pref"]:
            a(f"s_cmp_ge_u32 s{sC}, 6")
            a(f"s_cbranch_scc1 {self.lab('pre6')}")
            a("v_lshrrev_b32 v27, 5, v0")
            a("v_and_b32 v28, 31, v0")
            a("v_lshlrev_b32 v27, 14, v27")
            a("v_lshl_add_u32 v27, v28, 4, v27")
            a(f"s_sub_u32 s33, s{sC}, 4")
            a("s_lshl_b32 s33, s33, 15")
            a("s_add_u32 s33, s33, s76")
            if self.o.get("opre_at"):
                self.wait_flag(vSM, F_PROG, self.o["opre_at"], 9)
            a(f"buffer_load_dwordx4 v[32:35], v27, s[40:43], s33 offen {self.o.get('oprefl', 'sc1 nt')}")
            if self.o.get("pin") == "ld":
                a("s_waitcnt vmcnt(0)")
                a("buffer_load_dwordx4 v[32:35], v27, s[40:43], s33 offen sc1")
            elif self.o.get("pin") == "st":
                a(f"v_add_u32 v36, -1, v{vT}")
                for e in range(1, 4):
                    a(f"v_mov_b32 v{36+e}, v36")
                a("s_waitcnt vmcnt(0)")
                a("buffer_store_dwordx4 v[36:39], v27, s[40:43], s33 offen")
            a.label(self.lab("pre6"))
        a(f"s_and_b32 s72, s{sC}, 1")
        a(f"s_bfe_u32 s75, s{sC}, 0x10001")
        a(f"s_lshr_b32 s74, s{sJ}, 3")
        a(f"s_lshl_b32 s33, s{sG}, 11")
        a("s_lshl_b32 s34, s74, 9")
        a("s_add_u32 s33, s33, s34")
        a("s_lshl_b32 s34, s72, 8")
        a("s_add_u32 s33, s33, s34")
        a(f"s_add_u32 s77, s33, {MLX}")
        a(f"v_lshlrev_b32 v24, 2, v{vQ}")
        a("v_and_b32 v26, 15, v0")
        a(f"v_lshlrev_b32 v25, 7, v{vQ}")
        a("v_lshl_add_u32 v25, v26, 4, v25")
        a(f"s_lshl_b32 s33, s{sG}, 16")
        a("s_lshl_b32 s34, s74, 14")
        a("s_add_u32 s33, s33, s34")
        a("s_lshl_b32 s34, s72, 13")
        a("s_add_u32 s33, s33, s34")
        a("s_lshl_b32 s34, s75, 8")
        a("s_add_u32 s33, s33, s34")
        a(f"s_add_u32 s73, s33, {OX}")
        a("v_and_b32 v26, 3, v0")
        a("v_lshlrev_b32 v26, 4, v26")
        a("v_bfe_u32 v27, v0, 2, 1")
        a("v_lshl_add_u32 v26, v27, 3, v26")
        a("v_bfe_u32 v27, v0, 3, 1")
        a("v_lshl_add_u32 v26, v27, 6, v26")
        a("v_bfe_u32 v27, v0, 4, 1")
        a("v_lshl_add_u32 v26, v27, 2, v26")
        a("v_lshrrev_b32 v27, 5, v0")
        a("v_lshl_add_u32 v26, v27, 1, v26")
        a(f"s_mul_i32 s33, s72, {OLS}")
        a("s_lshl_b32 s34, s75, 7")
        a("s_add_u32 s33, s33, s34")
        a(f"s_add_u32 s33, s33, {SM+OL}")
        a("v_add_u32 v26, s33, v26")
        a(f"s_mov_b32 s34, {LOG2E:#x}")
        if self.o.get("mdelay"):
            self.wait_flag(vSM, F_PROG, self.o["mdelay"], 9)
        tm = list(range(48, 58))
        ml = [f"buffer_load_dwordx4 v[{64+4*t}:{67+4*t}], v24, s[40:43], s77 offen offset:{16*t} sc1" for t in range(4)]
        ol = [f"buffer_load_dwordx4 v[{32+4*t}:{35+4*t}], v25, s[40:43], s73 offen offset:{512*t} sc1" for t in range(4)]
        merged = self.o.get("merge") and not self.o.get("skip")
        if merged:
            topA, gotm = self.uniq("pa"), self.uniq("pm")
            a.label(topA)
            a(f"s_sub_u32 s{sCAP}, s{sCAP}, 16")
            a(f"s_cbranch_scc1 {self.lab('abort')}")
            a(f"ds_read_b32 v9, v{vSM} offset:{F_PROG}")
            for t in ml:
                a(t)
            a("s_waitcnt lgkmcnt(0)")
            a(f"v_cmp_le_i32 vcc, {self.o['merge']}, v9")
            a("s_nop 0")
            a("s_mov_b64 s[74:75], vcc")
            a("s_cmp_eq_u64 s[74:75], 0")
            a(f"s_cbranch_scc1 {gotm}")
            for t in ol:
                a(t)
            a.label(gotm)
            a("s_waitcnt vmcnt(0)")
            self.check(list(range(64, 80)), vT, sM10, tm)
            a(f"s_cbranch_vccnz {topA}")
        else:
            self.poll(ml, list(range(64, 80)), vT, sM10, tm, "m")
        for t in range(4):
            a(f"v_xor_b32 v{80+2*t}, v{vT}, v{64+4*t}")
        a("v_max3_f32 v8, v80, v82, v84")
        a("v_max_f32 v8, v8, v86")
        self.swap_reduce("v_max_f32", 8, 9, 16)
        self.swap_reduce("v_max_f32", 8, 9, 32)
        for t in range(4):
            a(f"v_sub_f32 v{80+2*t}, v{80+2*t}, v8")
        for t in range(4):
            a(f"v_mul_f32 v{80+2*t}, s34, v{80+2*t}")
        for t in range(4):
            a(f"v_exp_f32 v{80+2*t}, v{80+2*t}")
        a("v_mul_f32 v8, v80, v65")
        for t in range(1, 4):
            a(f"v_fmac_f32 v8, v{80+2*t}, v{65+4*t}")
        self.swap_reduce("v_add_f32", 8, 9, 16)
        self.swap_reduce("v_add_f32", 8, 9, 32)
        a("v_rcp_f32 v8, v8")
        for t in range(4):
            a(f"v_mul_f32 v{80+2*t}, v{80+2*t}, v8")
        self.stamp(8)
        self.stamp(11) if self.o.get("fine") else None
        if merged:
            topB, chk = self.uniq("pb"), self.uniq("pc")
            a("s_cmp_lg_u64 s[74:75], 0")
            a(f"s_cbranch_scc1 {chk}")
            self.wait_flag(vSM, F_PROG, self.o["merge"], 9)
            ACCR = 60 if self.o.get("opipe") else 32

            def pkops(base):
                pk = [f"v_pk_mul_f32 v[{ACCR+2*h}:{ACCR+1+2*h}], v[{base+2*h}:{base+1+2*h}], v[80:81] op_sel_hi:[1,0]" for h in range(2)]
                for t in range(1, 4):
                    for h in range(2):
                        pk.append(f"v_pk_fma_f32 v[{ACCR+2*h}:{ACCR+1+2*h}], v[{base+4*t+2*h}:{base+1+4*t+2*h}], v[{80+2*t}:{81+2*t}], v[{ACCR+2*h}:{ACCR+1+2*h}] op_sel_hi:[1,0,1]")
                return pk
            inter = self.o.get("inter", 1)
            if self.o.get("opipe"):
                olB = [f"buffer_load_dwordx4 v[{64+4*t}:{67+4*t}], v25, s[40:43], s73 offen offset:{512*t} sc1" for t in range(4)]
                done = self.uniq("pz")
                for t in ol:
                    a(t)
                a.label(topB)
                a(f"s_sub_u32 s{sCAP}, s{sCAP}, 16")
                a(f"s_cbranch_scc1 {self.lab('abort')}")
                for t in olB:
                    a(t)
                a("s_waitcnt vmcnt(4)")
                self.extra = pkops(32)
                self.check(list(range(32, 48)), vT, sM10, tm)
                a(f"s_cbranch_vccz {done}")
                for t in ol:
                    a(t)
                a("s_waitcnt vmcnt(4)")
                self.extra = pkops(64)
                self.check(list(range(64, 80)), vT, sM10, tm)
                a(f"s_cbranch_vccnz {topB}")
                a(f"s_branch {done}")
                a.label(chk)
                self.extra = pkops(32)
                self.check(list(range(32, 48)), vT, sM10, tm)
                self.extra = []
                a(f"s_cbranch_vccz {done}")
                for t in ol:
                    a(t)
                a(f"s_branch {topB}")
                a.label(done)
            else:
                first = self.uniq("pf")
                a(f"s_branch {first}")
                a.label(topB)
                if self.o.get("osleep"):
                    a(f"s_sleep {self.o['osleep']}")
                a.label(first)
                a(f"s_sub_u32 s{sCAP}, s{sCAP}, 16")
                a(f"s_cbranch_scc1 {self.lab('abort')}")
                for t in ol:
                    a(t)
                a("s_waitcnt vmcnt(0)")
                a.label(chk)
                self.extra = pkops(32) if inter else []
                self.check(list(range(32, 48)), vT, sM10, tm)
                self.extra = []
                a(f"s_cbranch_vccnz {topB}")
        else:
            if self.o.get("odelay"):
                self.wait_flag(vSM, F_PROG, self.o["odelay"], 9)
            inter = self.o.get("inter", 1) and not self.o.get("masked") and not self.o.get("skip")
            pk = [f"v_pk_mul_f32 v[{32+2*h}:{33+2*h}], v[{32+2*h}:{33+2*h}], v[80:81] op_sel_hi:[1,0]" for h in range(2)]
            for t in range(1, 4):
                for h in range(2):
                    pk.append(f"v_pk_fma_f32 v[{32+2*h}:{33+2*h}], v[{32+4*t+2*h}:{33+4*t+2*h}], v[{80+2*t}:{81+2*t}], v[{32+2*h}:{33+2*h}] op_sel_hi:[1,0,1]")
            if self.o.get("hold"):
                top, chk = self.uniq("p"), self.uniq("pc")
                for t in ol:
                    a(t + " nt")
                self.wait_flag(vSM, F_OS, 4, 9)
                if self.o["hold"][1] > 4 and self.o.get("holdwait", 1):
                    a("s_waitcnt vmcnt(0)")
                for t in ol:
                    a(t)
                self.signal(vSM, F_OS, vOne)
                a(f"s_branch {chk}")
                a.label(top)
                a(f"s_sub_u32 s{sCAP}, s{sCAP}, 16")
                a(f"s_cbranch_scc1 {self.lab('abort')}")
                for t in ol:
                    a(t)
                a.label(chk)
                a("s_waitcnt vmcnt(0)")
                self.extra = list(pk) if inter else []
                self.check(list(range(32, 48)), vT, sM10, tm)
                a(f"s_cbranch_vccnz {top}")
            else:
                self.poll(ol, list(range(32, 48)), vT, sM10, tm, "o", extra=pk if inter else None)
            self.extra = []
        self.fine("ogot", 94)
        if not inter:
            for h in range(2):
                a(f"v_pk_mul_f32 v[{32+2*h}:{33+2*h}], v[{32+2*h}:{33+2*h}], v[80:81] op_sel_hi:[1,0]")
            for t in range(1, 4):
                for h in range(2):
                    a(f"v_pk_fma_f32 v[{32+2*h}:{33+2*h}], v[{32+4*t+2*h}:{33+4*t+2*h}], v[{80+2*t}:{81+2*t}], v[{32+2*h}:{33+2*h}] op_sel_hi:[1,0,1]")
        R = 60 if (merged and self.o.get("opipe")) else 32
        if R == 60:
            a("s_nop 0")
        a(f"v_permlane32_swap_b32 v{R}, v{R+1}")
        a(f"v_permlane32_swap_b32 v{R+2}, v{R+3}")
        a(f"v_add_f32 v{R}, v{R}, v{R+1}")
        a(f"v_add_f32 v{R+2}, v{R+2}, v{R+3}")
        a(f"v_permlane16_swap_b32 v{R}, v{R+2}")
        a(f"v_add_f32 v{R}, v{R}, v{R+2}")
        a(f"v_cvt_pk_bf16_f32 v{R}, v{R}, v{R}")
        a(f"ds_write_b16 v26, v{R}")
        a("s_waitcnt lgkmcnt(0)")
        a("s_barrier")
        self.stamp(9)
        self.stamp(12) if self.o.get("fine") else None
        self.fine_flush("ogot", 94)
        self.flush_stamps(who)
        a("s_endpgm")
        self.emit_far()

    def body(self):
        a = self.a
        self.far = []
        self.prologue()
        self.loader()
        a.label(self.lab("notloader"))
        a(f"s_cmp_lg_u32 s{sW}, 1")
        a(f"s_cbranch_scc1 {self.lab('cwave')}")
        self.gwave()
        a.label(self.lab("cwave"))
        self.cwave()
        a.label(self.lab("abort"))
        a.label(self.lab("end"))
        a("s_endpgm")
        a.label(self.lab("codeend"))
        return a.text()


NOTES = """
;
; One persistent workgroup per CU (256 of them, 10 waves each); g = id & 7 is the KV head, j = id >> 3.
;   wave 0      streams this CU's 184 KiB (wq block, gate/up block, 256 keys of K and V, w_down block, wo block)
; bits (tag = word 0 of d_ws + 1, which workgroup 0 stores back at the end), so a consumer simply re-reads
; on one die keeps its hand-offs in that die's L2 (plain stores); any other placement uses write-through stores.
"""


def header():
    ref = open("recurrent_scan__sliding_block_cached__glu_gated_glu__decode.s.ref").read().split("\n")
    out = []
    for l in ref:
        if l.startswith("; @launch"):
            out.append(f"; @launch grid=(256,1,1) block=({NW*64},1,1) lds={LDS_BYTES}")
            out.extend(NOTES.strip("\n").split("\n"))
            break
        out.append(l)
    return "\n".join(out) + "\n"


def final_file(path, cls=None, **kw):
    g = (cls or Gen3)(**kw)
    body = g.body()
    s = header()
    s += f""".amdgcn_target "amdgcn-amd-amdhsa--gfx950"
.text
.globl {KNAME}
.p2align 8
.type {KNAME},@function
{KNAME}:
{body}.section .rodata,"a"
.p2align 6
.amdhsa_kernel {KNAME}
  .amdhsa_next_free_vgpr {NVGPR}
  .amdhsa_next_free_sgpr 102
  .amdhsa_accum_offset {NVGPR}
  .amdhsa_group_segment_fixed_size 0
  .amdhsa_kernarg_size 96
  .amdhsa_user_sgpr_count 2
  .amdhsa_user_sgpr_kernarg_segment_ptr 1
  .amdhsa_system_sgpr_workgroup_id_x 1
.end_amdhsa_kernel
"""
    open(path, "w").write(s)
    return g


def build_variants(out, variants, cls=None):
    from asmlib import build
    ks = []
    for n, kw in variants:
        g = (cls or Gen3)(name=n + "_kernel", **kw)
        ks.append((n + "_kernel", g.body(), NVGPR, NW * 64))
    build(out, ks)
    open(out + ".names", "w").write("".join(f"{n}_kernel:256:{NW*64}:{LDS_BYTES}\n" for n, kw in variants))


if __name__ == "__main__":
    build_variants("kern3", [("k3s", dict(N=24, stamps=True)), ("k3", dict(N=24)), ("k3nl", dict(N=24, opts=dict(nolocal=1)))])
```
